```python
import torch

def _softmax(x, axis=-1):
    return torch.softmax(x, dim=axis)
def _gelu(x):
    return torch.nn.functional.gelu(x, approximate="tanh")
def _silu(x):
    return torch.nn.functional.silu(x)
def _sigmoid(x):
    return torch.sigmoid(x)
def _layernorm(x, axis=-1, eps=1e-5):
    m = x.mean(dim=axis, keepdim=True)
    v = x.var(dim=axis, keepdim=True, unbiased=False)
    return (x - m) / torch.sqrt(v + eps)
def _scatter_add(tgt, idx, src, axis=0):
    return tgt.clone().index_add_(axis, idx, src)
def _segment_sum(src, seg, n):
    out = torch.zeros((n,) + src.shape[1:], dtype=src.dtype)
    return out.index_add_(0, seg, src)
def _pad(x, pw):
    flat = tuple(v for pair in reversed(pw) for v in pair)
    return torch.nn.functional.pad(x, flat)

kernel_name = 'interleave_layers__sliding_local_dilated__glu_gated_geglu__prompt'

def setup_inputs():

    _w = (lambda a: (lambda t: t.to(torch.bfloat16) if t.is_floating_point() else t)(torch.as_tensor(a)))
    def _A_setup():
        B, S, D = 1, 2048, 512
        return {
            "x": _w((lambda *s: torch.randn(*s, dtype=torch.bfloat16) * 0.05)(B, S, D)),
            "wqkv": _w((lambda *s: torch.randn(*s, dtype=torch.bfloat16) * 0.05)(D, 3 * D)),
            "wo": _w((lambda *s: torch.randn(*s, dtype=torch.bfloat16) * 0.05)(D, D)),
        }
    _A_in = _A_setup()

    def _B_setup():
        B, S, Dm, Df = 1, 2048, 512, 1792
        return {
            "x": _w((lambda *s: torch.randn(*s, dtype=torch.bfloat16) * 0.05)(B, S, Dm)),
            "w_gate": _w((lambda *s: torch.randn(*s, dtype=torch.bfloat16) * 0.8)(Dm, Df) * (Dm ** -0.5)),
            "w_up": _w((lambda *s: torch.randn(*s, dtype=torch.bfloat16) * 0.8)(Dm, Df) * (Dm ** -0.5)),
            "w_down": _w((lambda *s: torch.randn(*s, dtype=torch.bfloat16) * 0.8)(Df, Dm) * (Df ** -0.5)),
        }
    _B_in = _B_setup()

    return {
        "A_x": _A_in["x"],
        "A_wqkv": _A_in["wqkv"],
        "A_wo": _A_in["wo"],
        "B_x": _B_in["x"],
        "B_w_gate": _B_in["w_gate"],
        "B_w_up": _B_in["w_up"],
        "B_w_down": _B_in["w_down"],
    }

def reference(A_x, A_wqkv, A_wo, B_x, B_w_gate, B_w_up, B_w_down):
    def _A_ref(x, wqkv, wo):
        B, S, D = x.shape
        H = 32; Dh = D // H
        W, dil = 8, 2
        qkv = (lambda x, *d: x.permute(*d))((x @ wqkv).reshape(B, S, 3, H, Dh), 2, 0, 3, 1, 4)
        q, k, v = qkv[0], qkv[1], qkv[2]
        scale = Dh ** -0.5
        pos = torch.arange(S)
        off = torch.arange(W) * dil
        idx = pos[:, None] - off[None, :]
        mask = idx >= 0
        idx_c = torch.where(mask, idx, 0).reshape(-1)
        kg = k[:, :, idx_c, :].reshape(B, H, S, W, Dh)
        vg = v[:, :, idx_c, :].reshape(B, H, S, W, Dh)
        logits = torch.einsum("bhsd,bhswd->bhsw", q, kg) * scale
        logits = torch.where(mask[None, None, :, :], logits, -1e9)
        attn = _softmax(logits, axis=-1)
        o = torch.einsum("bhsw,bhswd->bhsd", attn, vg)
        return (lambda x, *d: x.permute(*d))(o, 0, 2, 1, 3).reshape(B, S, D) @ wo

    def _B_ref(x, w_gate, w_up, w_down):
        g = torch.einsum("bsd,df->bsf", x, w_gate)
        u = torch.einsum("bsd,df->bsf", x, w_up)
        h = _gelu(g) * u
        return torch.einsum("bsf,fd->bsd", h, w_down)

    x = A_x
    x = x + _A_ref(_layernorm(x, axis=-1), A_wqkv, A_wo)
    x = x + _B_ref(_layernorm(x, axis=-1), B_w_gate, B_w_up, B_w_down)
    x = x + _A_ref(_layernorm(x, axis=-1), A_wqkv, A_wo)
    x = x + _B_ref(_layernorm(x, axis=-1), B_w_gate, B_w_up, B_w_down)
    return x
```

```python
import re

REG_RE = re.compile(r'^(-|abs\()?([vas])(\d+)\)?$')
RNG_RE = re.compile(r'^(-)?([vas])\[(\d+):(\d+)\]$')

TRANS = ('v_exp_f32', 'v_log_f32', 'v_rcp_f32', 'v_rsq_f32', 'v_sqrt_f32', 'v_sin_f32', 'v_cos_f32')


def parse_reg(tok):
    tok = tok.strip()
    m = REG_RE.match(tok)
    if m:
        return [(m.group(2), int(m.group(3)))]
    m = RNG_RE.match(tok)
    if m:
        return [(m.group(2), i) for i in range(int(m.group(3)), int(m.group(4)) + 1)]
    if tok == 'vcc':
        return [('s', 'vcc_lo'), ('s', 'vcc_hi')]
    if tok in ('vcc_lo', 'vcc_hi'):
        return [('s', tok)]
    if tok == 'exec':
        return [('s', 'exec_lo'), ('s', 'exec_hi')]
    if tok in ('exec_lo', 'exec_hi'):
        return [('s', tok)]
    if tok == 'm0':
        return [('s', 'm0')]
    return []


class Ins:
    __slots__ = ('text', 'op', 'kind', 'defs', 'uses', 'passes', 'srcc', 'srcab', 'tag', 'wide_store',
                 'dpp', 'label', 'target', 'waittags', 'lds_dma', 'store_data', 'note')

    def __init__(self, text, tag=None):
        self.text = text
        self.tag = tag
        self.defs = set()
        self.uses = set()
        self.passes = 0
        self.srcc = set()
        self.srcab = set()
        self.wide_store = False
        self.store_data = set()
        self.dpp = False
        self.label = None
        self.target = None
        self.waittags = None
        self.lds_dma = False
        self.note = None
        t = text.split(';')[0].strip()
        if t.endswith(':'):
            self.kind = 'label'
            self.op = ''
            self.label = t[:-1]
            return
        if t.startswith('.') or t == '':
            self.kind = 'directive'
            self.op = t
            return
        parts = t.split(None, 1)
        op = parts[0]
        self.op = op
        rest = parts[1] if len(parts) > 1 else ''
        ops = []
        depth = 0
        cur = ''
        for ch in rest:
            if ch == '[' or ch == '(':
                depth += 1
            if ch == ']' or ch == ')':
                depth -= 1
            if ch == ',' and depth == 0:
                ops.append(cur.strip())
                cur = ''
            else:
                cur += ch
        if cur.strip():
            ops.append(cur.strip())
        mods = ''
        if ops:
            last = ops[-1].split(None, 1)
            if len(last) > 1:
                ops[-1] = last[0]
                mods = last[1]
        regs = [parse_reg(o) for o in ops]
        base = op.replace('_e32', '').replace('_e64', '')

        def allr(lst):
            s = set()
            for r in lst:
                s.update(r)
            return s

        if op.startswith('v_mfma'):
            self.kind = 'mfma'
            self.passes = 8 if '32x32' in op else 4
            self.defs = set(regs[0])
            self.srcab = set(regs[1]) | set(regs[2])
            self.srcc = set(regs[3])
            self.uses = self.srcab | self.srcc
        elif op.startswith('buffer_') or op.startswith('global_'):
            self.kind = 'vmem'
            if op in ('buffer_inv', 'buffer_wbl2'):
                pass
            elif 'load' in op and (' lds' in (' ' + mods) or '_lds_' in op):
                self.lds_dma = True
                self.uses = allr(regs) | {('s', 'm0')}
            elif 'load' in op:
                self.defs = set(regs[0])
                self.uses = allr(regs[1:])
            elif 'atomic' in op:
                self.uses = allr(regs)
                if 'sc0' in mods:
                    self.defs = set(regs[0])
            else:
                self.uses = allr(regs)
                if op.startswith('buffer_'):
                    self.store_data = set(regs[0])
                else:
                    self.store_data = set(regs[1])
                if 'x4' in op or 'x3' in op:
                    self.wide_store = True
        elif op.startswith('ds_'):
            self.kind = 'ds'
            if op.startswith('ds_read') or 'permute' in op or 'swizzle' in op:
                self.defs = set(regs[0])
                self.uses = allr(regs[1:])
            else:
                self.uses = allr(regs)
        elif op.startswith('s_load') or op.startswith('s_buffer_load') or op in ('s_memtime', 's_memrealtime'):
            self.kind = 'smem'
            self.defs = set(regs[0])
            self.uses = allr(regs[1:])
        elif op == 's_waitcnt':
            self.kind = 'wait'
        elif op == 's_nop':
            self.kind = 'nop'
        elif op in ('s_barrier', 's_endpgm', 's_setprio', 's_sleep'):
            self.kind = 'sop'
        elif op.startswith('s_branch') or op.startswith('s_cbranch'):
            self.kind = 'branch'
            self.target = ops[0]
        elif op.startswith('s_'):
            self.kind = 'salu'
            if op.startswith('s_cmp'):
                self.uses = allr(regs)
            else:
                self.defs = set(regs[0])
                self.uses = allr(regs[1:])
                if 'saveexec' in op:
                    self.defs |= {('s', 'exec_lo'), ('s', 'exec_hi')}
                if op in ('s_addk_i32', 's_mulk_i32'):
                    self.uses |= set(regs[0])
        elif op.startswith('v_'):
            self.kind = 'valu'
            if 'dpp' in op or 'row_' in mods or 'quad_perm' in mods:
                self.dpp = True
            if base.startswith('v_permlane') and 'swap' in base:
                self.defs = set(regs[0]) | set(regs[1])
                self.uses = set(self.defs)
            elif base in ('v_add_co_u32', 'v_sub_co_u32', 'v_addc_co_u32', 'v_subb_co_u32'):
                self.defs = set(regs[0]) | set(regs[1])
                self.uses = allr(regs[2:])
            else:
                self.defs = set(regs[0])
                self.uses = allr(regs[1:])
                if base.startswith('v_fmac') or base.startswith('v_dot2c') or base.startswith('v_pk_fmac') or self.dpp \
                        or base == 'v_writelane_b32':
                    self.uses |= set(regs[0])
                if base.startswith('v_cmpx'):
                    self.defs |= {('s', 'exec_lo'), ('s', 'exec_hi')}
        else:
            raise ValueError('unknown instruction: ' + text)

    def states(self):
        if self.kind in ('label', 'directive'):
            return 0
        if self.kind == 'nop':
            return int(self.text.split()[1], 0) + 1
        return 1


def is_v(r):
    return r[0] in ('v', 'a')


def need_states(p, c):
    n = 0
    base_c = c.op.replace('_e32', '').replace('_e64', '')
    base_p = p.op.replace('_e32', '').replace('_e64', '')
    if p.kind == 'valu':
        pv = {r for r in p.defs if is_v(r)}
        ps = {r for r in p.defs if not is_v(r)}
        if c.kind == 'mfma' and pv & c.uses:
            n = max(n, 2)
        if c.kind == 'valu':
            if base_c.startswith('v_permlane') and pv & c.uses:
                n = max(n, 2)
            if c.dpp and pv & c.uses:
                n = max(n, 2)
            if base_c in ('v_readlane_b32', 'v_readfirstlane_b32') and pv & c.uses:
                n = max(n, 1)
            if base_p in TRANS and base_c not in TRANS and pv & c.uses:
                n = max(n, 1)
            if base_p.startswith('v_dot2') and (pv & (c.uses | c.defs)):
                same_chain = (base_p == base_c) and (p.defs == c.defs)
                if not same_chain:
                    n = max(n, 3)
            if ps & c.uses:
                n = max(n, 4 if base_c in ('v_readlane_b32', 'v_writelane_b32') else 2)
            if ('s', 'exec_lo') in ps:
                n = max(n, 5 if c.dpp else 4)
            if 'sdwa' in p.op or 'op_sel' in p.text:
                if pv & (c.uses | c.defs):
                    n = max(n, 1)
        if base_p.startswith('v_dot2') and c.kind in ('vmem', 'ds', 'mfma') and pv & (c.uses | c.defs):
            n = max(n, 3)
        if c.kind == 'mfma' and ('s', 'exec_lo') in ps:
            n = max(n, 4)
        if c.kind == 'vmem' and ps & c.uses:
            n = max(n, 5)
        if c.kind in ('salu', 'branch') and ps & c.uses:
            n = max(n, 1)
    if p.kind == 'mfma':
        ps8 = p.passes == 8
        if c.kind == 'mfma':
            if p.defs & c.srcc:
                if not (p.defs == c.srcc and p.passes == c.passes):
                    n = max(n, 10 if ps8 else 6)
            if p.defs & c.srcab:
                n = max(n, 12 if ps8 else 8)
            if (p.defs & c.defs) and not (p.defs & c.srcc):
                n = max(n, 12 if ps8 else 8)
        elif c.kind in ('valu', 'vmem', 'ds'):
            if p.defs & (c.uses | c.defs):
                n = max(n, 12 if ps8 else 8)
            if c.kind == 'valu' and p.srcc & c.defs:
                n = max(n, 7 if ps8 else 3)
    if p.kind == 'salu':
        if ('s', 'm0') in p.defs and c.kind == 'vmem' and c.lds_dma:
            n = max(n, 1)
    if p.kind == 'vmem' and p.wide_store:
        if c.kind == 'valu' and p.store_data & c.defs:
            n = max(n, 2)
        elif c.kind in ('mfma', 'ds', 'vmem') and p.store_data & c.defs:
            n = max(n, 1)
    return n


class Asm:
    def __init__(self):
        self.ins = []

    def __call__(self, text, tag=None):
        for line in text.split('\n'):
            line = line.strip()
            if line == '' or line.startswith(';'):
                continue
            i = Ins(line, tag)
            self.ins.append(i)
        return self.ins[-1] if self.ins else None

    def waitvm(self, *tags):
        i = Ins('s_waitcnt vmcnt(0)')
        i.waittags = ('vm', set(tags))
        self.ins.append(i)

    def waitlgkm(self, *tags):
        i = Ins('s_waitcnt lgkmcnt(0)')
        i.waittags = ('lgkm', set(tags))
        self.ins.append(i)

    def fence(self):
        self('s_waitcnt vmcnt(0) lgkmcnt(0)')

    def auto_waits(self):
        out = []
        vm = []
        lg = []
        for i in self.ins:
            if i.kind == 'wait':
                if i.waittags:
                    which, tags = i.waittags
                    q = vm if which == 'vm' else lg
                    idx = -1
                    for k, o in enumerate(q):
                        if o.tag in tags:
                            idx = k
                    if idx < 0:
                        continue
                    if which == 'lgkm' and any(o.kind == 'smem' for o in q):
                        cnt = 0
                    else:
                        cnt = len(q) - 1 - idx
                    mx = 63 if which == 'vm' else 15
                    cnt = min(cnt, mx)
                    j = Ins('s_waitcnt %s(%d)' % ('vmcnt' if which == 'vm' else 'lgkmcnt', cnt))
                    out.append(j)
                    del q[:len(q) - cnt]
                    continue
                m = re.search(r'vmcnt\((\d+)\)', i.text)
                if m:
                    c = int(m.group(1))
                    if len(vm) > c:
                        del vm[:len(vm) - c]
                m = re.search(r'lgkmcnt\((\d+)\)', i.text)
                if m:
                    c = int(m.group(1))
                    if len(lg) > c:
                        del lg[:len(lg) - c]
                out.append(i)
                continue
            touched = i.uses | i.defs
            needvm = None
            for k, o in enumerate(vm):
                if o.defs & touched:
                    needvm = k
            needlg = None
            for k, o in enumerate(lg):
                if o.defs & touched:
                    needlg = k
            w = []
            if needvm is not None:
                c = min(len(vm) - 1 - needvm, 63)
                w.append('vmcnt(%d)' % c)
                del vm[:len(vm) - c]
            if needlg is not None:
                if any(o.kind == 'smem' for o in lg):
                    c = 0
                else:
                    c = min(len(lg) - 1 - needlg, 15)
                w.append('lgkmcnt(%d)' % c)
                del lg[:len(lg) - c]
            if w:
                out.append(Ins('s_waitcnt ' + ' '.join(w)))
            out.append(i)
            if i.kind == 'vmem':
                vm.append(i)
                assert len(vm) <= 64 + 1000
            elif i.kind in ('ds', 'smem'):
                lg.append(i)
        self.ins = out

    def check_counters(self):
        pass

    def auto_nops(self):
        out = []

        def pad_for(window, c):
            need = 0
            dist = 0
            for p in reversed(window):
                if dist >= 20:
                    break
                if p.kind not in ('label', 'directive'):
                    n = need_states(p, c)
                    if n - dist > need:
                        need = n - dist
                dist += p.states()
            return need

        for c in self.ins:
            if c.kind not in ('label', 'directive', 'nop', 'wait'):
                need = pad_for(out[-40:], c)
                while need > 0:
                    k = min(need, 16)
                    out.append(Ins('s_nop %d' % (k - 1)))
                    need -= k
            out.append(c)
        labels = {i.label: k for k, i in enumerate(out) if i.kind == 'label'}
        k = 0
        while k < len(out):
            b = out[k]
            if b.kind == 'branch' and b.target in labels:
                t = labels[b.target]
                window = out[max(0, k - 40):k + 1]
                worst = 0
                sim = list(window)
                dist = 0
                for c in out[t:t + 40]:
                    if c.kind not in ('label', 'directive', 'nop', 'wait'):
                        worst = max(worst, pad_for(sim, c))
                    sim.append(c)
                    dist += c.states()
                    if dist >= 20:
                        break
                if worst > 0:
                    out.insert(k, Ins('s_nop %d' % (worst - 1)))
                    labels = {i.label: kk for kk, i in enumerate(out) if i.kind == 'label'}
                    k += 1
            k += 1
        self.ins = out

    def finish(self):
        self.auto_waits()
        self.auto_nops()
        return self.text()

    def text(self):
        lines = []
        for i in self.ins:
            if i.kind in ('label', 'directive'):
                lines.append(i.text)
            else:
                lines.append('    ' + i.text)
        return '\n'.join(lines) + '\n'


def vr(n, cnt=1):
    return 'v%d' % n if cnt == 1 else 'v[%d:%d]' % (n, n + cnt - 1)


def ar(n, cnt=1):
    return 'a%d' % n if cnt == 1 else 'a[%d:%d]' % (n, n + cnt - 1)


def sr(n, cnt=1):
    return 's%d' % n if cnt == 1 else 's[%d:%d]' % (n, n + cnt - 1)
```

```python
import sys
import math
import struct
sys.path.insert(0, 'dev')
from asmlib import Asm, vr, ar, sr

NAME = 'interleave_layers__sliding_local_dilated__glu_gated_geglu__prompt'

WQKV_F = 0x000000
WO_F = 0x180000
WGU_F = 0x200000
WD_F = 0x580000
CS_QKV = 0x740000
CS_G = 0x742000
CS_U = 0x744000
X0 = 0x800000
O_ = [0xA00000, 0x1000000]
X1_ = [0xC00000, 0x1200000]
X2 = 0xE00000
H_ = [0x1400000, 0x1B00000]
STA = [0x2200000, 0x2240000]
STB = [0x2280000, 0x22A0000]
WS_BYTES = 0x10000000

ONES = 0x3f803f80


def f2u(x):
    return struct.unpack('<I', struct.pack('<f', x))[0]


def hx(x):
    return '0x%x' % (x & 0xffffffff)


def srd(a, d, base, nbytes):
    a(f's_mov_b32 s{d}, s{base}')
    a(f's_mov_b32 s{d+1}, s{base+1}')
    a(f's_mov_b32 s{d+2}, {hx(nbytes)}')
    a(f's_mov_b32 s{d+3}, 0x00020000')


def header(a, name, nwg=256):
    a(f'.p2align 8')
    a(f'.type {name},@function')
    a(f'{name}:')
    a(f's_cmp_ge_u32 s2, {nwg}')
    a(f's_cbranch_scc1 L_end_{name}')


def footer(a, name):
    a(f'L_end_{name}:')
    a('s_endpgm')


def ws_prologue(a):
    a('s_load_dwordx2 s[4:5], s[0:1], 72')
    a('v_lshrrev_b32 v2, 6, v0')
    a('v_and_b32 v0, 63, v0')
    a('v_readfirstlane_b32 s3, v2')
    a('v_lshlrev_b32 v1, 4, v0')
    srd(a, 8, 4, WS_BYTES)


def gen_p0():
    a = Asm()
    name = 'p0_kernel'
    header(a, name)
    a('s_load_dwordx4 s[12:15], s[0:1], 0')
    a('s_load_dwordx2 s[16:17], s[0:1], 16')
    a('s_load_dwordx4 s[20:23], s[0:1], 32')
    a('s_load_dwordx2 s[24:25], s[0:1], 48')
    a('s_load_dwordx2 s[4:5], s[0:1], 72')
    a('s_waitcnt lgkmcnt(0)')
    srd(a, 8, 4, WS_BYTES)
    srd(a, 28, 12, 2048 * 1024)
    a('v_and_b32 v1, 7, v0')
    a('v_lshrrev_b32 v2, 3, v0')
    a('s_lshl_b32 s3, s2, 13')
    a('v_lshlrev_b32 v3, 10, v1')
    a('v_lshl_add_u32 v3, v2, 4, v3')
    a('buffer_load_dwordx4 v[8:11], v3, s[28:31], s3 offen')
    a('buffer_load_dwordx4 v[12:15], v3, s[28:31], s3 offen offset:512')
    a('s_lshr_b32 s6, s2, 2')
    a('s_and_b32 s7, s2, 3')
    a('s_lshl_b32 s26, s6, 15')
    a('s_lshl_b32 s27, s7, 7')
    a('s_add_u32 s26, s26, s27')
    a(f's_add_u32 s26, s26, {hx(X0)}')
    a('s_add_u32 s27, s26, 16384')
    a('v_lshlrev_b32 v4, 9, v2')
    a('v_lshl_add_u32 v4, v1, 4, v4')
    a('buffer_store_dwordx4 v[8:11], v4, s[8:11], s26 offen')
    a('buffer_store_dwordx4 v[12:15], v4, s[8:11], s27 offen')
    a(f's_mov_b32 s33, {hx(ONES)}')
    for g, base in enumerate((8, 12)):
        S, Q = 16 + 2 * g, 17 + 2 * g
        a(f'v_mov_b32 v{S}, 0')
        a(f'v_mov_b32 v{Q}, 0')
        for d in range(4):
            a(f'v_dot2_f32_bf16 v{S}, v{base+d}, s33, v{S}')
        for d in range(4):
            a(f'v_dot2_f32_bf16 v{Q}, v{base+d}, v{base+d}, v{Q}')
    for r in range(16, 20):
        a(f'v_add_f32_dpp v{r+4}, v{r}, v{r} row_ror:8 row_mask:0xf bank_mask:0xf')
    a('v_permlane16_swap_b32 v20, v21')
    a('v_permlane16_swap_b32 v22, v23')
    a('v_add_f32 v20, v20, v21')
    a('v_add_f32 v22, v22, v23')
    a('v_lshrrev_b32 v5, 5, v0')
    a('v_lshlrev_b32 v5, 8, v5')
    a('v_lshl_add_u32 v5, v1, 3, v5')
    a('v_bfe_u32 v6, v0, 4, 1')
    a('v_lshl_add_u32 v5, v6, 2, v5')
    a('s_lshl_b32 s26, s6, 12')
    a('s_lshl_b32 s27, s7, 6')
    a('s_add_u32 s26, s26, s27')
    a(f's_add_u32 s26, s26, {hx(STA[0])}')
    a('buffer_store_dword v20, v5, s[8:11], s26 offen')
    a('buffer_store_dword v22, v5, s[8:11], s26 offen offset:2048')
    a('s_cmp_ge_u32 s2, 240')
    a(f's_cbranch_scc1 L_end_{name}')
    a('v_and_b32 v1, 3, v0')
    a('v_lshrrev_b32 v2, 2, v0')
    a('s_mov_b32 s39, 64')
    a('s_cmp_lt_u32 s2, 48')
    a('s_cbranch_scc1 L_p0_qkv')
    a('s_cmp_lt_u32 s2, 64')
    a('s_cbranch_scc1 L_p0_wo')
    a('s_cmp_lt_u32 s2, 176')
    a('s_cbranch_scc1 L_p0_gu')
    srd(a, 28, 24, 1792 * 1024)
    a('s_sub_u32 s6, s2, 176')
    a('s_lshr_b32 s7, s6, 4')
    a('s_and_b32 s6, s6, 15')
    a('s_mov_b32 s34, 1024')
    a('s_lshl_b32 s35, s7, 19')
    a('s_lshl_b32 s26, s6, 6')
    a('s_add_u32 s35, s35, s26')
    a('s_mul_i32 s36, s6, 114688')
    a('s_lshl_b32 s26, s7, 15')
    a('s_add_u32 s36, s36, s26')
    a(f's_add_u32 s36, s36, {hx(WD_F)}')
    a('s_mov_b32 s37, 128')
    a('s_mov_b32 s38, 0')
    a('s_cmp_eq_u32 s7, 3')
    a('s_cselect_b32 s39, 32, 64')
    a('v_lshlrev_b32 v4, 9, v2')
    a('v_and_b32 v5, 1, v1')
    a('v_lshl_add_u32 v4, v5, 8, v4')
    a('v_lshrrev_b32 v5, 1, v1')
    a('v_lshl_add_u32 v4, v5, 6, v4')
    a('s_branch L_p0_go')
    a('L_p0_gu:')
    a('s_cmp_lt_u32 s2, 120')
    a('s_cselect_b32 s26, s20, s22')
    a('s_cselect_b32 s27, s21, s23')
    a('s_cselect_b32 s6, 64, 120')
    a('s_cselect_b32 s7, 0, 256')
    a(f's_cselect_b32 s38, {hx(CS_G)}, {hx(CS_U)}') if False else None
    a(f's_mov_b32 s38, {hx(CS_U)}')
    a(f's_cselect_b32 s38, {hx(CS_G)}, s38')
    srd(a, 28, 26, 512 * 3584)
    a('s_sub_u32 s6, s2, s6')
    a('s_mov_b32 s34, 3584')
    a('s_lshl_b32 s35, s6, 6')
    a('s_lshl_b32 s36, s6, 16')
    a('s_add_u32 s36, s36, s7')
    a(f's_add_u32 s36, s36, {hx(WGU_F)}')
    a('s_mov_b32 s37, 128')
    a('s_lshl_b32 s26, s6, 7')
    a('s_add_u32 s38, s38, s26')
    a('v_lshlrev_b32 v4, 9, v2')
    a('v_lshrrev_b32 v5, 1, v1')
    a('v_lshl_add_u32 v4, v5, 15, v4')
    a('v_and_b32 v5, 1, v1')
    a('v_lshl_add_u32 v4, v5, 6, v4')
    a('s_branch L_p0_go')
    a('L_p0_wo:')
    srd(a, 28, 16, 512 * 1024)
    a('s_sub_u32 s6, s2, 48')
    a('s_mov_b32 s34, 1024')
    a('s_lshl_b32 s35, s6, 6')
    a('s_lshr_b32 s7, s6, 1')
    a('s_lshl_b32 s36, s7, 16')
    a('s_and_b32 s7, s6, 1')
    a('s_lshl_b32 s7, s7, 11')
    a('s_add_u32 s36, s36, s7')
    a(f's_add_u32 s36, s36, {hx(WO_F)}')
    a('s_mov_b32 s37, 1024')
    a('s_mov_b32 s38, 0')
    a('v_lshrrev_b32 v5, 2, v2')
    a('v_lshlrev_b32 v4, 12, v5')
    a('v_and_b32 v5, 3, v2')
    a('v_lshl_add_u32 v4, v5, 8, v4')
    a('v_lshl_add_u32 v4, v1, 6, v4')
    a('s_branch L_p0_go')
    a('L_p0_qkv:')
    srd(a, 28, 14, 512 * 3072)
    a('s_mov_b32 s34, 3072')
    a('s_lshl_b32 s35, s2, 6')
    a('s_lshr_b32 s7, s2, 4')
    a('s_and_b32 s6, s2, 15')
    a('s_mul_i32 s36, s6, 98304')
    a('s_lshl_b32 s7, s7, 10')
    a('s_add_u32 s36, s36, s7')
    if WQKV_F:
        a(f's_add_u32 s36, s36, {hx(WQKV_F)}')
    a('s_mov_b32 s37, 64')
    a('s_lshl_b32 s38, s2, 7')
    a(f's_add_u32 s38, s38, {hx(CS_QKV)}')
    a('v_lshrrev_b32 v5, 2, v2')
    a('v_mul_u32_u24 v4, 3072, v5')
    a('v_and_b32 v5, 3, v2')
    a('v_lshl_add_u32 v4, v5, 8, v4')
    a('v_and_b32 v5, 1, v1')
    a('v_lshl_add_u32 v4, v5, 7, v4')
    a('v_lshrrev_b32 v5, 1, v1')
    a('v_mul_u32_u24 v5, 49152, v5')
    a('v_add_u32 v4, v4, v5')
    a('L_p0_go:')
    a('s_waitcnt vmcnt(0) lgkmcnt(0)')
    a('s_lshl_b32 s26, s34, 3')
    a('v_mul_lo_u32 v3, v2, s26')
    a('v_lshl_add_u32 v3, v1, 4, v3')
    R = 8
    G = 40
    for r in range(8):
        a(f'buffer_load_dwordx4 v[{R+4*r}:{R+4*r+3}], v3, s[28:31], s35 offen')
        if r < 7:
            a('s_add_u32 s35, s35, s34')
    a('s_mov_b32 s40, 0x05040100')
    a('s_mov_b32 s41, 0x07060302')
    for j in range(8):
        for u in range(4):
            a(f'v_perm_b32 v{G+4*j+u}, v{R+4*(2*u+1)+(j>>1)}, v{R+4*(2*u)+(j>>1)}, s{40+(j&1)}')
    a('s_add_u32 s37, s37, s36')
    a('v_cmp_gt_u32 vcc, s39, v2')
    a('s_and_saveexec_b64 s[42:43], vcc')
    a('s_cbranch_execz L_p0_nostore')
    for j in range(8):
        so = 's36' if j < 4 else 's37'
        a(f'buffer_store_dwordx4 v[{G+4*j}:{G+4*j+3}], v4, s[8:11], {so} offen offset:{16*(j&3)}')
    a('L_p0_nostore:')
    a('s_mov_b64 exec, s[42:43]')
    a('s_cmp_eq_u32 s38, 0')
    a(f's_cbranch_scc1 L_end_{name}')
    for j in range(8):
        a(f'v_mov_b32 v{R+j}, 0')
    for j in range(8):
        for u in range(4):
            a(f'v_dot2_f32_bf16 v{R+j}, v{G+4*j+u}, s33, v{R+j}')
    a('v_lshlrev_b32 v5, 5, v0')
    a(f'ds_write_b128 v5, v[{R}:{R+3}]')
    a(f'ds_write_b128 v5, v[{R+4}:{R+7}] offset:16')
    a('s_waitcnt lgkmcnt(0)')
    a('s_barrier')
    a('v_and_b32 v6, 31, v0')
    a('v_lshrrev_b32 v7, 5, v0')
    a('v_lshlrev_b32 v5, 10, v7')
    a('v_lshl_add_u32 v5, v6, 2, v5')
    for i in range(8):
        a(f'ds_read_b32 v{R+i}, v5 offset:{128*i}')
    for i in range(1, 8):
        a(f'v_add_f32 v{R}, v{R}, v{R+i}')
    a('v_lshlrev_b32 v5, 2, v0')
    a(f'ds_write_b32 v5, v{R} offset:8192')
    a('s_waitcnt lgkmcnt(0)')
    a('s_barrier')
    a('v_lshlrev_b32 v5, 2, v6')
    for i in range(8):
        a(f'ds_read_b32 v{R+i}, v5 offset:{8192+128*i}')
    for i in range(1, 8):
        a(f'v_add_f32 v{R}, v{R}, v{R+i}')
    a(f'buffer_store_dword v{R}, v5, s[8:11], s38 offen')
    footer(a, name)
    return name, a.finish(), dict(vgpr=72, acc=72, lds=16384)


def stat_finalize(a, S, Q, T, sEps):
    a(f'v_mul_f32 v{S}, {hx(f2u(-1.0/512))}, v{S}')
    a(f'v_mul_f32 v{T}, v{S}, v{S}')
    a(f'v_mov_b32 v{T+1}, {hx(f2u(1.0/512))}')
    a(f'v_fma_f32 v{T}, v{Q}, v{T+1}, -v{T}')
    a(f'v_max_f32 v{T}, 0, v{T}')
    a(f'v_add_f32 v{T}, s{sEps}, v{T}')
    a(f'v_mov_b32 v{Q}, v{S}')
    a(f'v_rsq_f32 v{S}, v{T}')


def gen_p1(layer):
    a = Asm()
    name = f'p1l{layer}_kernel'
    X = X0 if layer == 0 else X2
    ST = STA[layer]
    header(a, name)
    ws_prologue(a)
    a('s_and_b32 s12, s2, 7')
    a('s_lshr_b32 s13, s2, 3')
    a('s_lshl_b32 s14, s12, 2')
    a('s_add_u32 s14, s14, s3')
    a('v_and_b32 v2, 15, v0')
    a('v_lshrrev_b32 v3, 4, v0')
    a('v_lshlrev_b32 v4, 9, v3')
    a('v_lshl_add_u32 v4, v2, 4, v4')
    a('v_lshlrev_b32 v5, 8, v3')
    a('v_lshl_add_u32 v5, v2, 4, v5')
    a('v_add_u32 v6, 16384, v4')
    a('s_lshl_b32 s15, s13, 16')
    a('s_sub_u32 s16, s15, 32512')
    a('s_cmp_eq_u32 s13, 0')
    a('s_cselect_b32 s16, 0, s16')
    a(f's_add_u32 s16, s16, {hx(X)}')
    a(f's_add_u32 s15, s15, {hx(X)}')
    a('s_lshl_b32 s17, s3, 13')
    a('s_add_u32 s16, s16, s17')
    a('s_lshl_b32 s18, s3, 12')
    a('s_mov_b32 m0, s18')
    for j in range(4):
        a(f'buffer_load_dwordx4 v4, s[8:11], s16 offen offset:{1024*j} lds', tag='xh')
        a('s_add_u32 s16, s16, 1024')
    a('s_add_u32 s15, s15, s17')
    for t in range(2):
        for g in range(2):
            a(f's_add_u32 s18, s17, {16384 + t*32768 + g*4096}')
            a('s_mov_b32 m0, s18')
            for j in range(4):
                a(f'buffer_load_dwordx4 v1, s[8:11], s15 offen offset:{1024*j} lds', tag=f'x{t}')
            a(f's_add_u32 s15, s15, {4096 if g == 0 else 32768 - 4096}')
    a('v_lshlrev_b32 v7, 10, v3')
    a('v_lshl_add_u32 v7, v2, 3, v7')
    a('s_lshl_b32 s15, s13, 13')
    a('s_sub_u32 s16, s15, 3968')
    a('s_cmp_eq_u32 s13, 0')
    a('s_cselect_b32 s16, 0, s16')
    a(f's_add_u32 s16, s16, {hx(ST)}')
    a('s_lshr_b32 s17, s3, 1')
    a('s_lshl_b32 s17, s17, 12')
    a('s_and_b32 s18, s3, 1')
    a('s_lshl_b32 s18, s18, 7')
    a('s_add_u32 s15, s15, s17')
    a('s_add_u32 s15, s15, s18')
    a(f's_add_u32 s15, s15, {hx(ST)}')
    for j in range(4):
        a(f'buffer_load_dwordx2 v[{8+2*j}:{9+2*j}], v7, s[8:11], s15 offen offset:{256*j}')
    for j in range(4):
        a(f'buffer_load_dwordx2 v[{16+2*j}:{17+2*j}], v7, s[8:11], s16 offen offset:{256*j}')
    CSQ, CSK, CSV = 24, 28, 32
    a('s_lshl_b32 s15, s14, 6')
    a(f's_add_u32 s15, s15, {hx(CS_QKV)}')
    a('v_lshlrev_b32 v33, 4, v3')
    a('v_lshlrev_b32 v34, 2, v2')
    a(f'buffer_load_dwordx4 v[{CSQ}:{CSQ+3}], v33, s[8:11], s15 offen')
    a(f'buffer_load_dwordx4 v[{CSK}:{CSK+3}], v33, s[8:11], s15 offen offset:2048')
    a('s_add_u32 s15, s15, 4096')
    a(f'buffer_load_dword v{CSV}, v34, s[8:11], s15 offen')
    a('s_mul_i32 s15, s14, 49152')
    if WQKV_F:
        a(f's_add_u32 s15, s15, {hx(WQKV_F)}')
    for f in range(48):
        a(f'buffer_load_dwordx4 a[{4*f}:{4*f+3}], v1, s[8:11], s15 offen offset:{1024*(f&3)}')
        if (f & 3) == 3 and f < 47:
            a('s_add_u32 s15, s15, 4096')
    BI = 36
    SELA, SELB = 42, 43
    NEG = f2u(-1e30)
    a('v_and_b32 v44, 1, v2')
    a('v_lshl_add_u32 v45, v3, 2, v44')
    a('v_add_u32 v46, 2, v45')
    a('v_add_u32 v47, 2, v2')
    a(f'v_mov_b32 v48, {hx(NEG)}')
    a('v_cmp_ge_u32 vcc, v45, v47')
    a(f'v_cndmask_b32 v{BI}, v48, 0, vcc') if False else None
    a('v_mov_b32 v49, 0')
    a(f'v_cndmask_b32 v{BI}, v48, v49, vcc')
    a('v_cmp_ge_u32 vcc, v46, v47')
    a(f'v_cndmask_b32 v{BI+1}, v48, v49, vcc')
    a('v_cmp_le_u32 vcc, v45, v2')
    a(f'v_cndmask_b32 v{BI+2}, v48, v49, vcc')
    a('v_cmp_le_u32 vcc, v46, v2')
    a(f'v_cndmask_b32 v{BI+3}, v48, v49, vcc')
    a('s_cmp_eq_u32 s13, 0')
    a('s_cselect_b64 s[20:21], -1, 0')
    a(f'v_cndmask_b32 v{BI+4}, v{BI}, v48, s[20:21]')
    a(f'v_cndmask_b32 v{BI+5}, v{BI+1}, v48, s[20:21]')
    a('s_mov_b32 s22, 0xaaaaaaaa')
    a('s_mov_b32 s23, 0xaaaaaaaa')
    a('v_mov_b32 v45, 0x0c0c0100')
    a('v_mov_b32 v46, 0x01000c0c')
    a(f'v_cndmask_b32 v{SELA}, v45, v46, s[22:23]')
    a('v_mov_b32 v45, 0x0c0c0302')
    a('v_mov_b32 v46, 0x03020c0c')
    a(f'v_cndmask_b32 v{SELB}, v45, v46, s[22:23]')
    a(f's_mov_b32 s24, {hx(f2u(1e-5))}')
    TAB = 81920
    for base in (8, 16):
        for j in range(1, 4):
            a(f'v_add_f32 v{base}, v{base}, v{base+2*j}')
            a(f'v_add_f32 v{base+1}, v{base+1}, v{base+2*j+1}')
    for base in (8, 16):
        a(f'v_permlane16_swap_b32 v{base}, v{base+1}')
        a(f'v_add_f32 v{base}, v{base}, v{base+1}')
        a(f'v_mov_b32 v{base+1}, v{base}')
        a(f'v_permlane32_swap_b32 v{base}, v{base+1}')
        a(f'v_add_f32 v{base}, v{base}, v{base+1}')
        a(f'v_mov_b32 v{base+1}, v{base}')
        a(f'v_permlane16_swap_b32 v{base}, v{base+1}')
        stat_finalize(a, base, base + 1, base + 2, 24)
    a('v_lshlrev_b32 v44, 3, v2')
    a(f'v_add_u32 v44, {TAB}, v44')
    a('s_lshl_b32 s15, s3, 7')
    a('v_add_u32 v45, s15, v44')
    a('ds_write_b64 v45, v[8:9] offset:128')
    a('ds_write_b64 v44, v[16:17]')
    a('v_lshlrev_b32 v46, 5, v3')
    a(f'v_add_u32 v46, {TAB}, v46')
    a('s_waitcnt vmcnt(0) lgkmcnt(0)')
    a('s_barrier')
    AQ, AK, AV = 52, 72, 92
    BR = 112
    seq = [(i, s) for i in range(5) for s in range(16)]

    def rd(idx):
        i, s = seq[idx]
        dst = BR + 4 * (idx & 3)
        if i == 0:
            a(f'ds_read_b128 v[{dst}:{dst+3}], v5 offset:{s*1024}')
        else:
            t, half = (i - 1) >> 1, (i - 1) & 1
            a(f'ds_read_b128 v[{dst}:{dst+3}], v6 offset:{t*32768 + half*256 + s*2048}')
    for idx in range(3):
        rd(idx)
    for idx, (i, s) in enumerate(seq):
        if idx + 3 < len(seq):
            rd(idx + 3)
        b = BR + 4 * (idx & 3)
        B = f'v[{b}:{b+3}]'

        def W(part):
            f = s * 3 + part
            return f'a[{4*f}:{4*f+3}]'

        def acc(base):
            r = base + 4 * i
            return f'v[{r}:{r+3}]'
        c = lambda base: acc(base) if s else '0'
        a(f'v_mfma_f32_16x16x32_bf16 {acc(AK)}, {W(1)}, {B}, {c(AK)}')
        a(f'v_mfma_f32_16x16x32_bf16 {acc(AV)}, {B}, {W(2)}, {c(AV)}')
        if i:
            a(f'v_mfma_f32_16x16x32_bf16 {acc(AQ)}, {W(0)}, {B}, {c(AQ)}')
    QP, KP, VP = 128, 140, 150
    SC = 160
    CT = 166
    a(f's_mov_b32 s25, {hx(f2u(0.25 * math.log2(math.e)))}')
    for i in range(5):
        a(f'ds_read_b64 v[{CT}:{CT+1}], v44 offset:{128*i}')
        a(f'ds_read_b128 v[{CT+2}:{CT+5}], v46 offset:{128*i}')
        a(f'ds_read_b128 v[{CT+6}:{CT+9}], v46 offset:{128*i+16}')
        for v in range(4):
            r = AK + 4 * i + v
            a(f'v_fmac_f32 v{r}, v{CT+1}, v{CSK+v}')
            a(f'v_mul_f32 v{r}, v{CT}, v{r}')
        for d in range(2):
            a(f'v_cvt_pk_bf16_f32 v{KP+2*i+d}, v{AK+4*i+2*d}, v{AK+4*i+2*d+1}')
        if i:
            for v in range(4):
                a(f'v_fmac_f32 v{AQ+4*i+v}, v{CT+1}, v{CSQ+v}')
            for d in range(2):
                a(f'v_cvt_pk_bf16_f32 v{QP+2*i+d}, v{AQ+4*i+2*d}, v{AQ+4*i+2*d+1}')
            a(f'v_mul_f32 v{SC+i}, s25, v{CT}')
        for v in range(4):
            r = AV + 4 * i + v
            a(f'v_fmac_f32 v{r}, v{CT+2+2*v+1}, v{CSV}')
            a(f'v_mul_f32 v{r}, v{CT+2+2*v}, v{r}')
        for d in range(2):
            a(f'v_cvt_pk_bf16_f32 v{VP+2*i+d}, v{AV+4*i+2*d}, v{AV+4*i+2*d+1}')
    a('s_lshl_b32 s15, s13, 16')
    a('s_lshl_b32 s16, s14, 10')
    a('s_add_u32 s15, s15, s16')
    a(f's_add_u32 s15, s15, {hx(O_[layer])}')
    SS = 176
    TT = 192
    MM = 200
    PP = 204
    OO = 212
    OS = 220
    for pr in range(2):
        tl = (1 + 2 * pr, 2 + 2 * pr)
        for u, i in enumerate(tl):
            a(f'v_mfma_f32_16x16x16_bf16 v[{SS+8*u}:{SS+8*u+3}], v[{KP+2*i-2}:{KP+2*i-1}], v[{QP+2*i}:{QP+2*i+1}], 0')
            a(f'v_mfma_f32_16x16x16_bf16 v[{SS+8*u+4}:{SS+8*u+7}], v[{KP+2*i}:{KP+2*i+1}], v[{QP+2*i}:{QP+2*i+1}], 0')
        for u, i in enumerate(tl):
            for c in range(4):
                r = SS + 8 * u + 2 * c
                a(f'v_cndmask_b32 v{TT+4*u+c}, v{r}, v{r+1}, s[22:23]')
            for c in range(4):
                bias = BI + c if not (i == 1 and c < 2) else BI + 4 + c
                a(f'v_fma_f32 v{TT+4*u+c}, v{TT+4*u+c}, v{SC+i}, v{bias}')
            a(f'v_max3_f32 v{MM+u}, v{TT+4*u}, v{TT+4*u+1}, v{TT+4*u+2}')
            a(f'v_max_f32 v{MM+u}, v{MM+u}, v{TT+4*u+3}')
        a(f'v_permlane16_swap_b32 v{MM}, v{MM+1}')
        a(f'v_max_f32 v{MM}, v{MM}, v{MM+1}')
        a(f'v_mov_b32 v{MM+1}, v{MM}')
        a(f'v_permlane32_swap_b32 v{MM}, v{MM+1}')
        a(f'v_max_f32 v{MM}, v{MM}, v{MM+1}')
        a(f'v_mov_b32 v{MM+1}, v{MM}')
        a(f'v_permlane16_swap_b32 v{MM}, v{MM+1}')
        for u, i in enumerate(tl):
            for c in range(4):
                a(f'v_sub_f32 v{TT+4*u+c}, v{TT+4*u+c}, v{MM+u}')
            for c in range(4):
                a(f'v_exp_f32 v{TT+4*u+c}, v{TT+4*u+c}')
        for u, i in enumerate(tl):
            a(f'v_cvt_pk_bf16_f32 v{SS+8*u}, v{TT+4*u}, v{TT+4*u+1}')
            a(f'v_cvt_pk_bf16_f32 v{SS+8*u+1}, v{TT+4*u+2}, v{TT+4*u+3}')
            a(f'v_perm_b32 v{PP+4*u}, v{SS+8*u}, v{SS+8*u}, v{SELA}')
            a(f'v_perm_b32 v{PP+4*u+1}, v{SS+8*u}, v{SS+8*u}, v{SELB}')
            a(f'v_perm_b32 v{PP+4*u+2}, v{SS+8*u+1}, v{SS+8*u+1}, v{SELA}')
            a(f'v_perm_b32 v{PP+4*u+3}, v{SS+8*u+1}, v{SS+8*u+1}, v{SELB}')
            a(f'v_add_f32 v{MM+2+u}, v{TT+4*u}, v{TT+4*u+1}')
            a(f'v_add_f32 v{TT+4*u+2}, v{TT+4*u+2}, v{TT+4*u+3}')
            a(f'v_add_f32 v{MM+2+u}, v{MM+2+u}, v{TT+4*u+2}')
            a(f'v_mfma_f32_16x16x32_bf16 v[{OO+4*u}:{OO+4*u+3}], v[{VP+2*i-2}:{VP+2*i+1}], v[{PP+4*u}:{PP+4*u+3}], 0')
        S0, S1 = MM + 2, MM + 3
        a(f'v_permlane16_swap_b32 v{S0}, v{S1}')
        a(f'v_add_f32 v{S0}, v{S0}, v{S1}')
        a(f'v_mov_b32 v{S1}, v{S0}')
        a(f'v_permlane32_swap_b32 v{S0}, v{S1}')
        a(f'v_add_f32 v{S0}, v{S0}, v{S1}')
        a(f'v_rcp_f32 v{S0}, v{S0}')
        a(f'v_mov_b32 v{S1}, v{S0}')
        a(f'v_permlane16_swap_b32 v{S0}, v{S1}')
        for u in range(2):
            for v in range(4):
                a(f'v_mul_f32 v{OO+4*u+v}, v{OO+4*u+v}, v{S0+u}')
            for d in range(2):
                a(f'v_cvt_pk_bf16_f32 v{OS+2*u+d}, v{OO+4*u+2*d}, v{OO+4*u+2*d+1}')
        a(f'v_permlane16_swap_b32 v{OS}, v{OS+2}')
        a(f'v_permlane16_swap_b32 v{OS+1}, v{OS+3}')
        a(f'buffer_store_dwordx4 v[{OS}:{OS+3}], v1, s[8:11], s15 offen')
        if pr == 0:
            a('s_add_u32 s15, s15, 32768')
    footer(a, name)
    return name, a.finish(), dict(vgpr=224, acc=192, lds=81920 + 640)


def unpack_add(a, dst_lo, dst_hi, src, tmp):
    a(f'v_lshlrev_b32 v{tmp}, 16, v{src}')
    a(f'v_add_f32 v{dst_lo}, v{dst_lo}, v{tmp}')
    a(f'v_and_b32 v{tmp}, 0xffff0000, v{src}')
    a(f'v_add_f32 v{dst_hi}, v{dst_hi}, v{tmp}')


def gen_p2(layer):
    a = Asm()
    name = f'p2l{layer}_kernel'
    X = X0 if layer == 0 else X2
    header(a, name)
    ws_prologue(a)
    a('s_and_b32 s12, s2, 7')
    a('s_lshr_b32 s13, s2, 3')
    a('v_and_b32 v2, 15, v0')
    a('v_lshrrev_b32 v3, 4, v0')
    a('v_lshlrev_b32 v4, 9, v3')
    a('v_lshl_add_u32 v4, v2, 4, v4')
    a('s_lshl_b32 s15, s12, 16')
    a('s_lshl_b32 s17, s3, 14')
    a('s_add_u32 s15, s15, s17')
    a(f's_add_u32 s15, s15, {hx(WO_F)}')
    for g in range(4):
        a('s_mov_b32 m0, s17')
        for j in range(4):
            a(f'buffer_load_dwordx4 v1, s[8:11], s15 offen offset:{1024*j} lds', tag='w')
        a('s_add_u32 s15, s15, 4096')
        a('s_add_u32 s17, s17, 4096')
    a('s_lshr_b32 s16, s3, 1')
    a('s_lshl_b32 s18, s13, 1')
    a('s_add_u32 s16, s16, s18')
    a('s_lshl_b32 s16, s16, 15')
    a('s_and_b32 s18, s3, 1')
    a('s_lshl_b32 s18, s18, 8')
    a('s_add_u32 s16, s16, s18')
    a(f's_add_u32 s15, s16, {hx(O_[layer])}')
    BF = 8
    for s in range(16):
        a(f'buffer_load_dwordx4 v[{BF+4*s}:{BF+4*s+3}], v4, s[8:11], s15 offen offset:{2048*(s&1)}')
        if s & 1:
            a('s_add_u32 s15, s15, 4096')
    RS = 72
    a('s_lshl_b32 s18, s12, 12')
    a('s_add_u32 s16, s16, s18')
    a(f's_add_u32 s15, s16, {hx(X)}')
    a(f'buffer_load_dwordx4 v[{RS}:{RS+3}], v4, s[8:11], s15 offen')
    a(f'buffer_load_dwordx4 v[{RS+4}:{RS+7}], v4, s[8:11], s15 offen offset:2048')
    a.waitvm('w')
    a('s_barrier')
    AC = 80
    AR = 96
    seq = [(s, t) for s in range(16) for t in range(4)]

    def rd(idx):
        d = AR + 4 * (idx & 7)
        a(f'ds_read_b128 v[{d}:{d+3}], v1 offset:{idx*1024}')
    for idx in range(6):
        rd(idx)
    for idx, (s, t) in enumerate(seq):
        if idx + 6 < 64:
            rd(idx + 6)
        d = AR + 4 * (idx & 7)
        c = f'v[{AC+4*t}:{AC+4*t+3}]'
        a(f'v_mfma_f32_16x16x32_bf16 {c}, v[{d}:{d+3}], v[{BF+4*s}:{BF+4*s+3}], {c if s else 0}')
    a(f's_add_u32 s15, s16, {hx(X1_[layer])}')
    a(f's_mov_b32 s33, {hx(ONES)}')
    PK = 128
    for p in range(2):
        for d in range(4):
            r = AC + 8 * p + 2 * d
            unpack_add(a, r, r + 1, RS + 4 * p + d, 136)
            a(f'v_cvt_pk_bf16_f32 v{PK+4*p+d}, v{r}, v{r+1}')
        a(f'buffer_store_dwordx4 v[{PK+4*p}:{PK+4*p+3}], v4, s[8:11], s15 offen offset:{2048*p}')
    a('v_mov_b32 v140, 0')
    a('v_mov_b32 v141, 0')
    for d in range(8):
        a(f'v_dot2_f32_bf16 v140, v{PK+d}, s33, v140')
    for d in range(8):
        a(f'v_dot2_f32_bf16 v141, v{PK+d}, v{PK+d}, v141')
    a('v_permlane16_swap_b32 v140, v141')
    a('v_add_f32 v140, v140, v141')
    a('v_mov_b32 v141, v140')
    a('v_permlane32_swap_b32 v140, v141')
    a('v_add_f32 v140, v140, v141')
    a('v_and_b32 v5, 1, v3')
    a('v_lshlrev_b32 v5, 2, v5')
    a('v_lshl_add_u32 v5, v2, 3, v5')
    a('s_lshl_b32 s15, s13, 2')
    a('s_add_u32 s15, s15, s3')
    a('s_lshl_b32 s15, s15, 10')
    a('s_lshl_b32 s18, s12, 7')
    a('s_add_u32 s15, s15, s18')
    a(f's_add_u32 s15, s15, {hx(STB[layer])}')
    a('buffer_store_dword v140, v5, s[8:11], s15 offen')
    footer(a, name)
    return name, a.finish(), dict(vgpr=144, acc=0, lds=65536)


def gen_p3(layer):
    a = Asm()
    name = f'p3l{layer}_kernel'
    header(a, name)
    ws_prologue(a)
    a('s_and_b32 s12, s2, 15')
    a('s_lshr_b32 s13, s2, 4')
    NS = 4
    CST = NS * 32768
    a('s_mul_i32 s20, s12, 229376')
    a('s_lshl_b32 s21, s3, 13')
    a('s_add_u32 s20, s20, s21')
    a(f's_add_u32 s20, s20, {hx(WGU_F)}')

    def dma(T):
        for g in range(2):
            a(f's_add_u32 s22, s21, {(T % NS) * 32768 + g * 4096}')
            a('s_mov_b32 m0, s22')
            for j in range(4):
                a(f'buffer_load_dwordx4 v1, s[8:11], s20 offen offset:{1024*j} lds', tag=f'w{T}')
            a(f's_add_u32 s20, s20, {4096 if g == 0 else 32768 - 4096}')
    dma(0)
    a('s_lshl_b32 s14, s13, 2')
    a('s_add_u32 s14, s14, s3')
    a('s_lshl_b32 s15, s14, 15')
    a(f's_add_u32 s15, s15, {hx(X1_[layer])}')
    a('v_and_b32 v2, 31, v0')
    a('v_lshrrev_b32 v3, 5, v0')
    a('v_lshrrev_b32 v4, 4, v2')
    a('v_lshlrev_b32 v4, 10, v4')
    a('v_lshl_add_u32 v4, v3, 9, v4')
    a('v_and_b32 v5, 15, v2')
    a('v_lshl_add_u32 v4, v5, 3, v4')
    a('s_lshl_b32 s16, s14, 11')
    a(f's_add_u32 s16, s16, {hx(STB[layer])}')
    for j in range(4):
        a(f'buffer_load_dwordx2 v[{8+2*j}:{9+2*j}], v4, s[8:11], s16 offen offset:{128*j}')
    a('s_lshl_b32 s16, s3, 6')
    a('v_add_u32 v5, s16, v0')
    a('v_lshrrev_b32 v6, 5, v5')
    a('v_lshlrev_b32 v6, 6, v6')
    a('v_and_b32 v7, 15, v5')
    a('v_lshl_add_u32 v6, v7, 2, v6')
    a('v_bfe_u32 v7, v5, 4, 1')
    a(f'v_mul_u32_u24 v7, {CS_U - CS_G}, v7')
    a('v_add_u32 v6, v6, v7')
    a('s_mul_i32 s16, s12, 448')
    a(f's_add_u32 s16, s16, {hx(CS_G)}')
    a('buffer_load_dword v16, v6, s[8:11], s16 offen')
    for s in range(32):
        a(f'buffer_load_dwordx4 a[{4*s}:{4*s+3}], v1, s[8:11], s15 offen offset:{1024*(s&3)}')
        if (s & 3) == 3 and s < 31:
            a('s_add_u32 s15, s15, 4096')
    dma(1)
    dma(2)
    a('v_lshlrev_b32 v5, 2, v5')
    a(f'ds_write_b32 v5, v16 offset:{CST - 65536}') if False else None
    a(f'v_add_u32 v5, {CST}, v5')
    a('ds_write_b32 v5, v16')
    a(f's_mov_b32 s24, {hx(f2u(1e-5))}')
    for j in range(1, 4):
        a(f'v_add_f32 v8, v8, v{8+2*j}')
        a(f'v_add_f32 v9, v9, v{9+2*j}')
    a('v_permlane32_swap_b32 v8, v9')
    a('v_add_f32 v8, v8, v9')
    a('v_mov_b32 v9, v8')
    a('v_permlane32_swap_b32 v8, v9')
    stat_finalize(a, 8, 9, 10, 24)
    k0 = -2.0 * math.sqrt(2.0 / math.pi) * math.log2(math.e)
    k1 = k0 * 0.044715
    C0, C1, IA2 = 12, 13, 14
    a('v_mul_f32 v10, v8, v8')
    a(f'v_mul_f32 v{C0}, {hx(f2u(k0))}, v8')
    a('v_mul_f32 v11, v10, v8')
    a(f'v_mul_f32 v{C1}, {hx(f2u(k1))}, v11')
    a(f'v_rcp_f32 v{IA2}, v10')
    a('v_lshlrev_b32 v6, 5, v3')
    a(f'v_add_u32 v6, {CST}, v6')
    a('v_add_u32 v7, 65536, v1')
    a('s_mul_i32 s16, s14, 114688')
    a('s_mul_i32 s17, s12, 7168')
    a('s_add_u32 s16, s16, s17')
    a(f's_add_u32 s16, s16, {hx(H_[layer])}')
    ACC = [16, 32]
    AR = 48
    CSR = 80
    TM = 96
    HP = 112

    def rd(T, s):
        d = AR + 4 * (s & 7)
        off = (T % NS) * 32768 + s * 1024
        base = 'v1' if off < 65536 else 'v7'
        a(f'ds_read_b128 v[{d}:{d+3}], {base} offset:{off & 65535}')

    def epilogue(T):
        ac = ACC[T & 1]
        for e in range(8):
            G, U, t = ac + e, ac + 8 + e, TM + e
            a(f'v_mul_f32 v{t}, v{G}, v{G}')
            a(f'v_fma_f32 v{t}, v{t}, v{C1}, v{C0}')
            a(f'v_mul_f32 v{t}, v{t}, v{G}')
            a(f'v_exp_f32 v{t}, v{t}')
            a(f'v_mul_f32 v{G}, v{G}, v{U}')
            a(f'v_fma_f32 v{t}, v{t}, v{IA2}, v{IA2}')
            a(f'v_rcp_f32 v{t}, v{t}')
            a(f'v_mul_f32 v{G}, v{G}, v{t}')
        for d in range(4):
            a(f'v_cvt_pk_bf16_f32 v{HP+d}, v{ac+2*d}, v{ac+2*d+1}')
        a(f'buffer_store_dwordx4 v[{HP}:{HP+3}], v1, s[8:11], s16 offen offset:{1024*(T&3)}')
        if T == 3:
            a('s_add_u32 s16, s16, 4096')

    for T in range(7):
        a.waitvm(f'w{T}')
        a('s_waitcnt lgkmcnt(0)')
        a('s_barrier')
        if T + 3 < 7:
            dma(T + 3)
        ac = ACC[T & 1]
        for i in range(4):
            a(f'ds_read_b128 v[{CSR+4*i}:{CSR+4*i+3}], v6 offset:{T*128 + (i>>1)*64 + (i&1)*16}')
        for s in range(6):
            rd(T, s)
        for e in range(16):
            a(f'v_mul_f32 v{ac+e}, v9, v{CSR+e}')
        for s in range(32):
            if s + 6 < 32:
                rd(T, s + 6)
            d = AR + 4 * (s & 7)
            a(f'v_mfma_f32_32x32x16_bf16 v[{ac}:{ac+15}], v[{d}:{d+3}], a[{4*s}:{4*s+3}], v[{ac}:{ac+15}]')
        epilogue(T)
    footer(a, name)
    return name, a.finish(), dict(vgpr=120, acc=128, lds=CST + 1024)


def gen_p4(layer):
    a = Asm()
    name = f'p4l{layer}_kernel'
    header(a, name)
    if layer == 1:
        a('s_load_dwordx2 s[6:7], s[0:1], 56')
    ws_prologue(a)
    if layer == 1:
        srd(a, 28, 6, 2048 * 1024)
    a('s_and_b32 s12, s2, 7')
    a('s_lshr_b32 s13, s2, 3')
    a('s_and_b32 s14, s3, 1')
    a('s_lshr_b32 s15, s3, 1')
    a('s_mul_i32 s16, s3, 28672')
    a('s_lshl_b32 s17, s12, 1')
    a('s_add_u32 s17, s17, s14')
    a('s_xor_b32 s18, s17, 1')
    a('s_lshl_b32 s19, s13, 1')
    a('s_add_u32 s19, s19, s15')
    a('s_xor_b32 s20, s19, 1')
    NB = 16
    BR = 8
    ACC = 72
    a('s_mul_i32 s21, s20, 114688')
    a('s_add_u32 s21, s21, s16')
    a(f's_add_u32 s21, s21, {hx(H_[layer])}')
    a('s_mul_i32 s22, s19, 114688')
    a('s_add_u32 s22, s22, s16')
    a(f's_add_u32 s22, s22, {hx(H_[layer])}')
    a('s_mul_i32 s23, s17, 114688')
    a('s_add_u32 s23, s23, s16')
    a(f's_add_u32 s23, s23, {hx(WD_F)}')
    a('s_mul_i32 s24, s18, 114688')
    a('s_add_u32 s24, s24, s16')
    a(f's_add_u32 s24, s24, {hx(WD_F)}')
    seq = [(1, s) for s in range(28)] + [(0, s) for s in range(28)]

    def ldB(idx):
        t, s = seq[idx]
        d = BR + 4 * (idx % NB)
        so = 's21' if t == 1 else 's22'
        a(f'buffer_load_dwordx4 v[{d}:{d+3}], v1, s[8:11], {so} offen offset:{1024*(s&3)}')
        if (s & 3) == 3:
            a(f's_add_u32 {so}, {so}, 4096')

    def ldA(s):
        for f in range(2):
            so = 's23' if f == 0 else 's24'
            r = (2 * s + f) * 4
            a(f'buffer_load_dwordx4 a[{r}:{r+3}], v1, s[8:11], {so} offen offset:{1024*(s&3)}')
            if (s & 3) == 3:
                a(f's_add_u32 {so}, {so}, 4096')
    PF = 14
    for s in range(28):
        ldA(s)
        if s < PF:
            ldB(s)
    RS = 136
    a('v_and_b32 v2, 31, v0')
    a('v_lshrrev_b32 v3, 5, v0')
    a('v_lshlrev_b32 v4, 10, v3')
    a('v_lshl_add_u32 v4, v2, 4, v4')
    a('s_lshl_b32 s25, s19, 15')
    a('s_lshl_b32 s26, s17, 11')
    a('s_add_u32 s25, s25, s26')
    a(f's_add_u32 s26, s25, {hx(X1_[layer])}')
    for u in range(1, 4):
        a(f's_xor_b32 s27, s3, {u}')
        a('s_mul_i32 s27, s27, 12288')
        a(f's_add_u32 s27, s27, {(u-1)*4096}')
        a(f'v_add_u32 v{4+u}, s27, v1')
    a('s_mul_i32 s27, s3, 12288')
    a('v_add_u32 v144, s27, v1')

    def spill(u):
        for i in range(4):
            r = ACC + 16 * u + 4 * i
            a(f'ds_write_b128 v{4+u}, v[{r}:{r+3}] offset:{1024*i}')
    for idx, (t, s) in enumerate(seq):
        if idx + PF < 56:
            ldB(idx + PF)
        if idx == 30:
            a(f'buffer_load_dwordx4 v[{RS}:{RS+3}], v4, s[8:11], s26 offen')
            a(f'buffer_load_dwordx4 v[{RS+4}:{RS+7}], v4, s[8:11], s26 offen offset:512')
        d = BR + 4 * (idx % NB)
        for f in (1, 0):
            c = ACC + 16 * (2 * t + f)
            r = (2 * s + f) * 4
            a(f'v_mfma_f32_32x32x16_bf16 v[{c}:{c+15}], a[{r}:{r+3}], v[{d}:{d+3}], {f"v[{c}:{c+15}]" if s else 0}')
        if idx == 34:
            spill(2)
        if idx == 40:
            spill(3)
    spill(1)
    a('s_waitcnt lgkmcnt(0)')
    a('s_barrier')
    PR = 8
    for u in range(3):
        for i in range(4):
            r = PR + 16 * u + 4 * i
            a(f'ds_read_b128 v[{r}:{r+3}], v144 offset:{4096*u + 1024*i}')
    for d in range(8):
        unpack_add(a, ACC + 2 * d, ACC + 2 * d + 1, RS + d, 145)
    for u in range(3):
        for e in range(16):
            a(f'v_add_f32 v{ACC+e}, v{ACC+e}, v{PR+16*u+e}')
    PK = 148
    for d in range(8):
        a(f'v_cvt_pk_bf16_f32 v{PK+d}, v{ACC+2*d}, v{ACC+2*d+1}')
    if layer == 0:
        a(f's_add_u32 s26, s25, {hx(X2)}')
        a(f'buffer_store_dwordx4 v[{PK}:{PK+3}], v4, s[8:11], s26 offen')
        a(f'buffer_store_dwordx4 v[{PK+4}:{PK+7}], v4, s[8:11], s26 offen offset:512')
        a(f's_mov_b32 s33, {hx(ONES)}')
        a('v_mov_b32 v140, 0')
        a('v_mov_b32 v141, 0')
        for d in range(8):
            a(f'v_dot2_f32_bf16 v140, v{PK+d}, s33, v140')
        for d in range(8):
            a(f'v_dot2_f32_bf16 v141, v{PK+d}, v{PK+d}, v141')
        a('v_permlane32_swap_b32 v140, v141')
        a('v_add_f32 v140, v140, v141')
        a('v_lshlrev_b32 v5, 2, v3')
        a('v_lshl_add_u32 v5, v2, 3, v5')
        a('s_lshl_b32 s26, s19, 12')
        a('s_lshl_b32 s27, s17, 8')
        a('s_add_u32 s26, s26, s27')
        a(f's_add_u32 s26, s26, {hx(STA[1])}')
        a('buffer_store_dword v140, v5, s[8:11], s26 offen')
    else:
        a('v_lshlrev_b32 v5, 5, v3')
        a('v_lshl_add_u32 v5, v2, 10, v5')
        a('s_lshl_b32 s26, s19, 15')
        a('s_lshl_b32 s27, s17, 6')
        a('s_add_u32 s26, s26, s27')
        a(f'buffer_store_dwordx4 v[{PK}:{PK+3}], v5, s[28:31], s26 offen')
        a(f'buffer_store_dwordx4 v[{PK+4}:{PK+7}], v5, s[28:31], s26 offen offset:16')
    footer(a, name)
    return name, a.finish(), dict(vgpr=160, acc=224, lds=49152)


def assemble(kernels, launches):
    out = []
    ref = open('cdna_kernels/' + NAME + '.s.ref').read().split('\n')
    for line in ref:
        if line.startswith('; Override') or line.startswith('; grid=') or '@launch' in line:
            continue
        if line.startswith(';'):
            out.append(line)
        else:
            break
    info = {k[0]: k[2] for k in kernels}
    for n in launches:
        out.append(f'; @launch kernel={n} grid=(256,1,1) block=(256,1,1) lds={info[n]["lds"]}')
    out.append('.amdgcn_target "amdgcn-amd-amdhsa--gfx950"')
    out.append('.text')
    for n, body, _ in kernels:
        out.append(f'.globl {n}')
        out.append(body)
    out.append('.section .rodata,"a"')
    for n, _, inf in kernels:
        vg = (inf['vgpr'] + 3) // 4 * 4
        out.append('.p2align 6')
        out.append(f'.amdhsa_kernel {n}')
        out.append(f'  .amdhsa_next_free_vgpr {vg + inf["acc"] if inf["acc"] != inf["vgpr"] or True else vg}')
        out.append('  .amdhsa_next_free_sgpr 96')
        out.append(f'  .amdhsa_accum_offset {vg}')
        out.append('  .amdhsa_group_segment_fixed_size 0')
        out.append('  .amdhsa_kernarg_size 80')
        out.append('  .amdhsa_user_sgpr_count 2')
        out.append('  .amdhsa_user_sgpr_kernarg_segment_ptr 1')
        out.append('  .amdhsa_system_sgpr_workgroup_id_x 1')
        out.append('  .amdhsa_float_denorm_mode_32 3')
        out.append('.end_amdhsa_kernel')
    return '\n'.join(out) + '\n'


def main():
    ks = [gen_p0()]
    ks[0][2]['acc'] = 0
    for l in range(2):
        ks += [gen_p1(l), gen_p2(l), gen_p3(l), gen_p4(l)]
    text = assemble(ks, [k[0] for k in ks])
    path = sys.argv[1] if len(sys.argv) > 1 else 'v1.s'
    open(path, 'w').write(text)
    print('wrote', path, len(text), 'bytes')


if __name__ == '__main__':
    main()
```

```python
import sys
import gen1 as G
from asmlib import Asm
n = int(sys.argv[1])
ks = [G.gen_p0()]
ks[0][2]['acc'] = 0
for l in range(2):
    ks += [G.gen_p1(l), G.gen_p2(l), G.gen_p3(l), G.gen_p4(l)]
a = Asm()
G.header(a, 'nop_kernel'); G.footer(a, 'nop_kernel')
names = [k[0] for k in ks]
ks.append(('nop_kernel', a.finish(), dict(vgpr=8, acc=0, lds=0)))
open(sys.argv[2], 'w').write(G.assemble(ks, names + ['nop_kernel'] * n))
```

```python
import re

REG_RE = re.compile(r'^(-|abs\()?([vas])(\d+)\)?$')
RNG_RE = re.compile(r'^(-)?([vas])\[(\d+):(\d+)\]$')

TRANS = ('v_exp_f32', 'v_log_f32', 'v_rcp_f32', 'v_rsq_f32', 'v_sqrt_f32', 'v_sin_f32', 'v_cos_f32')


def parse_reg(tok):
    tok = tok.strip()
    m = REG_RE.match(tok)
    if m:
        return [(m.group(2), int(m.group(3)))]
    m = RNG_RE.match(tok)
    if m:
        return [(m.group(2), i) for i in range(int(m.group(3)), int(m.group(4)) + 1)]
    if tok == 'vcc':
        return [('s', 'vcc_lo'), ('s', 'vcc_hi')]
    if tok in ('vcc_lo', 'vcc_hi'):
        return [('s', tok)]
    if tok == 'exec':
        return [('s', 'exec_lo'), ('s', 'exec_hi')]
    if tok in ('exec_lo', 'exec_hi'):
        return [('s', tok)]
    if tok == 'm0':
        return [('s', 'm0')]
    return []


class Ins:
    __slots__ = ('text', 'op', 'kind', 'defs', 'uses', 'passes', 'srcc', 'srcab', 'tag', 'wide_store',
                 'dpp', 'label', 'target', 'waittags', 'lds_dma', 'store_data', 'note')

    def __init__(self, text, tag=None):
        self.text = text
        self.tag = tag
        self.defs = set()
        self.uses = set()
        self.passes = 0
        self.srcc = set()
        self.srcab = set()
        self.wide_store = False
        self.store_data = set()
        self.dpp = False
        self.label = None
        self.target = None
        self.waittags = None
        self.lds_dma = False
        self.note = None
        t = text.split(';')[0].strip()
        if t.endswith(':'):
            self.kind = 'label'
            self.op = ''
            self.label = t[:-1]
            return
        if t.startswith('.') or t == '':
            self.kind = 'directive'
            self.op = t
            return
        parts = t.split(None, 1)
        op = parts[0]
        self.op = op
        rest = parts[1] if len(parts) > 1 else ''
        ops = []
        depth = 0
        cur = ''
        for ch in rest:
            if ch == '[' or ch == '(':
                depth += 1
            if ch == ']' or ch == ')':
                depth -= 1
            if ch == ',' and depth == 0:
                ops.append(cur.strip())
                cur = ''
            else:
                cur += ch
        if cur.strip():
            ops.append(cur.strip())
        mods = ''
        if ops:
            last = ops[-1].split(None, 1)
            if len(last) > 1:
                ops[-1] = last[0]
                mods = last[1]
        regs = [parse_reg(o) for o in ops]
        base = op.replace('_e32', '').replace('_e64', '')

        def allr(lst):
            s = set()
            for r in lst:
                s.update(r)
            return s

        if op.startswith('v_mfma'):
            self.kind = 'mfma'
            self.passes = 8 if '32x32' in op else 4
            self.defs = set(regs[0])
            self.srcab = set(regs[1]) | set(regs[2])
            self.srcc = set(regs[3])
            self.uses = self.srcab | self.srcc
        elif op.startswith('buffer_') or op.startswith('global_'):
            self.kind = 'vmem'
            if op in ('buffer_inv', 'buffer_wbl2'):
                pass
            elif 'load' in op and (' lds' in (' ' + mods) or '_lds_' in op):
                self.lds_dma = True
                self.uses = allr(regs) | {('s', 'm0')}
            elif 'load' in op:
                self.defs = set(regs[0])
                self.uses = allr(regs[1:])
            elif 'atomic' in op:
                self.uses = allr(regs)
                if 'sc0' in mods:
                    self.defs = set(regs[0])
            else:
                self.uses = allr(regs)
                if op.startswith('buffer_'):
                    self.store_data = set(regs[0])
                else:
                    self.store_data = set(regs[1])
                if 'x4' in op or 'x3' in op:
                    self.wide_store = True
        elif op.startswith('ds_'):
            self.kind = 'ds'
            if op.startswith('ds_read') or 'permute' in op or 'swizzle' in op:
                self.defs = set(regs[0])
                self.uses = allr(regs[1:])
            else:
                self.uses = allr(regs)
        elif op.startswith('s_load') or op.startswith('s_buffer_load') or op in ('s_memtime', 's_memrealtime'):
            self.kind = 'smem'
            self.defs = set(regs[0])
            self.uses = allr(regs[1:])
        elif op == 's_waitcnt':
            self.kind = 'wait'
        elif op == 's_nop':
            self.kind = 'nop'
        elif op in ('s_barrier', 's_endpgm', 's_setprio', 's_sleep'):
            self.kind = 'sop'
        elif op.startswith('s_branch') or op.startswith('s_cbranch'):
            self.kind = 'branch'
            self.target = ops[0]
        elif op.startswith('s_'):
            self.kind = 'salu'
            if op.startswith('s_cmp'):
                self.uses = allr(regs)
            else:
                self.defs = set(regs[0])
                self.uses = allr(regs[1:])
                if 'saveexec' in op:
                    self.defs |= {('s', 'exec_lo'), ('s', 'exec_hi')}
                if op in ('s_addk_i32', 's_mulk_i32'):
                    self.uses |= set(regs[0])
        elif op.startswith('v_'):
            self.kind = 'valu'
            if 'dpp' in op or 'row_' in mods or 'quad_perm' in mods:
                self.dpp = True
            if base.startswith('v_permlane') and 'swap' in base:
                self.defs = set(regs[0]) | set(regs[1])
                self.uses = set(self.defs)
            elif base in ('v_add_co_u32', 'v_sub_co_u32', 'v_addc_co_u32', 'v_subb_co_u32'):
                self.defs = set(regs[0]) | set(regs[1])
                self.uses = allr(regs[2:])
            else:
                self.defs = set(regs[0])
                self.uses = allr(regs[1:])
                if base.startswith('v_fmac') or base.startswith('v_dot2c') or base.startswith('v_pk_fmac') or self.dpp \
                        or base == 'v_writelane_b32':
                    self.uses |= set(regs[0])
                if base.startswith('v_cmpx'):
                    self.defs |= {('s', 'exec_lo'), ('s', 'exec_hi')}
        else:
            raise ValueError('unknown instruction: ' + text)

    def states(self):
        if self.kind in ('label', 'directive'):
            return 0
        if self.kind == 'nop':
            return int(self.text.split()[1], 0) + 1
        return 1


def is_v(r):
    return r[0] in ('v', 'a')


def need_states(p, c):
    n = 0
    base_c = c.op.replace('_e32', '').replace('_e64', '')
    base_p = p.op.replace('_e32', '').replace('_e64', '')
    if p.kind == 'valu':
        pv = {r for r in p.defs if is_v(r)}
        ps = {r for r in p.defs if not is_v(r)}
        if c.kind == 'mfma' and pv & c.uses:
            n = max(n, 2)
        if c.kind == 'valu':
            if base_c.startswith('v_permlane') and pv & c.uses:
                n = max(n, 2)
            if c.dpp and pv & c.uses:
                n = max(n, 2)
            if base_c in ('v_readlane_b32', 'v_readfirstlane_b32') and pv & c.uses:
                n = max(n, 1)
            if base_p in TRANS and base_c not in TRANS and pv & c.uses:
                n = max(n, 1)
            if base_p.startswith('v_dot2') and (pv & (c.uses | c.defs)):
                same_chain = (base_p == base_c) and (p.defs == c.defs)
                if not same_chain:
                    n = max(n, 3)
            if ps & c.uses:
                n = max(n, 4 if base_c in ('v_readlane_b32', 'v_writelane_b32') else 2)
            if ('s', 'exec_lo') in ps:
                n = max(n, 5 if c.dpp else 4)
            if 'sdwa' in p.op or 'op_sel' in p.text:
                if pv & (c.uses | c.defs):
                    n = max(n, 1)
        if base_p.startswith('v_dot2') and c.kind in ('vmem', 'ds', 'mfma') and pv & (c.uses | c.defs):
            n = max(n, 3)
        if c.kind == 'mfma' and ('s', 'exec_lo') in ps:
            n = max(n, 4)
        if c.kind == 'vmem' and ps & c.uses:
            n = max(n, 5)
        if c.kind in ('salu', 'branch') and ps & c.uses:
            n = max(n, 1)
    if p.kind == 'mfma':
        ps8 = p.passes == 8
        if c.kind == 'mfma':
            if p.defs & c.srcc:
                if not (p.defs == c.srcc and p.passes == c.passes):
                    n = max(n, 10 if ps8 else 6)
            if p.defs & c.srcab:
                n = max(n, 12 if ps8 else 8)
            if (p.defs & c.defs) and not (p.defs & c.srcc):
                n = max(n, 12 if ps8 else 8)
        elif c.kind in ('valu', 'vmem', 'ds'):
            if p.defs & (c.uses | c.defs):
                n = max(n, 12 if ps8 else 8)
            if c.kind == 'valu' and p.srcc & c.defs:
                n = max(n, 7 if ps8 else 3)
    if p.kind == 'salu':
        if ('s', 'm0') in p.defs and c.kind == 'vmem' and c.lds_dma:
            n = max(n, 1)
    if p.kind == 'vmem' and p.wide_store:
        if c.kind == 'valu' and p.store_data & c.defs:
            n = max(n, 2)
        elif c.kind in ('mfma', 'ds', 'vmem') and p.store_data & c.defs:
            n = max(n, 1)
    return n


class Group:
    kind = 'group'

    def __init__(self, ins):
        self.ins = list(ins.ins if hasattr(ins, 'ins') else ins)


def flatten(lst):
    out = []
    for i in lst:
        if i.kind == 'group':
            out.extend(flatten(i.ins))
        else:
            out.append(i)
    return out


def cost(i):
    if i.kind == 'group':
        return min(sum(cost(x) for x in i.ins), 40)
    if i.kind == 'valu':
        return 8 if i.op.replace('_e32', '') in TRANS else 4
    if i.kind == 'vmem':
        return 16
    if i.kind in ('label', 'directive'):
        return 0
    if i.kind == 'salu':
        return 2
    if i.kind == 'mfma':
        return 8
    if i.kind == 'nop':
        return 4 * i.states()
    return 4


class Asm:
    def __init__(self):
        self.ins = []

    def __call__(self, text, tag=None, raw=False):
        for line in text.split('\n'):
            line = line.strip()
            if line == '' or line.startswith(';'):
                continue
            i = Ins(line, tag)
            if raw:
                i.note = 'raw'
            self.ins.append(i)
        return self.ins[-1] if self.ins else None

    def extend(self, other):
        self.ins.extend(other.ins if isinstance(other, Asm) else other)

    def merge(self, primary, secondary, lo=0, hi=None, cap=None):
        P = primary.ins if isinstance(primary, Asm) else primary
        S = list(secondary.ins if isinstance(secondary, Asm) else secondary)
        nm = sum(1 for i in P if i.kind == 'mfma')
        if hi is None:
            hi = nm
        hi = min(hi, nm)
        total = sum(cost(i) for i in S)
        n = max(hi - lo, 1)
        done = 0.0
        k = 0
        m = -1
        idx = 0
        while idx < len(P):
            i = P[idx]
            self.ins.append(i)
            idx += 1
            if i.kind == 'mfma':
                m += 1
                used = 0
                while idx < len(P) and P[idx].kind not in ('mfma', 'wait', 'sop', 'label', 'branch'):
                    self.ins.append(P[idx])
                    used += cost(P[idx])
                    idx += 1
                j = idx
                while j < len(P) and P[j].kind != 'mfma':
                    used += cost(P[j])
                    j += 1
                if lo <= m < hi:
                    quota = total * (m - lo + 1) / n
                    while k < len(S):
                        c = cost(S[k])
                        if m == hi - 1:
                            ok = True
                        elif cap is None:
                            ok = done + c / 2 <= quota
                        else:
                            fits = used + c <= cap
                            ok = (fits and done < quota + cap / 2) or (done + c <= quota - cap / 2)
                        if not ok:
                            break
                        self.ins.append(S[k])
                        done += c
                        used += c
                        k += 1
        while k < len(S):
            self.ins.append(S[k])
            k += 1

    def waitvm(self, *tags):
        i = Ins('s_waitcnt vmcnt(0)')
        i.waittags = ('vm', set(tags))
        self.ins.append(i)

    def waitlgkm(self, *tags):
        i = Ins('s_waitcnt lgkmcnt(0)')
        i.waittags = ('lgkm', set(tags))
        self.ins.append(i)

    def fence(self):
        self('s_waitcnt vmcnt(0) lgkmcnt(0)')

    def auto_waits(self):
        out = []
        vm = []
        lg = []
        for i in self.ins:
            if i.note == 'raw':
                out.append(i)
                continue
            if i.kind == 'wait':
                if i.waittags:
                    which, tags = i.waittags
                    q = vm if which == 'vm' else lg
                    idx = -1
                    for k, o in enumerate(q):
                        if o.tag in tags:
                            idx = k
                    if idx < 0:
                        continue
                    if which == 'lgkm' and any(o.kind == 'smem' for o in q):
                        cnt = 0
                    else:
                        cnt = len(q) - 1 - idx
                    mx = 63 if which == 'vm' else 15
                    cnt = min(cnt, mx)
                    j = Ins('s_waitcnt %s(%d)' % ('vmcnt' if which == 'vm' else 'lgkmcnt', cnt))
                    out.append(j)
                    del q[:len(q) - cnt]
                    continue
                m = re.search(r'vmcnt\((\d+)\)', i.text)
                if m:
                    c = int(m.group(1))
                    if len(vm) > c:
                        del vm[:len(vm) - c]
                m = re.search(r'lgkmcnt\((\d+)\)', i.text)
                if m:
                    c = int(m.group(1))
                    if len(lg) > c:
                        del lg[:len(lg) - c]
                out.append(i)
                continue
            touched = i.uses | i.defs
            needvm = None
            for k, o in enumerate(vm):
                if o.defs & touched and not (o.note == 'touch' and i.note == 'touch'):
                    needvm = k
            needlg = None
            for k, o in enumerate(lg):
                if o.defs & touched:
                    needlg = k
            w = []
            if needvm is not None:
                c = min(len(vm) - 1 - needvm, 63)
                w.append('vmcnt(%d)' % c)
                del vm[:len(vm) - c]
            if needlg is not None:
                if any(o.kind == 'smem' for o in lg):
                    c = 0
                else:
                    c = min(len(lg) - 1 - needlg, 15)
                w.append('lgkmcnt(%d)' % c)
                del lg[:len(lg) - c]
            if w:
                out.append(Ins('s_waitcnt ' + ' '.join(w)))
            out.append(i)
            if i.kind == 'vmem':
                vm.append(i)
                assert len(vm) <= 64 + 1000
            elif i.kind in ('ds', 'smem'):
                lg.append(i)
        self.ins = out

    def check_counters(self):
        pass

    def auto_nops(self):
        out = []

        def pad_for(window, c):
            need = 0
            dist = 0
            for p in reversed(window):
                if dist >= 20:
                    break
                if p.kind not in ('label', 'directive'):
                    n = need_states(p, c)
                    if n - dist > need:
                        need = n - dist
                dist += p.states()
            return need

        for c in self.ins:
            if c.kind not in ('label', 'directive', 'nop', 'wait'):
                need = pad_for(out[-40:], c)
                while need > 0:
                    k = min(need, 16)
                    out.append(Ins('s_nop %d' % (k - 1)))
                    need -= k
            out.append(c)
        labels = {i.label: k for k, i in enumerate(out) if i.kind == 'label'}
        k = 0
        while k < len(out):
            b = out[k]
            if b.kind == 'branch' and b.target in labels:
                t = labels[b.target]
                window = out[max(0, k - 40):k + 1]
                worst = 0
                sim = list(window)
                dist = 0
                for c in out[t:t + 40]:
                    if c.kind not in ('label', 'directive', 'nop', 'wait'):
                        worst = max(worst, pad_for(sim, c))
                    sim.append(c)
                    dist += c.states()
                    if dist >= 20:
                        break
                if worst > 0:
                    out.insert(k, Ins('s_nop %d' % (worst - 1)))
                    labels = {i.label: kk for kk, i in enumerate(out) if i.kind == 'label'}
                    k += 1
            k += 1
        self.ins = out

    def group(self, other):
        self.ins.append(Group(other))

    def finish(self):
        self.ins = flatten(self.ins)
        self.auto_waits()
        self.auto_nops()
        return self.text()

    def text(self):
        lines = []
        for i in self.ins:
            if i.kind in ('label', 'directive'):
                lines.append(i.text)
            else:
                lines.append('    ' + i.text)
        return '\n'.join(lines) + '\n'


def vr(n, cnt=1):
    return 'v%d' % n if cnt == 1 else 'v[%d:%d]' % (n, n + cnt - 1)


def ar(n, cnt=1):
    return 'a%d' % n if cnt == 1 else 'a[%d:%d]' % (n, n + cnt - 1)


def sr(n, cnt=1):
    return 's%d' % n if cnt == 1 else 's[%d:%d]' % (n, n + cnt - 1)
```

```python
import sys
import math
import struct
sys.path.insert(0, 'dev')
from asmlib import Asm, vr, ar, sr

NAME = 'interleave_layers__sliding_local_dilated__glu_gated_geglu__prompt'

WQKV_F = 0x000000
WO_F = 0x180000
WGU_F = 0x200000
WD_F = 0x580000
CS_QKV = 0x740000
CS_G = 0x742000
CS_U = 0x744000
X0 = 0x800000
O_ = [0xA00000, 0x1000000]
X1_ = [0xC00000, 0x1200000]
X2 = 0xE00000
H_ = [0x1400000, 0x1B00000]
STA = [0x2200000, 0x2240000]
STB = [0x2280000, 0x22A0000]
WS_BYTES = 0x10000000

ONES = 0x3f803f80
STAMPS = 0x3000000
STAMP_ON = False


def stamp(a, k, real=False):
    if STAMP_ON:
        a(f's_{"memreal" if real else "mem"}time s[{60+2*k}:{61+2*k}]')
        a('s_waitcnt lgkmcnt(0)')


def stamp_flush(a, kid, n):
    if not STAMP_ON:
        return
    a('s_lshl_b32 s58, s2, 2')
    a('s_add_u32 s58, s58, s3')
    a('s_lshl_b32 s58, s58, 7')
    a(f's_add_u32 s58, s58, {hx(STAMPS + kid * 0x20000)}')
    a('v_mov_b32 v1, 0')
    for k in range(n):
        a(f'v_mov_b32 v2, s{60+2*k}')
        a(f'v_mov_b32 v3, s{61+2*k}')
        a(f'buffer_store_dwordx2 v[2:3], v1, s[8:11], s58 offen offset:{8*k}')


def f2u(x):
    return struct.unpack('<I', struct.pack('<f', x))[0]


def hx(x):
    return '0x%x' % (x & 0xffffffff)


def srd(a, d, base, nbytes):
    a(f's_mov_b32 s{d}, s{base}')
    a(f's_mov_b32 s{d+1}, s{base+1}')
    a(f's_mov_b32 s{d+2}, {hx(nbytes)}')
    a(f's_mov_b32 s{d+3}, 0x00020000')


def header(a, name, nwg=256):
    a(f'.p2align 8')
    a(f'.type {name},@function')
    a(f'{name}:')
    a(f's_cmp_ge_u32 s2, {nwg}')
    a(f's_cbranch_scc1 L_end_{name}')


def footer(a, name):
    a(f'L_end_{name}:')
    a('s_endpgm')


def ws_prologue(a):
    a('s_load_dwordx2 s[4:5], s[0:1], 72')
    a('v_lshrrev_b32 v2, 6, v0')
    a('v_and_b32 v0, 63, v0')
    a('v_readfirstlane_b32 s3, v2')
    a('v_lshlrev_b32 v1, 4, v0')
    srd(a, 8, 4, WS_BYTES)


def gen_p0():
    a = Asm()
    name = 'p0_kernel'
    header(a, name)
    a('s_load_dwordx4 s[12:15], s[0:1], 0')
    a('s_load_dwordx2 s[16:17], s[0:1], 16')
    a('s_load_dwordx4 s[20:23], s[0:1], 32')
    a('s_load_dwordx2 s[24:25], s[0:1], 48')
    a('s_load_dwordx2 s[4:5], s[0:1], 72')
    a('s_waitcnt lgkmcnt(0)')
    srd(a, 8, 4, WS_BYTES)
    srd(a, 28, 12, 2048 * 1024)
    a('v_and_b32 v1, 7, v0')
    a('v_lshrrev_b32 v2, 3, v0')
    a('s_lshl_b32 s3, s2, 13')
    a('v_lshlrev_b32 v3, 10, v1')
    a('v_lshl_add_u32 v3, v2, 4, v3')
    a('buffer_load_dwordx4 v[8:11], v3, s[28:31], s3 offen')
    a('buffer_load_dwordx4 v[12:15], v3, s[28:31], s3 offen offset:512')
    a('s_lshr_b32 s6, s2, 2')
    a('s_and_b32 s7, s2, 3')
    a('s_lshl_b32 s26, s6, 15')
    a('s_lshl_b32 s27, s7, 7')
    a('s_add_u32 s26, s26, s27')
    a(f's_add_u32 s26, s26, {hx(X0)}')
    a('s_add_u32 s27, s26, 16384')
    a('v_lshlrev_b32 v4, 9, v2')
    a('v_lshl_add_u32 v4, v1, 4, v4')
    a('buffer_store_dwordx4 v[8:11], v4, s[8:11], s26 offen')
    a('buffer_store_dwordx4 v[12:15], v4, s[8:11], s27 offen')
    a(f's_mov_b32 s33, {hx(ONES)}')
    for g, base in enumerate((8, 12)):
        S, Q = 16 + 2 * g, 17 + 2 * g
        a(f'v_mov_b32 v{S}, 0')
        a(f'v_mov_b32 v{Q}, 0')
        for d in range(4):
            a(f'v_dot2_f32_bf16 v{S}, v{base+d}, s33, v{S}')
        for d in range(4):
            a(f'v_dot2_f32_bf16 v{Q}, v{base+d}, v{base+d}, v{Q}')
    for r in range(16, 20):
        a(f'v_add_f32_dpp v{r+4}, v{r}, v{r} row_ror:8 row_mask:0xf bank_mask:0xf')
    a('v_permlane16_swap_b32 v20, v21')
    a('v_permlane16_swap_b32 v22, v23')
    a('v_add_f32 v20, v20, v21')
    a('v_add_f32 v22, v22, v23')
    a('v_lshrrev_b32 v5, 5, v0')
    a('v_lshlrev_b32 v5, 8, v5')
    a('v_lshl_add_u32 v5, v1, 3, v5')
    a('v_bfe_u32 v6, v0, 4, 1')
    a('v_lshl_add_u32 v5, v6, 2, v5')
    a('s_lshl_b32 s26, s6, 12')
    a('s_lshl_b32 s27, s7, 6')
    a('s_add_u32 s26, s26, s27')
    a(f's_add_u32 s26, s26, {hx(STA[0])}')
    a('buffer_store_dword v20, v5, s[8:11], s26 offen')
    a('buffer_store_dword v22, v5, s[8:11], s26 offen offset:2048')
    a('s_cmp_ge_u32 s2, 240')
    a(f's_cbranch_scc1 L_end_{name}')
    a('v_and_b32 v1, 3, v0')
    a('v_lshrrev_b32 v2, 2, v0')
    a('s_mov_b32 s39, 64')
    a('s_cmp_lt_u32 s2, 48')
    a('s_cbranch_scc1 L_p0_qkv')
    a('s_cmp_lt_u32 s2, 64')
    a('s_cbranch_scc1 L_p0_wo')
    a('s_cmp_lt_u32 s2, 176')
    a('s_cbranch_scc1 L_p0_gu')
    srd(a, 28, 24, 1792 * 1024)
    a('s_sub_u32 s6, s2, 176')
    a('s_lshr_b32 s7, s6, 4')
    a('s_and_b32 s6, s6, 15')
    a('s_mov_b32 s34, 1024')
    a('s_lshl_b32 s35, s7, 19')
    a('s_lshl_b32 s26, s6, 6')
    a('s_add_u32 s35, s35, s26')
    a('s_mul_i32 s36, s6, 114688')
    a('s_lshl_b32 s26, s7, 15')
    a('s_add_u32 s36, s36, s26')
    a(f's_add_u32 s36, s36, {hx(WD_F)}')
    a('s_mov_b32 s37, 128')
    a('s_mov_b32 s38, 0')
    a('s_cmp_eq_u32 s7, 3')
    a('s_cselect_b32 s39, 32, 64')
    a('v_lshlrev_b32 v4, 9, v2')
    a('v_and_b32 v5, 1, v1')
    a('v_lshl_add_u32 v4, v5, 8, v4')
    a('v_lshrrev_b32 v5, 1, v1')
    a('v_lshl_add_u32 v4, v5, 6, v4')
    a('s_branch L_p0_go')
    a('L_p0_gu:')
    a('s_cmp_lt_u32 s2, 120')
    a('s_cselect_b32 s26, s20, s22')
    a('s_cselect_b32 s27, s21, s23')
    a('s_cselect_b32 s6, 64, 120')
    a('s_cselect_b32 s7, 0, 256')
    a(f's_cselect_b32 s38, {hx(CS_G)}, {hx(CS_U)}') if False else None
    a(f's_mov_b32 s38, {hx(CS_U)}')
    a(f's_cselect_b32 s38, {hx(CS_G)}, s38')
    srd(a, 28, 26, 512 * 3584)
    a('s_sub_u32 s6, s2, s6')
    a('s_mov_b32 s34, 3584')
    a('s_lshl_b32 s35, s6, 6')
    a('s_lshl_b32 s36, s6, 16')
    a('s_add_u32 s36, s36, s7')
    a(f's_add_u32 s36, s36, {hx(WGU_F)}')
    a('s_mov_b32 s37, 128')
    a('s_lshl_b32 s26, s6, 7')
    a('s_add_u32 s38, s38, s26')
    a('v_lshlrev_b32 v4, 9, v2')
    a('v_lshrrev_b32 v5, 1, v1')
    a('v_lshl_add_u32 v4, v5, 15, v4')
    a('v_and_b32 v5, 1, v1')
    a('v_lshl_add_u32 v4, v5, 6, v4')
    a('s_branch L_p0_go')
    a('L_p0_wo:')
    srd(a, 28, 16, 512 * 1024)
    a('s_sub_u32 s6, s2, 48')
    a('s_mov_b32 s34, 1024')
    a('s_lshl_b32 s35, s6, 6')
    a('s_lshr_b32 s7, s6, 1')
    a('s_lshl_b32 s36, s7, 16')
    a('s_and_b32 s7, s6, 1')
    a('s_lshl_b32 s7, s7, 11')
    a('s_add_u32 s36, s36, s7')
    a(f's_add_u32 s36, s36, {hx(WO_F)}')
    a('s_mov_b32 s37, 1024')
    a('s_mov_b32 s38, 0')
    a('v_lshrrev_b32 v5, 2, v2')
    a('v_lshlrev_b32 v4, 12, v5')
    a('v_and_b32 v5, 3, v2')
    a('v_lshl_add_u32 v4, v5, 8, v4')
    a('v_lshl_add_u32 v4, v1, 6, v4')
    a('s_branch L_p0_go')
    a('L_p0_qkv:')
    srd(a, 28, 14, 512 * 3072)
    a('s_mov_b32 s34, 3072')
    a('s_lshl_b32 s35, s2, 6')
    a('s_lshr_b32 s7, s2, 4')
    a('s_and_b32 s6, s2, 15')
    a('s_mul_i32 s36, s6, 98304')
    a('s_lshl_b32 s7, s7, 10')
    a('s_add_u32 s36, s36, s7')
    if WQKV_F:
        a(f's_add_u32 s36, s36, {hx(WQKV_F)}')
    a('s_mov_b32 s37, 64')
    a('s_lshl_b32 s38, s2, 7')
    a(f's_add_u32 s38, s38, {hx(CS_QKV)}')
    a('v_lshrrev_b32 v5, 2, v2')
    a('v_mul_u32_u24 v4, 3072, v5')
    a('v_and_b32 v5, 3, v2')
    a('v_lshl_add_u32 v4, v5, 8, v4')
    a('v_and_b32 v5, 1, v1')
    a('v_lshl_add_u32 v4, v5, 7, v4')
    a('v_lshrrev_b32 v5, 1, v1')
    a('v_mul_u32_u24 v5, 49152, v5')
    a('v_add_u32 v4, v4, v5')
    a('L_p0_go:')
    a('s_waitcnt vmcnt(0) lgkmcnt(0)')
    a('s_lshl_b32 s26, s34, 3')
    a('v_mul_lo_u32 v3, v2, s26')
    a('v_lshl_add_u32 v3, v1, 4, v3')
    R = 8
    G = 40
    for r in range(8):
        a(f'buffer_load_dwordx4 v[{R+4*r}:{R+4*r+3}], v3, s[28:31], s35 offen')
        if r < 7:
            a('s_add_u32 s35, s35, s34')
    a('s_mov_b32 s40, 0x05040100')
    a('s_mov_b32 s41, 0x07060302')
    for j in range(8):
        for u in range(4):
            a(f'v_perm_b32 v{G+4*j+u}, v{R+4*(2*u+1)+(j>>1)}, v{R+4*(2*u)+(j>>1)}, s{40+(j&1)}')
    a('s_add_u32 s37, s37, s36')
    a('v_cmp_gt_u32 vcc, s39, v2')
    a('s_and_saveexec_b64 s[42:43], vcc')
    a('s_cbranch_execz L_p0_nostore')
    for j in range(8):
        so = 's36' if j < 4 else 's37'
        a(f'buffer_store_dwordx4 v[{G+4*j}:{G+4*j+3}], v4, s[8:11], {so} offen offset:{16*(j&3)}')
    a('L_p0_nostore:')
    a('s_mov_b64 exec, s[42:43]')
    a('s_cmp_eq_u32 s38, 0')
    a(f's_cbranch_scc1 L_end_{name}')
    for j in range(8):
        a(f'v_mov_b32 v{R+j}, 0')
    for j in range(8):
        for u in range(4):
            a(f'v_dot2_f32_bf16 v{R+j}, v{G+4*j+u}, s33, v{R+j}')
    a('v_lshlrev_b32 v5, 5, v0')
    a(f'ds_write_b128 v5, v[{R}:{R+3}]')
    a(f'ds_write_b128 v5, v[{R+4}:{R+7}] offset:16')
    a('s_waitcnt lgkmcnt(0)')
    a('s_barrier')
    a('v_and_b32 v6, 31, v0')
    a('v_lshrrev_b32 v7, 5, v0')
    a('v_lshlrev_b32 v5, 10, v7')
    a('v_lshl_add_u32 v5, v6, 2, v5')
    for i in range(8):
        a(f'ds_read_b32 v{R+i}, v5 offset:{128*i}')
    for i in range(1, 8):
        a(f'v_add_f32 v{R}, v{R}, v{R+i}')
    a('v_lshlrev_b32 v5, 2, v0')
    a(f'ds_write_b32 v5, v{R} offset:8192')
    a('s_waitcnt lgkmcnt(0)')
    a('s_barrier')
    a('v_lshlrev_b32 v5, 2, v6')
    for i in range(8):
        a(f'ds_read_b32 v{R+i}, v5 offset:{8192+128*i}')
    for i in range(1, 8):
        a(f'v_add_f32 v{R}, v{R}, v{R+i}')
    a(f'buffer_store_dword v{R}, v5, s[8:11], s38 offen')
    footer(a, name)
    return name, a.finish(), dict(vgpr=72, acc=72, lds=16384)


def stat_finalize(a, S, Q, T, sEps):
    a(f'v_mul_f32 v{S}, {hx(f2u(-1.0/512))}, v{S}')
    a(f'v_mul_f32 v{T}, v{S}, v{S}')
    a(f'v_mov_b32 v{T+1}, {hx(f2u(1.0/512))}')
    a(f'v_fma_f32 v{T}, v{Q}, v{T+1}, -v{T}')
    a(f'v_max_f32 v{T}, 0, v{T}')
    a(f'v_add_f32 v{T}, s{sEps}, v{T}')
    a(f'v_mov_b32 v{Q}, v{S}')
    a(f'v_rsq_f32 v{S}, v{T}')


def gen_p1(layer):
    a = Asm()
    name = f'p1l{layer}_kernel'
    X = X0 if layer == 0 else X2
    ST = STA[layer]
    header(a, name)
    stamp(a, 0, True)
    stamp(a, 1)
    ws_prologue(a)
    a('s_and_b32 s12, s2, 7')
    a('s_lshr_b32 s13, s2, 3')
    a('s_lshl_b32 s14, s12, 2')
    a('s_add_u32 s14, s14, s3')
    a('v_and_b32 v2, 15, v0')
    a('v_lshrrev_b32 v3, 4, v0')
    a('v_lshlrev_b32 v4, 9, v3')
    a('v_lshl_add_u32 v4, v2, 4, v4')
    a('v_lshlrev_b32 v5, 8, v3')
    a('v_lshl_add_u32 v5, v2, 4, v5')
    a('v_add_u32 v6, 16384, v4')
    a('s_lshl_b32 s15, s13, 16')
    a('s_sub_u32 s16, s15, 32512')
    a('s_cmp_eq_u32 s13, 0')
    a('s_cselect_b32 s16, 0, s16')
    a(f's_add_u32 s16, s16, {hx(X)}')
    a(f's_add_u32 s15, s15, {hx(X)}')
    a('s_lshl_b32 s17, s3, 13')
    a('s_add_u32 s16, s16, s17')
    a('s_lshl_b32 s18, s3, 12')
    a('s_mov_b32 m0, s18')
    for j in range(4):
        a(f'buffer_load_dwordx4 v4, s[8:11], s16 offen offset:{1024*j} lds', tag='xh')
        a('s_add_u32 s16, s16, 1024')
    a('s_add_u32 s15, s15, s17')
    for t in range(2):
        for g in range(2):
            a(f's_add_u32 s18, s17, {16384 + t*32768 + g*4096}')
            a('s_mov_b32 m0, s18')
            for j in range(4):
                a(f'buffer_load_dwordx4 v1, s[8:11], s15 offen offset:{1024*j} lds', tag=f'x{t}')
            a(f's_add_u32 s15, s15, {4096 if g == 0 else 32768 - 4096}')
    a('v_lshlrev_b32 v7, 10, v3')
    a('v_lshl_add_u32 v7, v2, 3, v7')
    a('s_lshl_b32 s15, s13, 13')
    a('s_sub_u32 s16, s15, 3968')
    a('s_cmp_eq_u32 s13, 0')
    a('s_cselect_b32 s16, 0, s16')
    a(f's_add_u32 s16, s16, {hx(ST)}')
    a('s_lshr_b32 s17, s3, 1')
    a('s_lshl_b32 s17, s17, 12')
    a('s_and_b32 s18, s3, 1')
    a('s_lshl_b32 s18, s18, 7')
    a('s_add_u32 s15, s15, s17')
    a('s_add_u32 s15, s15, s18')
    a(f's_add_u32 s15, s15, {hx(ST)}')
    for j in range(4):
        a(f'buffer_load_dwordx2 v[{8+2*j}:{9+2*j}], v7, s[8:11], s15 offen offset:{256*j}')
    for j in range(4):
        a(f'buffer_load_dwordx2 v[{16+2*j}:{17+2*j}], v7, s[8:11], s16 offen offset:{256*j}')
    CSQ, CSK, CSV = 24, 28, 32
    a('s_lshl_b32 s15, s14, 6')
    a(f's_add_u32 s15, s15, {hx(CS_QKV)}')
    a('v_lshlrev_b32 v33, 4, v3')
    a('v_lshlrev_b32 v34, 2, v2')
    a(f'buffer_load_dwordx4 v[{CSQ}:{CSQ+3}], v33, s[8:11], s15 offen')
    a(f'buffer_load_dwordx4 v[{CSK}:{CSK+3}], v33, s[8:11], s15 offen offset:2048')
    a('s_add_u32 s15, s15, 4096')
    a(f'buffer_load_dword v{CSV}, v34, s[8:11], s15 offen')
    a('s_mul_i32 s15, s14, 49152')
    if WQKV_F:
        a(f's_add_u32 s15, s15, {hx(WQKV_F)}')
    for f in range(48):
        a(f'buffer_load_dwordx4 a[{4*f}:{4*f+3}], v1, s[8:11], s15 offen offset:{1024*(f&3)}')
        if (f & 3) == 3 and f < 47:
            a('s_add_u32 s15, s15, 4096')
    stamp(a, 2)
    BI = 36
    SELA, SELB = 42, 43
    NEG = f2u(-1e30)
    a('v_and_b32 v44, 1, v2')
    a('v_lshl_add_u32 v45, v3, 2, v44')
    a('v_add_u32 v46, 2, v45')
    a('v_add_u32 v47, 2, v2')
    a(f'v_mov_b32 v48, {hx(NEG)}')
    a('v_cmp_ge_u32 vcc, v45, v47')
    a(f'v_cndmask_b32 v{BI}, v48, 0, vcc') if False else None
    a('v_mov_b32 v49, 0')
    a(f'v_cndmask_b32 v{BI}, v48, v49, vcc')
    a('v_cmp_ge_u32 vcc, v46, v47')
    a(f'v_cndmask_b32 v{BI+1}, v48, v49, vcc')
    a('v_cmp_le_u32 vcc, v45, v2')
    a(f'v_cndmask_b32 v{BI+2}, v48, v49, vcc')
    a('v_cmp_le_u32 vcc, v46, v2')
    a(f'v_cndmask_b32 v{BI+3}, v48, v49, vcc')
    a('s_cmp_eq_u32 s13, 0')
    a('s_cselect_b64 s[20:21], -1, 0')
    a(f'v_cndmask_b32 v{BI+4}, v{BI}, v48, s[20:21]')
    a(f'v_cndmask_b32 v{BI+5}, v{BI+1}, v48, s[20:21]')
    a('s_mov_b32 s22, 0xaaaaaaaa')
    a('s_mov_b32 s23, 0xaaaaaaaa')
    a('v_mov_b32 v45, 0x0c0c0100')
    a('v_mov_b32 v46, 0x01000c0c')
    a(f'v_cndmask_b32 v{SELA}, v45, v46, s[22:23]')
    a('v_mov_b32 v45, 0x0c0c0302')
    a('v_mov_b32 v46, 0x03020c0c')
    a(f'v_cndmask_b32 v{SELB}, v45, v46, s[22:23]')
    a(f's_mov_b32 s24, {hx(f2u(1e-5))}')
    TAB = 81920
    for base in (8, 16):
        for j in range(1, 4):
            a(f'v_add_f32 v{base}, v{base}, v{base+2*j}')
            a(f'v_add_f32 v{base+1}, v{base+1}, v{base+2*j+1}')
    for base in (8, 16):
        a(f'v_permlane16_swap_b32 v{base}, v{base+1}')
        a(f'v_add_f32 v{base}, v{base}, v{base+1}')
        a(f'v_mov_b32 v{base+1}, v{base}')
        a(f'v_permlane32_swap_b32 v{base}, v{base+1}')
        a(f'v_add_f32 v{base}, v{base}, v{base+1}')
        a(f'v_mov_b32 v{base+1}, v{base}')
        a(f'v_permlane16_swap_b32 v{base}, v{base+1}')
        stat_finalize(a, base, base + 1, base + 2, 24)
    a('v_lshlrev_b32 v44, 3, v2')
    a(f'v_add_u32 v44, {TAB}, v44')
    a('s_lshl_b32 s15, s3, 7')
    a('v_add_u32 v45, s15, v44')
    a('ds_write_b64 v45, v[8:9] offset:128')
    a('ds_write_b64 v44, v[16:17]')
    a('v_lshlrev_b32 v46, 5, v3')
    a(f'v_add_u32 v46, {TAB}, v46')
    stamp(a, 3)
    a('s_waitcnt vmcnt(0) lgkmcnt(0)')
    stamp(a, 4)
    a('s_barrier')
    stamp(a, 5)
    AQ, AK, AV = 52, 72, 92
    BR = 112
    seq = [(i, s) for i in range(5) for s in range(16)]

    def rd(idx):
        i, s = seq[idx]
        dst = BR + 4 * (idx & 3)
        if i == 0:
            a(f'ds_read_b128 v[{dst}:{dst+3}], v5 offset:{s*1024}')
        else:
            t, half = (i - 1) >> 1, (i - 1) & 1
            a(f'ds_read_b128 v[{dst}:{dst+3}], v6 offset:{t*32768 + half*256 + s*2048}')
    for idx in range(3):
        rd(idx)
    for idx, (i, s) in enumerate(seq):
        if idx + 3 < len(seq):
            rd(idx + 3)
        b = BR + 4 * (idx & 3)
        B = f'v[{b}:{b+3}]'

        def W(part):
            f = s * 3 + part
            return f'a[{4*f}:{4*f+3}]'

        def acc(base):
            r = base + 4 * i
            return f'v[{r}:{r+3}]'
        c = lambda base: acc(base) if s else '0'
        a(f'v_mfma_f32_16x16x32_bf16 {acc(AK)}, {W(1)}, {B}, {c(AK)}')
        a(f'v_mfma_f32_16x16x32_bf16 {acc(AV)}, {B}, {W(2)}, {c(AV)}')
        if i:
            a(f'v_mfma_f32_16x16x32_bf16 {acc(AQ)}, {W(0)}, {B}, {c(AQ)}')
    stamp(a, 6)
    QP, KP, VP = 128, 140, 150
    SC = 160
    CT = 166
    a(f's_mov_b32 s25, {hx(f2u(0.25 * math.log2(math.e)))}')
    for i in range(5):
        a(f'ds_read_b64 v[{CT}:{CT+1}], v44 offset:{128*i}')
        a(f'ds_read_b128 v[{CT+2}:{CT+5}], v46 offset:{128*i}')
        a(f'ds_read_b128 v[{CT+6}:{CT+9}], v46 offset:{128*i+16}')
        for v in range(4):
            r = AK + 4 * i + v
            a(f'v_fmac_f32 v{r}, v{CT+1}, v{CSK+v}')
            a(f'v_mul_f32 v{r}, v{CT}, v{r}')
        for d in range(2):
            a(f'v_cvt_pk_bf16_f32 v{KP+2*i+d}, v{AK+4*i+2*d}, v{AK+4*i+2*d+1}')
        if i:
            for v in range(4):
                a(f'v_fmac_f32 v{AQ+4*i+v}, v{CT+1}, v{CSQ+v}')
            for d in range(2):
                a(f'v_cvt_pk_bf16_f32 v{QP+2*i+d}, v{AQ+4*i+2*d}, v{AQ+4*i+2*d+1}')
            a(f'v_mul_f32 v{SC+i}, s25, v{CT}')
        for v in range(4):
            r = AV + 4 * i + v
            a(f'v_fmac_f32 v{r}, v{CT+2+2*v+1}, v{CSV}')
            a(f'v_mul_f32 v{r}, v{CT+2+2*v}, v{r}')
        for d in range(2):
            a(f'v_cvt_pk_bf16_f32 v{VP+2*i+d}, v{AV+4*i+2*d}, v{AV+4*i+2*d+1}')
    stamp(a, 7)
    a('s_lshl_b32 s15, s13, 16')
    a('s_lshl_b32 s16, s14, 10')
    a('s_add_u32 s15, s15, s16')
    a(f's_add_u32 s15, s15, {hx(O_[layer])}')
    SS = 176
    TT = 192
    MM = 200
    PP = 204
    OO = 212
    OS = 220
    for pr in range(2):
        tl = (1 + 2 * pr, 2 + 2 * pr)
        for u, i in enumerate(tl):
            a(f'v_mfma_f32_16x16x16_bf16 v[{SS+8*u}:{SS+8*u+3}], v[{KP+2*i-2}:{KP+2*i-1}], v[{QP+2*i}:{QP+2*i+1}], 0')
            a(f'v_mfma_f32_16x16x16_bf16 v[{SS+8*u+4}:{SS+8*u+7}], v[{KP+2*i}:{KP+2*i+1}], v[{QP+2*i}:{QP+2*i+1}], 0')
        for u, i in enumerate(tl):
            for c in range(4):
                r = SS + 8 * u + 2 * c
                a(f'v_cndmask_b32 v{TT+4*u+c}, v{r}, v{r+1}, s[22:23]')
            for c in range(4):
                bias = BI + c if not (i == 1 and c < 2) else BI + 4 + c
                a(f'v_fma_f32 v{TT+4*u+c}, v{TT+4*u+c}, v{SC+i}, v{bias}')
            a(f'v_max3_f32 v{MM+u}, v{TT+4*u}, v{TT+4*u+1}, v{TT+4*u+2}')
            a(f'v_max_f32 v{MM+u}, v{MM+u}, v{TT+4*u+3}')
        a(f'v_permlane16_swap_b32 v{MM}, v{MM+1}')
        a(f'v_max_f32 v{MM}, v{MM}, v{MM+1}')
        a(f'v_mov_b32 v{MM+1}, v{MM}')
        a(f'v_permlane32_swap_b32 v{MM}, v{MM+1}')
        a(f'v_max_f32 v{MM}, v{MM}, v{MM+1}')
        a(f'v_mov_b32 v{MM+1}, v{MM}')
        a(f'v_permlane16_swap_b32 v{MM}, v{MM+1}')
        for u, i in enumerate(tl):
            for c in range(4):
                a(f'v_sub_f32 v{TT+4*u+c}, v{TT+4*u+c}, v{MM+u}')
            for c in range(4):
                a(f'v_exp_f32 v{TT+4*u+c}, v{TT+4*u+c}')
        for u, i in enumerate(tl):
            a(f'v_cvt_pk_bf16_f32 v{SS+8*u}, v{TT+4*u}, v{TT+4*u+1}')
            a(f'v_cvt_pk_bf16_f32 v{SS+8*u+1}, v{TT+4*u+2}, v{TT+4*u+3}')
            a(f'v_perm_b32 v{PP+4*u}, v{SS+8*u}, v{SS+8*u}, v{SELA}')
            a(f'v_perm_b32 v{PP+4*u+1}, v{SS+8*u}, v{SS+8*u}, v{SELB}')
            a(f'v_perm_b32 v{PP+4*u+2}, v{SS+8*u+1}, v{SS+8*u+1}, v{SELA}')
            a(f'v_perm_b32 v{PP+4*u+3}, v{SS+8*u+1}, v{SS+8*u+1}, v{SELB}')
            a(f'v_add_f32 v{MM+2+u}, v{TT+4*u}, v{TT+4*u+1}')
            a(f'v_add_f32 v{TT+4*u+2}, v{TT+4*u+2}, v{TT+4*u+3}')
            a(f'v_add_f32 v{MM+2+u}, v{MM+2+u}, v{TT+4*u+2}')
            a(f'v_mfma_f32_16x16x32_bf16 v[{OO+4*u}:{OO+4*u+3}], v[{VP+2*i-2}:{VP+2*i+1}], v[{PP+4*u}:{PP+4*u+3}], 0')
        S0, S1 = MM + 2, MM + 3
        a(f'v_permlane16_swap_b32 v{S0}, v{S1}')
        a(f'v_add_f32 v{S0}, v{S0}, v{S1}')
        a(f'v_mov_b32 v{S1}, v{S0}')
        a(f'v_permlane32_swap_b32 v{S0}, v{S1}')
        a(f'v_add_f32 v{S0}, v{S0}, v{S1}')
        a(f'v_rcp_f32 v{S0}, v{S0}')
        a(f'v_mov_b32 v{S1}, v{S0}')
        a(f'v_permlane16_swap_b32 v{S0}, v{S1}')
        for u in range(2):
            for v in range(4):
                a(f'v_mul_f32 v{OO+4*u+v}, v{OO+4*u+v}, v{S0+u}')
            for d in range(2):
                a(f'v_cvt_pk_bf16_f32 v{OS+2*u+d}, v{OO+4*u+2*d}, v{OO+4*u+2*d+1}')
        a(f'v_permlane16_swap_b32 v{OS}, v{OS+2}')
        a(f'v_permlane16_swap_b32 v{OS+1}, v{OS+3}')
        a(f'buffer_store_dwordx4 v[{OS}:{OS+3}], v1, s[8:11], s15 offen')
        if pr == 0:
            a('s_add_u32 s15, s15, 32768')
    stamp(a, 8)
    a('s_waitcnt vmcnt(0)')
    stamp(a, 9)
    stamp(a, 10, True)
    stamp_flush(a, 1 + 4 * layer, 11)
    footer(a, name)
    return name, a.finish(), dict(vgpr=224, acc=192, lds=81920 + 640)


def unpack_add(a, dst_lo, dst_hi, src, tmp):
    a(f'v_lshlrev_b32 v{tmp}, 16, v{src}')
    a(f'v_add_f32 v{dst_lo}, v{dst_lo}, v{tmp}')
    a(f'v_and_b32 v{tmp}, 0xffff0000, v{src}')
    a(f'v_add_f32 v{dst_hi}, v{dst_hi}, v{tmp}')


def gen_p2(layer):
    a = Asm()
    name = f'p2l{layer}_kernel'
    X = X0 if layer == 0 else X2
    header(a, name)
    stamp(a, 0, True)
    stamp(a, 1)
    ws_prologue(a)
    a('s_and_b32 s12, s2, 7')
    a('s_lshr_b32 s13, s2, 3')
    a('v_and_b32 v2, 15, v0')
    a('v_lshrrev_b32 v3, 4, v0')
    a('v_lshlrev_b32 v4, 9, v3')
    a('v_lshl_add_u32 v4, v2, 4, v4')
    a('s_lshl_b32 s15, s12, 16')
    a('s_lshl_b32 s17, s3, 14')
    a('s_add_u32 s15, s15, s17')
    a(f's_add_u32 s15, s15, {hx(WO_F)}')
    for g in range(4):
        a('s_mov_b32 m0, s17')
        for j in range(4):
            a(f'buffer_load_dwordx4 v1, s[8:11], s15 offen offset:{1024*j} lds', tag='w')
        a('s_add_u32 s15, s15, 4096')
        a('s_add_u32 s17, s17, 4096')
    a('s_lshr_b32 s16, s3, 1')
    a('s_lshl_b32 s18, s13, 1')
    a('s_add_u32 s16, s16, s18')
    a('s_lshl_b32 s16, s16, 15')
    a('s_and_b32 s18, s3, 1')
    a('s_lshl_b32 s18, s18, 8')
    a('s_add_u32 s16, s16, s18')
    a(f's_add_u32 s15, s16, {hx(O_[layer])}')
    BF = 8
    for s in range(16):
        a(f'buffer_load_dwordx4 v[{BF+4*s}:{BF+4*s+3}], v4, s[8:11], s15 offen offset:{2048*(s&1)}')
        if s & 1:
            a('s_add_u32 s15, s15, 4096')
    RS = 72
    a('s_lshl_b32 s18, s12, 12')
    a('s_add_u32 s16, s16, s18')
    a(f's_add_u32 s15, s16, {hx(X)}')
    a(f'buffer_load_dwordx4 v[{RS}:{RS+3}], v4, s[8:11], s15 offen')
    a(f'buffer_load_dwordx4 v[{RS+4}:{RS+7}], v4, s[8:11], s15 offen offset:2048')
    stamp(a, 2)
    a.waitvm('w')
    stamp(a, 3)
    a('s_barrier')
    stamp(a, 4)
    AC = 80
    AR = 96
    seq = [(s, t) for s in range(16) for t in range(4)]

    def rd(idx):
        d = AR + 4 * (idx & 7)
        a(f'ds_read_b128 v[{d}:{d+3}], v1 offset:{idx*1024}')
    for idx in range(6):
        rd(idx)
    for idx, (s, t) in enumerate(seq):
        if idx + 6 < 64:
            rd(idx + 6)
        d = AR + 4 * (idx & 7)
        c = f'v[{AC+4*t}:{AC+4*t+3}]'
        a(f'v_mfma_f32_16x16x32_bf16 {c}, v[{d}:{d+3}], v[{BF+4*s}:{BF+4*s+3}], {c if s else 0}')
    stamp(a, 5)
    a(f's_add_u32 s15, s16, {hx(X1_[layer])}')
    a(f's_mov_b32 s33, {hx(ONES)}')
    PK = 128
    for p in range(2):
        for d in range(4):
            r = AC + 8 * p + 2 * d
            unpack_add(a, r, r + 1, RS + 4 * p + d, 136)
            a(f'v_cvt_pk_bf16_f32 v{PK+4*p+d}, v{r}, v{r+1}')
        a(f'buffer_store_dwordx4 v[{PK+4*p}:{PK+4*p+3}], v4, s[8:11], s15 offen offset:{2048*p}')
    a('v_mov_b32 v140, 0')
    a('v_mov_b32 v141, 0')
    for d in range(8):
        a(f'v_dot2_f32_bf16 v140, v{PK+d}, s33, v140')
    for d in range(8):
        a(f'v_dot2_f32_bf16 v141, v{PK+d}, v{PK+d}, v141')
    a('v_permlane16_swap_b32 v140, v141')
    a('v_add_f32 v140, v140, v141')
    a('v_mov_b32 v141, v140')
    a('v_permlane32_swap_b32 v140, v141')
    a('v_add_f32 v140, v140, v141')
    a('v_and_b32 v5, 1, v3')
    a('v_lshlrev_b32 v5, 2, v5')
    a('v_lshl_add_u32 v5, v2, 3, v5')
    a('s_lshl_b32 s15, s13, 2')
    a('s_add_u32 s15, s15, s3')
    a('s_lshl_b32 s15, s15, 10')
    a('s_lshl_b32 s18, s12, 7')
    a('s_add_u32 s15, s15, s18')
    a(f's_add_u32 s15, s15, {hx(STB[layer])}')
    a('buffer_store_dword v140, v5, s[8:11], s15 offen')
    stamp(a, 6)
    a('s_waitcnt vmcnt(0)')
    stamp(a, 7)
    stamp(a, 8, True)
    stamp_flush(a, 2 + 4 * layer, 9)
    footer(a, name)
    return name, a.finish(), dict(vgpr=144, acc=0, lds=65536)


def gen_p3(layer):
    a = Asm()
    name = f'p3l{layer}_kernel'
    header(a, name)
    stamp(a, 0, True)
    stamp(a, 1)
    ws_prologue(a)
    a('s_and_b32 s12, s2, 15')
    a('s_lshr_b32 s13, s2, 4')
    NS = 4
    CST = NS * 32768
    a('s_mul_i32 s20, s12, 229376')
    a('s_lshl_b32 s21, s3, 13')
    a('s_add_u32 s20, s20, s21')
    a(f's_add_u32 s20, s20, {hx(WGU_F)}')

    def dma(T):
        for g in range(2):
            a(f's_add_u32 s22, s21, {(T % NS) * 32768 + g * 4096}')
            a('s_mov_b32 m0, s22')
            for j in range(4):
                a(f'buffer_load_dwordx4 v1, s[8:11], s20 offen offset:{1024*j} lds', tag=f'w{T}')
            a(f's_add_u32 s20, s20, {4096 if g == 0 else 32768 - 4096}')
    dma(0)
    a('s_lshl_b32 s14, s13, 2')
    a('s_add_u32 s14, s14, s3')
    a('s_lshl_b32 s15, s14, 15')
    a(f's_add_u32 s15, s15, {hx(X1_[layer])}')
    a('v_and_b32 v2, 31, v0')
    a('v_lshrrev_b32 v3, 5, v0')
    a('v_lshrrev_b32 v4, 4, v2')
    a('v_lshlrev_b32 v4, 10, v4')
    a('v_lshl_add_u32 v4, v3, 9, v4')
    a('v_and_b32 v5, 15, v2')
    a('v_lshl_add_u32 v4, v5, 3, v4')
    a('s_lshl_b32 s16, s14, 11')
    a(f's_add_u32 s16, s16, {hx(STB[layer])}')
    for j in range(4):
        a(f'buffer_load_dwordx2 v[{8+2*j}:{9+2*j}], v4, s[8:11], s16 offen offset:{128*j}')
    a('s_lshl_b32 s16, s3, 6')
    a('v_add_u32 v5, s16, v0')
    a('v_lshrrev_b32 v6, 5, v5')
    a('v_lshlrev_b32 v6, 6, v6')
    a('v_and_b32 v7, 15, v5')
    a('v_lshl_add_u32 v6, v7, 2, v6')
    a('v_bfe_u32 v7, v5, 4, 1')
    a(f'v_mul_u32_u24 v7, {CS_U - CS_G}, v7')
    a('v_add_u32 v6, v6, v7')
    a('s_mul_i32 s16, s12, 448')
    a(f's_add_u32 s16, s16, {hx(CS_G)}')
    a('buffer_load_dword v16, v6, s[8:11], s16 offen')
    for s in range(32):
        a(f'buffer_load_dwordx4 a[{4*s}:{4*s+3}], v1, s[8:11], s15 offen offset:{1024*(s&3)}')
        if (s & 3) == 3 and s < 31:
            a('s_add_u32 s15, s15, 4096')
    dma(1)
    dma(2)
    a('v_lshlrev_b32 v5, 2, v5')
    a(f'ds_write_b32 v5, v16 offset:{CST - 65536}') if False else None
    a(f'v_add_u32 v5, {CST}, v5')
    a('ds_write_b32 v5, v16')
    a(f's_mov_b32 s24, {hx(f2u(1e-5))}')
    for j in range(1, 4):
        a(f'v_add_f32 v8, v8, v{8+2*j}')
        a(f'v_add_f32 v9, v9, v{9+2*j}')
    a('v_permlane32_swap_b32 v8, v9')
    a('v_add_f32 v8, v8, v9')
    a('v_mov_b32 v9, v8')
    a('v_permlane32_swap_b32 v8, v9')
    stat_finalize(a, 8, 9, 10, 24)
    k0 = -2.0 * math.sqrt(2.0 / math.pi) * math.log2(math.e)
    k1 = k0 * 0.044715
    C0, C1, IA2 = 12, 13, 14
    a('v_mul_f32 v10, v8, v8')
    a(f'v_mul_f32 v{C0}, {hx(f2u(k0))}, v8')
    a('v_mul_f32 v11, v10, v8')
    a(f'v_mul_f32 v{C1}, {hx(f2u(k1))}, v11')
    a(f'v_rcp_f32 v{IA2}, v10')
    a('v_lshlrev_b32 v6, 5, v3')
    a(f'v_add_u32 v6, {CST}, v6')
    a('v_add_u32 v7, 65536, v1')
    a('s_mul_i32 s16, s14, 114688')
    a('s_mul_i32 s17, s12, 7168')
    a('s_add_u32 s16, s16, s17')
    a(f's_add_u32 s16, s16, {hx(H_[layer])}')
    ACC = [16, 32]
    AR = 48
    CSR = 80
    TM = 96
    HP = 112

    def rd(T, s):
        d = AR + 4 * (s & 7)
        off = (T % NS) * 32768 + s * 1024
        base = 'v1' if off < 65536 else 'v7'
        a(f'ds_read_b128 v[{d}:{d+3}], {base} offset:{off & 65535}')

    def epilogue(T):
        ac = ACC[T & 1]
        for e in range(8):
            G, U, t = ac + e, ac + 8 + e, TM + e
            a(f'v_mul_f32 v{t}, v{G}, v{G}')
            a(f'v_fma_f32 v{t}, v{t}, v{C1}, v{C0}')
            a(f'v_mul_f32 v{t}, v{t}, v{G}')
            a(f'v_exp_f32 v{t}, v{t}')
            a(f'v_mul_f32 v{G}, v{G}, v{U}')
            a(f'v_fma_f32 v{t}, v{t}, v{IA2}, v{IA2}')
            a(f'v_rcp_f32 v{t}, v{t}')
            a(f'v_mul_f32 v{G}, v{G}, v{t}')
        for d in range(4):
            a(f'v_cvt_pk_bf16_f32 v{HP+d}, v{ac+2*d}, v{ac+2*d+1}')
        a(f'buffer_store_dwordx4 v[{HP}:{HP+3}], v1, s[8:11], s16 offen offset:{1024*(T&3)}')
        if T == 3:
            a('s_add_u32 s16, s16, 4096')

    for T in range(7):
        a.waitvm(f'w{T}')
        a('s_waitcnt lgkmcnt(0)')
        a('s_barrier')
        stamp(a, 2 + T)
        if T + 3 < 7:
            dma(T + 3)
        ac = ACC[T & 1]
        for i in range(4):
            a(f'ds_read_b128 v[{CSR+4*i}:{CSR+4*i+3}], v6 offset:{T*128 + (i>>1)*64 + (i&1)*16}')
        for s in range(6):
            rd(T, s)
        for e in range(16):
            a(f'v_mul_f32 v{ac+e}, v9, v{CSR+e}')
        for s in range(32):
            if s + 6 < 32:
                rd(T, s + 6)
            d = AR + 4 * (s & 7)
            a(f'v_mfma_f32_32x32x16_bf16 v[{ac}:{ac+15}], v[{d}:{d+3}], a[{4*s}:{4*s+3}], v[{ac}:{ac+15}]')
        if T == 6:
            stamp(a, 9)
        epilogue(T)
    stamp(a, 10)
    a('s_waitcnt vmcnt(0)')
    stamp(a, 11)
    stamp(a, 12, True)
    stamp_flush(a, 3 + 4 * layer, 13)
    footer(a, name)
    return name, a.finish(), dict(vgpr=120, acc=128, lds=CST + 1024)


def gen_p4(layer):
    a = Asm()
    name = f'p4l{layer}_kernel'
    header(a, name)
    stamp(a, 0, True)
    stamp(a, 1)
    if layer == 1:
        a('s_load_dwordx2 s[6:7], s[0:1], 56')
    ws_prologue(a)
    if layer == 1:
        srd(a, 28, 6, 2048 * 1024)
    a('s_and_b32 s12, s2, 7')
    a('s_lshr_b32 s13, s2, 3')
    a('s_and_b32 s14, s3, 1')
    a('s_lshr_b32 s15, s3, 1')
    a('s_mul_i32 s16, s3, 28672')
    a('s_lshl_b32 s17, s12, 1')
    a('s_add_u32 s17, s17, s14')
    a('s_xor_b32 s18, s17, 1')
    a('s_lshl_b32 s19, s13, 1')
    a('s_add_u32 s19, s19, s15')
    a('s_xor_b32 s20, s19, 1')
    NB = 16
    BR = 8
    ACC = 72
    a('s_mul_i32 s21, s20, 114688')
    a('s_add_u32 s21, s21, s16')
    a(f's_add_u32 s21, s21, {hx(H_[layer])}')
    a('s_mul_i32 s22, s19, 114688')
    a('s_add_u32 s22, s22, s16')
    a(f's_add_u32 s22, s22, {hx(H_[layer])}')
    a('s_mul_i32 s23, s17, 114688')
    a('s_add_u32 s23, s23, s16')
    a(f's_add_u32 s23, s23, {hx(WD_F)}')
    a('s_mul_i32 s24, s18, 114688')
    a('s_add_u32 s24, s24, s16')
    a(f's_add_u32 s24, s24, {hx(WD_F)}')
    seq = [(1, s) for s in range(28)] + [(0, s) for s in range(28)]

    def ldB(idx):
        t, s = seq[idx]
        d = BR + 4 * (idx % NB)
        so = 's21' if t == 1 else 's22'
        a(f'buffer_load_dwordx4 v[{d}:{d+3}], v1, s[8:11], {so} offen offset:{1024*(s&3)}')
        if (s & 3) == 3:
            a(f's_add_u32 {so}, {so}, 4096')

    def ldA(s):
        for f in range(2):
            so = 's23' if f == 0 else 's24'
            r = (2 * s + f) * 4
            a(f'buffer_load_dwordx4 a[{r}:{r+3}], v1, s[8:11], {so} offen offset:{1024*(s&3)}')
            if (s & 3) == 3:
                a(f's_add_u32 {so}, {so}, 4096')
    PF = 14
    for s in range(28):
        ldA(s)
        if s < PF:
            ldB(s)
    stamp(a, 2)
    RS = 136
    a('v_and_b32 v2, 31, v0')
    a('v_lshrrev_b32 v3, 5, v0')
    a('v_lshlrev_b32 v4, 10, v3')
    a('v_lshl_add_u32 v4, v2, 4, v4')
    a('s_lshl_b32 s25, s19, 15')
    a('s_lshl_b32 s26, s17, 11')
    a('s_add_u32 s25, s25, s26')
    a(f's_add_u32 s26, s25, {hx(X1_[layer])}')
    for u in range(1, 4):
        a(f's_xor_b32 s27, s3, {u}')
        a('s_mul_i32 s27, s27, 12288')
        a(f's_add_u32 s27, s27, {(u-1)*4096}')
        a(f'v_add_u32 v{4+u}, s27, v1')
    a('s_mul_i32 s27, s3, 12288')
    a('v_add_u32 v144, s27, v1')

    def spill(u):
        for i in range(4):
            r = ACC + 16 * u + 4 * i
            a(f'ds_write_b128 v{4+u}, v[{r}:{r+3}] offset:{1024*i}')
    for idx, (t, s) in enumerate(seq):
        if idx + PF < 56:
            ldB(idx + PF)
        if idx == 30:
            a(f'buffer_load_dwordx4 v[{RS}:{RS+3}], v4, s[8:11], s26 offen')
            a(f'buffer_load_dwordx4 v[{RS+4}:{RS+7}], v4, s[8:11], s26 offen offset:512')
        d = BR + 4 * (idx % NB)
        for f in (1, 0):
            c = ACC + 16 * (2 * t + f)
            r = (2 * s + f) * 4
            a(f'v_mfma_f32_32x32x16_bf16 v[{c}:{c+15}], a[{r}:{r+3}], v[{d}:{d+3}], {f"v[{c}:{c+15}]" if s else 0}')
        if idx in (0, 13, 27, 41):
            stamp(a, 3 + (0, 13, 27, 41).index(idx))
        if idx == 34:
            spill(2)
        if idx == 40:
            spill(3)
    stamp(a, 7)
    spill(1)
    a('s_waitcnt lgkmcnt(0)')
    a('s_barrier')
    stamp(a, 8)
    PR = 8
    for u in range(3):
        for i in range(4):
            r = PR + 16 * u + 4 * i
            a(f'ds_read_b128 v[{r}:{r+3}], v144 offset:{4096*u + 1024*i}')
    for d in range(8):
        unpack_add(a, ACC + 2 * d, ACC + 2 * d + 1, RS + d, 145)
    for u in range(3):
        for e in range(16):
            a(f'v_add_f32 v{ACC+e}, v{ACC+e}, v{PR+16*u+e}')
    PK = 148
    for d in range(8):
        a(f'v_cvt_pk_bf16_f32 v{PK+d}, v{ACC+2*d}, v{ACC+2*d+1}')
    if layer == 0:
        a(f's_add_u32 s26, s25, {hx(X2)}')
        a(f'buffer_store_dwordx4 v[{PK}:{PK+3}], v4, s[8:11], s26 offen')
        a(f'buffer_store_dwordx4 v[{PK+4}:{PK+7}], v4, s[8:11], s26 offen offset:512')
        a(f's_mov_b32 s33, {hx(ONES)}')
        a('v_mov_b32 v140, 0')
        a('v_mov_b32 v141, 0')
        for d in range(8):
            a(f'v_dot2_f32_bf16 v140, v{PK+d}, s33, v140')
        for d in range(8):
            a(f'v_dot2_f32_bf16 v141, v{PK+d}, v{PK+d}, v141')
        a('v_permlane32_swap_b32 v140, v141')
        a('v_add_f32 v140, v140, v141')
        a('v_lshlrev_b32 v5, 2, v3')
        a('v_lshl_add_u32 v5, v2, 3, v5')
        a('s_lshl_b32 s26, s19, 12')
        a('s_lshl_b32 s27, s17, 8')
        a('s_add_u32 s26, s26, s27')
        a(f's_add_u32 s26, s26, {hx(STA[1])}')
        a('buffer_store_dword v140, v5, s[8:11], s26 offen')
    else:
        a('v_lshlrev_b32 v5, 5, v3')
        a('v_lshl_add_u32 v5, v2, 10, v5')
        a('s_lshl_b32 s26, s19, 15')
        a('s_lshl_b32 s27, s17, 6')
        a('s_add_u32 s26, s26, s27')
        a(f'buffer_store_dwordx4 v[{PK}:{PK+3}], v5, s[28:31], s26 offen')
        a(f'buffer_store_dwordx4 v[{PK+4}:{PK+7}], v5, s[28:31], s26 offen offset:16')
    stamp(a, 9)
    a('s_waitcnt vmcnt(0)')
    stamp(a, 10)
    stamp(a, 11, True)
    stamp_flush(a, 4 + 4 * layer, 12)
    footer(a, name)
    return name, a.finish(), dict(vgpr=160, acc=224, lds=49152)


def assemble(kernels, launches):
    out = []
    ref = open('cdna_kernels/' + NAME + '.s.ref').read().split('\n')
    for line in ref:
        if line.startswith('; Override') or line.startswith('; grid=') or '@launch' in line:
            continue
        if line.startswith(';'):
            out.append(line)
        else:
            break
    info = {k[0]: k[2] for k in kernels}
    for n in launches:
        out.append(f'; @launch kernel={n} grid=(256,1,1) block=(256,1,1) lds={info[n]["lds"]}')
    out.append('.amdgcn_target "amdgcn-amd-amdhsa--gfx950"')
    out.append('.text')
    for n, body, _ in kernels:
        out.append(f'.globl {n}')
        out.append(body)
    out.append('.section .rodata,"a"')
    for n, _, inf in kernels:
        vg = (inf['vgpr'] + 3) // 4 * 4
        out.append('.p2align 6')
        out.append(f'.amdhsa_kernel {n}')
        out.append(f'  .amdhsa_next_free_vgpr {vg + inf["acc"] if inf["acc"] != inf["vgpr"] or True else vg}')
        out.append('  .amdhsa_next_free_sgpr 96')
        out.append(f'  .amdhsa_accum_offset {vg}')
        out.append('  .amdhsa_group_segment_fixed_size 0')
        out.append('  .amdhsa_kernarg_size 80')
        out.append('  .amdhsa_user_sgpr_count 2')
        out.append('  .amdhsa_user_sgpr_kernarg_segment_ptr 1')
        out.append('  .amdhsa_system_sgpr_workgroup_id_x 1')
        out.append('  .amdhsa_float_denorm_mode_32 3')
        out.append('.end_amdhsa_kernel')
    return '\n'.join(out) + '\n'


def main():
    global STAMP_ON
    STAMP_ON = len(sys.argv) > 2
    ks = [gen_p0()]
    ks[0][2]['acc'] = 0
    for l in range(2):
        ks += [gen_p1(l), gen_p2(l), gen_p3(l), gen_p4(l)]
    text = assemble(ks, [k[0] for k in ks])
    path = sys.argv[1] if len(sys.argv) > 1 else 'v1.s'
    open(path, 'w').write(text)
    print('wrote', path, len(text), 'bytes')


if __name__ == '__main__':
    main()
```

```python
import sys
import math
sys.path.insert(0, 'dev')
from asmlib import Asm, Ins
import gen1 as G
from gen1 import (WQKV_F, WO_F, WGU_F, WD_F, CS_QKV, X0, O_, X1_, X2, H_, STA, STB, WS_BYTES, ONES, f2u, hx, srd,
                  header, footer, NAME)

CSF = 0x760000
FLAGS = 0x2300000
STAMPS = 0x3000000
SPIN = 100000


def F1(l): return FLAGS + (l * 32) * 256
def F2(l): return FLAGS + (64 + l * 32) * 256
def F4(): return FLAGS + 128 * 256
def F3(l, st): return FLAGS + (160 + (l * 7 + st) * 128) * 256


class Cfg:
    stamp = False
    e1 = 1
    e2 = 1
    e3 = 1
    e4 = 0
    stages = ((0, 1, 2), (3,), (4,), (5,), (6,))
    spin = False
    skip = ()
    touch = True
    wdearly = 14
    t0 = True
    t1 = False
    t2 = False
    only = None
    PF = 14
    NB = 16
    fine = True


cfg = Cfg()
nstamp = [0]
stamp_names = []
spin_names = []


def stamp(a, name):
    if not cfg.stamp or any(name.startswith(x) for x in cfg.skip):
        return
    k = nstamp[0]
    nstamp[0] += 1
    stamp_names.append(name)
    assert k < (50 if cfg.spin else 62)
    a('s_memtime s[58:59]')
    a('s_waitcnt lgkmcnt(0)')
    a(f'v_writelane_b32 v2, s58, {k}')


def role(a, dtok, dcol, e, nblk_bits, ncol_bits):
    cb = ncol_bits - e
    a('s_and_b32 s30, s2, 7')
    a('s_lshr_b32 s31, s2, 3')
    a(f's_lshr_b32 s32, s30, {e}')
    a(f's_lshl_b32 s32, s32, {nblk_bits - (3 - e)}')
    a(f's_lshr_b32 s33, s31, {cb}')
    a(f's_add_u32 s{dtok}, s32, s33')
    a(f's_and_b32 s32, s30, {(1 << e) - 1}')
    a(f's_lshl_b32 s32, s32, {cb}')
    a(f's_and_b32 s33, s31, {(1 << cb) - 1}')
    a(f's_add_u32 s{dcol}, s32, s33')


uid = [0]


def poll_wg(a, sflag, nlanes_mask, voff, target):
    uid[0] += 1
    u = uid[0]
    a('s_cmp_lg_u32 s3, 0')
    a(f's_cbranch_scc1 L_pw_done{u}')
    a(f's_mov_b64 exec, {nlanes_mask}')
    a(f's_mov_b32 s57, {SPIN}')
    a(f'L_pw{u}:')
    a(f'buffer_load_dword v3, {voff}, s[8:11], {sflag} {"offen " if voff != "off" else ""}sc1', raw=True)
    a('s_waitcnt vmcnt(0)', raw=True)
    a(f'v_cmp_ne_u32 vcc, {target}, v3', raw=True)
    a('s_sub_u32 s57, s57, 1')
    a(f's_cbranch_scc1 L_pw_out{u}')
    a(f's_cbranch_vccnz L_pw{u}')
    a(f'L_pw_out{u}:')
    a('s_mov_b64 exec, -1')
    a(f'L_pw_done{u}:')
    a('s_barrier')


def poll_issue(a, vreg, sflag):
    a(f'buffer_load_dword v{vreg}, off, s[8:11], {sflag} sc1')


def poll_check(a, vreg, sflag, target):
    uid[0] += 1
    u = uid[0]
    outer, a = a, Asm()
    a(f's_mov_b32 s57, {SPIN}')
    a(f'v_cmp_ne_u32 vcc, {target}, v{vreg}')
    a(f's_cbranch_vccz L_pc_ok{u}')
    a(f'L_pc{u}:')
    a(f'buffer_load_dword v{vreg}, off, s[8:11], {sflag} sc1', raw=True)
    a('s_waitcnt vmcnt(0)', raw=True)
    a(f'v_cmp_ne_u32 vcc, {target}, v{vreg}', raw=True)
    a('s_sub_u32 s57, s57, 1')
    a(f's_cbranch_scc1 L_pc_ok{u}')
    a(f's_cbranch_vccnz L_pc{u}')
    a(f'L_pc_ok{u}:')
    if cfg.stamp and cfg.spin:
        k = 63 - 2 - len(spin_names)
        spin_names.append(f'spin pc{u}')
        a(f's_sub_u32 s57, {SPIN}, s57')
        a(f'v_writelane_b32 v2, s57, {50 + len(spin_names) - 1}')
    outer.group(a)


def signal(a, sflag, vone, wave0_only=True):
    uid[0] += 1
    u = uid[0]
    outer, a = a, Asm()
    if wave0_only:
        a('s_cmp_lg_u32 s3, 0')
        a(f's_cbranch_scc1 L_sg{u}')
    a('s_mov_b64 exec, 1')
    a(f'buffer_atomic_add v{vone}, off, s[8:11], {sflag} sc1', raw=wave0_only)
    a('s_mov_b64 exec, -1')
    if wave0_only:
        a(f'L_sg{u}:')
    outer.group(a)


def wq_loc(f):
    if f < 16:
        return f'v[{192+4*f}:{195+4*f}]'
    if f < 24:
        return f'a[{224+4*(f-16)}:{227+4*(f-16)}]'
    if f < 40:
        return f'a[{160+4*(f-24)}:{163+4*(f-24)}]'
    return f'v[{160+4*(f-40)}:{163+4*(f-40)}]'


def p4_korder():
    return [[7 * c + T for T in st for c in range(4)] for st in cfg.stages]


def wd_loc(s, f):
    order = [k for g in p4_korder() for k in g]
    p = order.index(s)
    r = 160 + (2 * p + f) * 4 if p < 8 else (2 * (p - 8) + f) * 4
    return f'a[{r}:{r+3}]'


LDS_WO = 98304
LDS_TAB = 81920


def slot(T):
    return (T % 5) * 32768


def st_wqkv(fs):
    a = Asm()
    a('s_mul_i32 s40, s17, 49152')
    cur = None
    for f in fs:
        g = f >> 2
        if g != cur:
            a(f's_add_u32 s41, s40, {hx(WQKV_F + g * 4096)}')
            cur = g
        a(f'buffer_load_dwordx4 {wq_loc(f)}, v1, s[8:11], s41 offen offset:{1024*(f&3)}', tag='wq')
    return a


def st_wo():
    a = Asm()
    a('s_lshl_b32 s42, s19, 16')
    a('s_lshl_b32 s43, s3, 14')
    a('s_add_u32 s42, s42, s43')
    a(f's_add_u32 s42, s42, {hx(WO_F)}')
    a(f's_add_u32 s43, s43, {LDS_WO}')
    for g in range(4):
        a('s_mov_b32 m0, s43')
        for j in range(4):
            a(f'buffer_load_dwordx4 v1, s[8:11], s42 offen offset:{1024*j} lds', tag='wo')
        if g < 3:
            a('s_add_u32 s42, s42, 4096')
            a('s_add_u32 s43, s43, 4096')
    return a


def st_wgu(Ts):
    a = Asm()
    a('s_mul_i32 s44, s21, 229376')
    a('s_lshl_b32 s45, s3, 13')
    a('s_add_u32 s44, s44, s45')
    for T in Ts:
        for g in range(2):
            a(f's_add_u32 s46, s45, {slot(T) + g * 4096}')
            a(f's_add_u32 s47, s44, {hx(WGU_F + T * 32768 + g * 4096)}')
            a('s_mov_b32 m0, s46')
            for j in range(4):
                a(f'buffer_load_dwordx4 v1, s[8:11], s47 offen offset:{1024*j} lds', tag=f'wg{T}')
    return a


def st_csf():
    a = Asm()
    a('s_mul_i32 s48, s21, 7168')
    a(f's_add_u32 s48, s48, {hx(CSF)}')
    for T in range(7):
        if T == 4:
            a('s_add_u32 s48, s48, 4096')
        a(f'buffer_load_dwordx4 a[{224+4*T}:{227+4*T}], v1, s[8:11], s48 offen offset:{1024*(T&3)}', tag='csf')
    return a


def st_wd(positions):
    a = Asm()
    order = [k for g in p4_korder() for k in g]
    a('s_lshl_b32 s49, s23, 1')
    a('s_and_b32 s50, s3, 1')
    a('s_add_u32 s49, s49, s50')
    a('s_xor_b32 s50, s49, 1')
    a('s_mul_i32 s51, s3, 28672')
    a('s_mul_i32 s49, s49, 114688')
    a('s_mul_i32 s50, s50, 114688')
    a('s_add_u32 s49, s49, s51')
    a('s_add_u32 s50, s50, s51')
    for p in positions:
        s = order[p]
        for f in range(2):
            a(f's_add_u32 s51, s{49+f}, {hx(WD_F + s * 1024)}')
            a(f'buffer_load_dwordx4 {wd_loc(s, f)}, v1, s[8:11], s51 offen', tag='wd')
    return a


def st_touch(base, per_col, e, ncol_bits, dummy, sreg=64):
    a = Asm()
    if not cfg.touch:
        return a
    ncols = 1 << (ncol_bits - e)
    units = ncols * per_col // 8192
    a(f's_and_b32 s{sreg}, s2, {(1 << e) - 1}')
    a(f's_mul_i32 s{sreg}, s{sreg}, {ncols * per_col}')
    a(f's_add_u32 s{sreg}, s{sreg}, {hx(base)}')
    for i in range((units + 127) // 128):
        a(f's_add_u32 s{sreg+1}, s27, {128 * i}')
        a(f's_min_u32 s{sreg+1}, s{sreg+1}, {units - 1}')
        a(f's_lshl_b32 s{sreg+1}, s{sreg+1}, 13')
        a(f's_add_u32 s{sreg+1}, s{sreg+1}, s{sreg}')
        ins = a(f'buffer_load_dword v{dummy}, v0, s[60:63], s{sreg+1} idxen')
        ins.note = 'touch'
    return a


def t_wqkv(d): return st_touch(WQKV_F, 4 * 49152, cfg.e1, 3, d)
def t_wo(d): return st_touch(WO_F, 65536, cfg.e2, 3, d)
def t_wgu(d): return st_touch(WGU_F, 229376, cfg.e3, 4, d)
def t_wd(d): return st_touch(WD_F, 229376, cfg.e4, 3, d)


def mix(x, y):
    x = x.ins if isinstance(x, Asm) else x
    y = y.ins if isinstance(y, Asm) else y
    out = []
    i = j = 0
    while i < len(x) or j < len(y):
        if j >= len(y) or (i < len(x) and i * len(y) <= j * len(x)):
            out.append(x[i]); i += 1
        else:
            out.append(y[j]); j += 1
    return out


def cat(*xs):
    out = []
    for x in xs:
        out.extend(x.ins if isinstance(x, Asm) else x)
    return out


def split_mfma(lst, bounds):
    parts = [[] for _ in range(len(bounds) + 1)]
    m = 0
    for i in lst:
        parts[sum(1 for b in bounds if m >= b)].append(i)
        if i.kind == 'mfma':
            m += 1
    return parts


def vm_split(st, n):
    k = 0
    L = st.ins if isinstance(st, Asm) else st
    for idx, i in enumerate(L):
        if i.kind == 'vmem':
            k += 1
            if k == n:
                return L[:idx + 1], L[idx + 1:]
    return L, []


def p1(a, l):
    X = X0 if l == 0 else X2
    ST = STA[l]
    VH, VM_, VD, VC, VR = 5, 6, 7, 8, 9
    BI, SELA, SELB = 10, 16, 17
    CSQ, CSK, CSV = 18, 22, 26
    AK = lambda i: 28 + 12 * i - (4 if i else 0)
    AV = lambda i: AK(i) + 4
    AQ = lambda i: AK(i) + 8
    BR = 84
    KP, VP, QP = 100, 110, 118
    SC, CT = 127, 132
    SS, TT, PP = 28, 44, 52
    MM, OO, OS = 142, 146, 154
    NEG = f2u(-1e30)
    a('v_and_b32 v3, 15, v0')
    a('v_lshrrev_b32 v4, 4, v0')
    a(f'v_lshlrev_b32 v{VD}, 9, v4')
    a(f'v_lshl_add_u32 v{VD}, v3, 4, v{VD}')
    a(f'v_add_u32 v{VM_}, 65536, v1')
    a(f'v_lshlrev_b32 v{VC}, 3, v3')
    a(f'v_add_u32 v{VC}, {LDS_TAB}, v{VC}')
    a(f'v_lshlrev_b32 v{VR}, 5, v4')
    a(f'v_add_u32 v{VR}, {LDS_TAB}, v{VR}')
    a('s_lshl_b32 s30, s17, 6')
    a(f's_add_u32 s30, s30, {hx(CS_QKV)}')
    a('v_lshlrev_b32 v132, 4, v4')
    a('v_lshlrev_b32 v133, 2, v3')
    a(f'buffer_load_dwordx4 v[{CSQ}:{CSQ+3}], v132, s[8:11], s30 offen')
    a(f'buffer_load_dwordx4 v[{CSK}:{CSK+3}], v132, s[8:11], s30 offen offset:2048')
    a('s_add_u32 s30, s30, 4096')
    a(f'buffer_load_dword v{CSV}, v133, s[8:11], s30 offen')
    a('v_and_b32 v134, 1, v3')
    a('v_lshl_add_u32 v135, v4, 2, v134')
    a('v_add_u32 v136, 2, v135')
    a('v_add_u32 v137, 2, v3')
    a(f'v_mov_b32 v138, {hx(NEG)}')
    a('v_mov_b32 v139, 0')
    a('v_cmp_ge_u32 vcc, v135, v137')
    a(f'v_cndmask_b32 v{BI}, v138, v139, vcc')
    a('v_cmp_ge_u32 vcc, v136, v137')
    a(f'v_cndmask_b32 v{BI+1}, v138, v139, vcc')
    a('v_cmp_le_u32 vcc, v135, v3')
    a(f'v_cndmask_b32 v{BI+2}, v138, v139, vcc')
    a('v_cmp_le_u32 vcc, v136, v3')
    a(f'v_cndmask_b32 v{BI+3}, v138, v139, vcc')
    a('s_cmp_eq_u32 s16, 0')
    a('s_cselect_b64 s[30:31], -1, 0')
    a(f'v_cndmask_b32 v{BI+4}, v{BI}, v138, s[30:31]')
    a(f'v_cndmask_b32 v{BI+5}, v{BI+1}, v138, s[30:31]')
    a('v_mov_b32 v135, 0x0c0c0100')
    a('v_mov_b32 v136, 0x01000c0c')
    a(f'v_cndmask_b32 v{SELA}, v135, v136, s[28:29]')
    a('v_mov_b32 v135, 0x0c0c0302')
    a('v_mov_b32 v136, 0x03020c0c')
    a(f'v_cndmask_b32 v{SELB}, v135, v136, s[28:29]')
    a('v_lshlrev_b32 v140, 10, v4')
    a('v_lshl_add_u32 v140, v3, 3, v140')
    a('s_lshl_b32 s30, s16, 16')
    a('s_sub_u32 s31, s30, 32512')
    a('s_cmp_eq_u32 s16, 0')
    a('s_cselect_b32 s31, 0, s31')
    a('s_lshl_b32 s32, s3, 13')
    a('s_add_u32 s31, s31, s32')
    a(f's_add_u32 s31, s31, {hx(X)}')
    a('s_add_u32 s30, s30, s32')
    a(f's_add_u32 s30, s30, {hx(X)}')
    a('s_lshl_b32 s33, s16, 13')
    a('s_sub_u32 s34, s33, 3968')
    a('s_cmp_eq_u32 s16, 0')
    a('s_cselect_b32 s34, 0, s34')
    a(f's_add_u32 s34, s34, {hx(ST)}')
    a('s_lshr_b32 s35, s3, 1')
    a('s_lshl_b32 s35, s35, 12')
    a('s_and_b32 s36, s3, 1')
    a('s_lshl_b32 s36, s36, 7')
    a('s_add_u32 s33, s33, s35')
    a('s_add_u32 s33, s33, s36')
    a(f's_add_u32 s33, s33, {hx(ST)}')
    a('s_lshl_b32 s35, s3, 12')
    sc = ' sc1' if l else ''
    if l:
        a('s_sub_u32 s36, s16, 1')
        a('s_max_i32 s36, s36, 0')
        a('s_lshl_b32 s36, s36, 8')
        a(f's_add_u32 s36, s36, {hx(F4())}')
        a('s_cmp_eq_u32 s16, 0')
        a('s_cselect_b32 s37, 0, 256')
        a('v_mul_u32_u24 v141, s37, v0')
        stamp(a, f'p1.{l} prepoll')
        poll_wg(a, 's36', 3, 'v141', 8)
    stamp(a, f'p1.{l} start')
    S0 = 142

    def xdma(d, i):
        d(f's_add_u32 s37, s35, {16384 * i}')
        d('s_mov_b32 m0, s37')
        for j in range(4):
            if i == 0:
                so = 's31'
            else:
                so = 's39'
                d(f's_add_u32 s39, s30, {((i - 1) >> 1) * 32768 + ((i - 1) & 1) * 256 + 1024 * j}')
            d(f'buffer_load_dwordx4 v{VD}, s[8:11], {so} offen offset:{1024*j}{sc} lds', tag=f'x{i}')
            if i == 0 and j < 3:
                d('s_add_u32 s31, s31, 1024')
    d = Asm()
    xdma(d, 0)
    xdma(d, 1)
    for j in range(4):
        d(f'buffer_load_dwordx2 v[{S0+2*j}:{S0+1+2*j}], v140, s[8:11], s33 offen offset:{256*j}{sc}')
    for j in range(4):
        d(f'buffer_load_dwordx2 v[{S0+8+2*j}:{S0+9+2*j}], v140, s[8:11], s34 offen offset:{256*j}{sc}')
    for i in range(2, 5):
        xdma(d, i)
    st = Asm()
    for base in (S0, S0 + 8):
        for j in range(1, 4):
            st(f'v_add_f32 v{base}, v{base}, v{base+2*j}')
            st(f'v_add_f32 v{base+1}, v{base+1}, v{base+2*j+1}')
    for step in range(7):
        for base in (S0, S0 + 8):
            st([f'v_permlane16_swap_b32 v{base}, v{base+1}', f'v_add_f32 v{base}, v{base}, v{base+1}',
                f'v_mov_b32 v{base+1}, v{base}', f'v_permlane32_swap_b32 v{base}, v{base+1}',
                f'v_add_f32 v{base}, v{base}, v{base+1}', f'v_mov_b32 v{base+1}, v{base}',
                f'v_permlane16_swap_b32 v{base}, v{base+1}'][step])
    for base in (S0, S0 + 8):
        G.stat_finalize(st, base, base + 1, base + 2, 24)
    st('s_lshl_b32 s38, s3, 7')
    st(f'v_add_u32 v{S0+4}, s38, v{VC}')
    st(f'ds_write_b64 v{S0+4}, v[{S0}:{S0+1}] offset:128', tag='tab')
    st(f'ds_write_b64 v{VC}, v[{S0+8}:{S0+9}]', tag='tab')

    def gemm(seq, pre):
        g = Asm()
        D = 3

        def rd(idx):
            if idx in pre:
                g.extend(pre[idx])
            i, s = seq[idx]
            dst = BR + 4 * (idx & 3)
            off = i * 16384 + s * 1024
            g(f'ds_read_b128 v[{dst}:{dst+3}], v{1 if off < 65536 else VM_} offset:{off & 65535}')
        for idx in range(D):
            rd(idx)
        for idx, (i, s) in enumerate(seq):
            b = BR + 4 * (idx & 3)
            B = f'v[{b}:{b+3}]'
            acc = lambda r: f'v[{r}:{r+3}]'
            c = lambda r: acc(r) if s else '0'
            g(f'v_mfma_f32_16x16x32_bf16 {acc(AK(i))}, {wq_loc(3*s+1)}, {B}, {c(AK(i))}')
            last_b = idx + D < len(seq)
            if i == 0:
                g(f'v_mfma_f32_16x16x32_bf16 {acc(AV(i))}, {B}, {wq_loc(3*s+2)}, {c(AV(i))}')
                if last_b:
                    rd(idx + D)
            else:
                g(f'v_mfma_f32_16x16x32_bf16 {acc(AV(i))}, {B}, {wq_loc(3*s+2)}, {c(AV(i))}')
                if last_b:
                    rd(idx + D)
                g(f'v_mfma_f32_16x16x32_bf16 {acc(AQ(i))}, {wq_loc(3*s)}, {B}, {c(AQ(i))}')
        return g

    def epi(i):
        e = Asm()
        e(f'ds_read_b64 v[{CT}:{CT+1}], v{VC} offset:{128*i}')
        e(f'ds_read_b128 v[{CT+2}:{CT+5}], v{VR} offset:{128*i}')
        e(f'ds_read_b128 v[{CT+6}:{CT+9}], v{VR} offset:{128*i+16}')
        for v in range(4):
            e(f'v_fmac_f32 v{AK(i)+v}, v{CT+1}, v{CSK+v}')
        if i:
            for v in range(4):
                e(f'v_fmac_f32 v{AQ(i)+v}, v{CT+1}, v{CSQ+v}')
        for v in range(4):
            e(f'v_mul_f32 v{AK(i)+v}, v{CT}, v{AK(i)+v}')
        if i:
            e(f'v_mul_f32 v{SC+i}, s26, v{CT}')
            for dd in range(2):
                e(f'v_cvt_pk_bf16_f32 v{QP+2*i+dd}, v{AQ(i)+2*dd}, v{AQ(i)+2*dd+1}')
        for dd in range(2):
            e(f'v_cvt_pk_bf16_f32 v{KP+2*i+dd}, v{AK(i)+2*dd}, v{AK(i)+2*dd+1}')
        for v in range(4):
            e(f'v_fmac_f32 v{AV(i)+v}, v{CT+2+2*v+1}, v{CSV}')
        for v in range(4):
            e(f'v_mul_f32 v{AV(i)+v}, v{CT+2+2*v}, v{AV(i)+v}')
        for dd in range(2):
            e(f'v_cvt_pk_bf16_f32 v{VP+2*i+dd}, v{AV(i)+2*dd}, v{AV(i)+2*dd+1}')
        return e

    def attn(pr):
        e = Asm()
        tl = (1 + 2 * pr, 2 + 2 * pr)
        for u, i in enumerate(tl):
            e(f'v_mfma_f32_16x16x16_bf16 v[{SS+8*u}:{SS+8*u+3}], v[{KP+2*i-2}:{KP+2*i-1}], v[{QP+2*i}:{QP+2*i+1}], 0')
            e(f'v_mfma_f32_16x16x16_bf16 v[{SS+8*u+4}:{SS+8*u+7}], v[{KP+2*i}:{KP+2*i+1}], v[{QP+2*i}:{QP+2*i+1}], 0')
        if pr == 0:
            e('s_lshl_b32 s38, s16, 16')
            e('s_lshl_b32 s39, s17, 10')
            e('s_add_u32 s38, s38, s39')
            e(f's_add_u32 s38, s38, {hx(O_[l])}')
        else:
            e('s_add_u32 s38, s38, 32768')
        for u, i in enumerate(tl):
            for c in range(4):
                r = SS + 8 * u + 2 * c
                e(f'v_cndmask_b32 v{TT+4*u+c}, v{r}, v{r+1}, s[28:29]')
        for u, i in enumerate(tl):
            for c in range(4):
                bias = BI + c if not (i == 1 and c < 2) else BI + 4 + c
                e(f'v_fma_f32 v{TT+4*u+c}, v{TT+4*u+c}, v{SC+i}, v{bias}')
        for u in range(2):
            e(f'v_max3_f32 v{MM+u}, v{TT+4*u}, v{TT+4*u+1}, v{TT+4*u+2}')
        for u in range(2):
            e(f'v_max_f32 v{MM+u}, v{MM+u}, v{TT+4*u+3}')
        e(f'v_permlane16_swap_b32 v{MM}, v{MM+1}')
        e(f'v_max_f32 v{MM}, v{MM}, v{MM+1}')
        e(f'v_mov_b32 v{MM+1}, v{MM}')
        e(f'v_permlane32_swap_b32 v{MM}, v{MM+1}')
        e(f'v_max_f32 v{MM}, v{MM}, v{MM+1}')
        e(f'v_mov_b32 v{MM+1}, v{MM}')
        e(f'v_permlane16_swap_b32 v{MM}, v{MM+1}')
        for u in range(2):
            for c in range(4):
                e(f'v_sub_f32 v{TT+4*u+c}, v{TT+4*u+c}, v{MM+u}')
        for u in range(2):
            for c in range(4):
                e(f'v_exp_f32 v{TT+4*u+c}, v{TT+4*u+c}')
        for u, i in enumerate(tl):
            e(f'v_cvt_pk_bf16_f32 v{SS+8*u}, v{TT+4*u}, v{TT+4*u+1}')
            e(f'v_cvt_pk_bf16_f32 v{SS+8*u+1}, v{TT+4*u+2}, v{TT+4*u+3}')
            e(f'v_perm_b32 v{PP+4*u}, v{SS+8*u}, v{SS+8*u}, v{SELA}')
            e(f'v_perm_b32 v{PP+4*u+1}, v{SS+8*u}, v{SS+8*u}, v{SELB}')
            e(f'v_perm_b32 v{PP+4*u+2}, v{SS+8*u+1}, v{SS+8*u+1}, v{SELA}')
            e(f'v_perm_b32 v{PP+4*u+3}, v{SS+8*u+1}, v{SS+8*u+1}, v{SELB}')
            e(f'v_add_f32 v{MM+2+u}, v{TT+4*u}, v{TT+4*u+1}')
            e(f'v_add_f32 v{TT+4*u+2}, v{TT+4*u+2}, v{TT+4*u+3}')
            e(f'v_mfma_f32_16x16x32_bf16 v[{OO+4*u}:{OO+4*u+3}], v[{VP+2*i-2}:{VP+2*i+1}], v[{PP+4*u}:{PP+4*u+3}], 0')
            e(f'v_add_f32 v{MM+2+u}, v{MM+2+u}, v{TT+4*u+2}')
        S0_, S1_ = MM + 2, MM + 3
        e(f'v_permlane16_swap_b32 v{S0_}, v{S1_}')
        e(f'v_add_f32 v{S0_}, v{S0_}, v{S1_}')
        e(f'v_mov_b32 v{S1_}, v{S0_}')
        e(f'v_permlane32_swap_b32 v{S0_}, v{S1_}')
        e(f'v_add_f32 v{S0_}, v{S0_}, v{S1_}')
        e(f'v_rcp_f32 v{S0_}, v{S0_}')
        e(f'v_mov_b32 v{S1_}, v{S0_}')
        e(f'v_permlane16_swap_b32 v{S0_}, v{S1_}')
        for u in range(2):
            for v in range(4):
                e(f'v_mul_f32 v{OO+4*u+v}, v{OO+4*u+v}, v{S0_+u}')
        for u in range(2):
            for dd in range(2):
                e(f'v_cvt_pk_bf16_f32 v{OS+2*u+dd}, v{OO+4*u+2*dd}, v{OO+4*u+2*dd+1}')
        e(f'v_permlane16_swap_b32 v{OS}, v{OS+2}')
        e(f'v_permlane16_swap_b32 v{OS+1}, v{OS+3}')
        e(f'buffer_store_dwordx4 v[{OS}:{OS+3}], v1, s[8:11], s38 offen sc1', tag='ost')
        return e

    def bar(*tags, lg=()):
        b = Asm()
        b.waitvm(*tags)
        if lg:
            b.waitlgkm(*lg)
        b('s_barrier')
        return b

    pf = cat(st_wo(), st_wgu((0, 1)))
    if l == 0:
        w1, w2 = vm_split(st_wqkv(range(48)), 9)
        a.extend(d)
        a.extend(w1)
        stamp(a, 'p1.0 xissued')
        a.extend(st)
        stamp(a, 'p1.0 stats')
        seq = [(i, s) for s in range(16) for i in range(5)]
        g = gemm(seq, {0: bar('x0', 'x1', 'x2', 'x3', 'x4', lg=('tab',))})
        a.merge(g, cat(w2, *([t_wo(159), t_wgu(159)] if cfg.t0 else [])), 0, 14 * 13)
        stamp(a, 'p1.0 gemm')
        if cfg.t1:
            a.extend(t_wd(159))
        a('s_waitcnt lgkmcnt(0)')
        a('s_barrier')
        tail = cat(epi(0), epi(1), epi(2), attn(0), epi(3), epi(4), attn(1))
        pf = cat(pf, st_wd(range(8, 8 + cfg.wdearly)))
        pf1, rest = vm_split(pf, 34)
    else:
        d1, d2 = vm_split(d, 14)
        a.extend(d1)
        seq = [(i, s) for i in range(5) for s in range(16)]
        g = gemm(seq, {0: bar('x0'), 16: bar('x1'), 32: bar('x2', lg=('tab',)), 48: bar('x3'), 64: bar('x4')})
        parts = split_mfma(g.ins, (32, 80, 128, 176))
        d2a, d2b = vm_split(d2, 6)
        a.merge(parts[0], d2a, 0, 24)
        stamp(a, 'p1.1 st0')
        a.merge(parts[1], mix(d2b, st), 0, 36)
        stamp(a, 'p1.1 st1')
        a.merge(parts[2], cat(epi(0), epi(1), t_wgu(159)), 0, 48)
        stamp(a, 'p1.1 st2')
        at = attn(0).ins
        na = len(at) // 3
        a.merge(parts[3], cat(epi(2), at[:na]), 3, 48)
        stamp(a, 'p1.1 st3')
        a.merge(parts[4], cat(at[na:], epi(3)), 0, 48)
        stamp(a, 'p1.1 gemm')
        a('s_waitcnt lgkmcnt(0)')
        a('s_barrier')
        tail = cat(epi(4), attn(1))
        pf1, rest = vm_split(pf, 9)
    a.extend(mix(tail[:-6], pf1))
    a.extend(tail[-6:])
    stamp(a, f'p1.{l} stored')
    r1, r2 = vm_split(rest, 8)
    a.extend(r1)
    a('s_lshl_b32 s30, s16, 8')
    a(f's_add_u32 s30, s30, {hx(F1(l))}')
    a('v_mov_b32 v3, 1')
    a.waitvm('ost')
    a('s_barrier')
    signal(a, 's30', 3)
    stamp(a, f'p1.{l} signalled')
    a.extend(r2)


def p2(a, l):
    X = X0 if l == 0 else X2
    VD = 7
    BF, RS, AC, AR, PK = 28, 92, 100, 116, 148
    a(f'v_add_u32 v8, {LDS_WO}, v1')
    a('s_lshr_b32 s30, s3, 1')
    a('s_lshl_b32 s31, s18, 1')
    a('s_add_u32 s30, s30, s31')
    a('s_lshl_b32 s30, s30, 15')
    a('s_and_b32 s31, s3, 1')
    a('s_lshl_b32 s31, s31, 8')
    a('s_add_u32 s30, s30, s31')
    a(f's_add_u32 s31, s30, {hx(O_[l])}')
    a('s_lshl_b32 s32, s19, 12')
    a('s_add_u32 s30, s30, s32')
    a(f's_add_u32 s32, s30, {hx(X)}')
    a(f's_add_u32 s33, s30, {hx(X1_[l])}')
    a('s_lshl_b32 s34, s18, 8')
    a(f's_add_u32 s35, s34, {hx(F2(l))}')
    a(f's_add_u32 s34, s34, {hx(F1(l))}')
    a('s_lshl_b32 s36, s18, 2')
    a('s_add_u32 s36, s36, s3')
    a('s_lshl_b32 s36, s36, 10')
    a('s_lshl_b32 s37, s19, 7')
    a('s_add_u32 s36, s36, s37')
    a(f's_add_u32 s36, s36, {hx(STB[l])}')
    a('v_bfe_u32 v9, v0, 4, 1')
    a('v_lshlrev_b32 v9, 2, v9')
    a('v_and_b32 v10, 15, v0')
    a('v_lshl_add_u32 v9, v10, 3, v9')
    a.waitvm('wo')
    stamp(a, f'p2.{l} prepoll')
    poll_wg(a, 's34', 1, 'off', 8)
    stamp(a, f'p2.{l} start')
    sc = ' sc1'
    ld = Asm()
    for s in range(16):
        ld(f'buffer_load_dwordx4 v[{BF+4*s}:{BF+4*s+3}], v{VD}, s[8:11], s31 offen offset:{2048*(s&1)}{sc}')
        if s & 1 and s < 15:
            ld('s_add_u32 s31, s31, 4096')
    ld(f'buffer_load_dwordx4 v[{RS}:{RS+3}], v{VD}, s[8:11], s32 offen{sc}')
    ld(f'buffer_load_dwordx4 v[{RS+4}:{RS+7}], v{VD}, s[8:11], s32 offen offset:2048{sc}')
    l1, l2 = vm_split(ld, 10)
    a.extend(l1)
    g = Asm()

    def rd(idx):
        dd = AR + 4 * (idx & 7)
        g(f'ds_read_b128 v[{dd}:{dd+3}], v8 offset:{idx*1024}', tag=f'r{idx}')
    for idx in range(6):
        rd(idx)
    for idx in range(64):
        s, t = idx >> 2, idx & 3
        dd = AR + 4 * (idx & 7)
        c = f'v[{AC+4*t}:{AC+4*t+3}]'
        if idx & 1 == 0:
            g.waitlgkm(f'r{idx+1}')
        g(f'v_mfma_f32_16x16x32_bf16 {c}, v[{dd}:{dd+3}], v[{BF+4*s}:{BF+4*s+3}], {c if s else 0}')
        if idx + 6 < 64:
            rd(idx + 6)
    a.merge(g, l2, 0, 24)
    stamp(a, f'p2.{l} gemm')
    for p in range(2):
        for dd in range(4):
            r = AC + 8 * p + 2 * dd
            G.unpack_add(a, r, r + 1, RS + 4 * p + dd, 156)
            a(f'v_cvt_pk_bf16_f32 v{PK+4*p+dd}, v{r}, v{r+1}')
        a(f'buffer_store_dwordx4 v[{PK+4*p}:{PK+4*p+3}], v{VD}, s[8:11], s33 offen offset:{2048*p} sc1', tag='xst')
    a('v_mov_b32 v156, 0')
    a('v_mov_b32 v157, 0')
    for dd in range(8):
        a(f'v_dot2_f32_bf16 v156, v{PK+dd}, s25, v156')
    for dd in range(8):
        a(f'v_dot2_f32_bf16 v157, v{PK+dd}, v{PK+dd}, v157')
    a('v_permlane16_swap_b32 v156, v157')
    a('v_add_f32 v156, v156, v157')
    a('v_mov_b32 v157, v156')
    a('v_permlane32_swap_b32 v156, v157')
    a('v_add_f32 v156, v156, v157')
    a('buffer_store_dword v156, v9, s[8:11], s36 offen sc1', tag='xst')
    stamp(a, f'p2.{l} stored')
    a('s_barrier')
    w1, w2 = vm_split(st_wgu((2, 3, 4)), 8)
    a.extend(w1)
    a('v_mov_b32 v3, 1')
    a.waitvm('xst')
    a('s_barrier')
    signal(a, 's35', 3)
    stamp(a, f'p2.{l} signalled')
    a.extend(w2)


def p34(a, l):
    XF = 128
    ACC = [16, 32, 48]
    AR = 80
    TM = 112
    HP = 120
    MB = 124
    C0, C1, IA2 = 12, 13, 14
    a('v_and_b32 v4, 31, v0')
    a('v_lshrrev_b32 v5, 5, v0')
    a('v_lshrrev_b32 v6, 4, v4')
    a('v_lshlrev_b32 v6, 10, v6')
    a('v_lshl_add_u32 v6, v5, 9, v6')
    a('v_and_b32 v7, 15, v4')
    a('v_lshl_add_u32 v6, v7, 3, v6')
    a('v_add_u32 v8, 65536, v1')
    a('v_add_u32 v9, 0x20000, v1')
    a('v_lshlrev_b32 v10, 8, v0')
    a('s_lshl_b32 s30, s20, 2')
    a('s_add_u32 s30, s30, s3')
    a('s_lshl_b32 s31, s30, 15')
    a(f's_add_u32 s31, s31, {hx(X1_[l])}')
    a('s_lshl_b32 s32, s30, 11')
    a(f's_add_u32 s32, s32, {hx(STB[l])}')
    a('s_mul_i32 s33, s30, 114688')
    a('s_mul_i32 s34, s21, 7168')
    a('s_add_u32 s33, s33, s34')
    a(f's_add_u32 s33, s33, {hx(H_[l])}')
    a('s_lshl_b32 s34, s20, 9')
    a(f's_add_u32 s34, s34, {hx(F2(l))}')
    a('s_lshl_b32 s35, s20, 3')
    a('s_lshr_b32 s36, s3, 1')
    a('s_lshl_b32 s36, s36, 2')
    a('s_add_u32 s35, s35, s36')
    a('s_lshr_b32 s36, s21, 2')
    a('s_add_u32 s35, s35, s36')
    a('s_lshl_b32 s35, s35, 8')
    a('s_lshl_b32 s36, s22, 2')
    a('s_add_u32 s36, s36, s3')
    a('s_lshl_b32 s36, s36, 8')
    a.waitvm('wg0', 'wg1')
    stamp(a, f'p3.{l} prepoll')
    poll_wg(a, 's34', 3, 'v10', 8)
    stamp(a, f'p3.{l} start')
    ld = Asm()
    for j in range(4):
        ld(f'buffer_load_dwordx2 v[{TM+2*j}:{TM+1+2*j}], v6, s[8:11], s32 offen offset:{128*j} sc1')
    for s in range(32):
        ld(f'buffer_load_dwordx4 v[{XF+4*s}:{XF+4*s+3}], v1, s[8:11], s31 offen offset:{1024*(s&3)} sc1')
        if (s & 3) == 3 and s < 31:
            ld('s_add_u32 s31, s31, 4096')
    l1, l2 = vm_split(ld, 13)
    a.extend(l1)
    stt = Asm()
    for j in range(1, 4):
        stt(f'v_add_f32 v{TM}, v{TM}, v{TM+2*j}')
        stt(f'v_add_f32 v{TM+1}, v{TM+1}, v{TM+1+2*j}')
    stt(f'v_permlane32_swap_b32 v{TM}, v{TM+1}')
    stt(f'v_add_f32 v{TM}, v{TM}, v{TM+1}')
    stt(f'v_mov_b32 v{TM+1}, v{TM}')
    stt(f'v_permlane32_swap_b32 v{TM}, v{TM+1}')
    G.stat_finalize(stt, TM, TM + 1, TM + 2, 24)
    k0 = -2.0 * math.sqrt(2.0 / math.pi) * math.log2(math.e)
    k1 = k0 * 0.044715
    stt(f'v_and_b32 v{TM+4}, 0xffff0000, v{TM+1}')
    stt(f'v_mul_f32 v{TM+2}, v{TM}, v{TM}')
    stt(f'v_sub_f32 v{TM+1}, v{TM+1}, v{TM+4}')
    stt(f'v_mul_f32 v{C0}, {hx(f2u(k0))}, v{TM}')
    stt(f'v_and_b32 v{TM+5}, 0xffff0000, v{TM+1}')
    stt(f'v_mul_f32 v{TM+3}, v{TM+2}, v{TM}')
    stt(f'v_sub_f32 v{TM+1}, v{TM+1}, v{TM+5}')
    stt(f'v_mul_f32 v{C1}, {hx(f2u(k1))}, v{TM+3}')
    stt(f'v_rcp_f32 v{IA2}, v{TM+2}')
    stt('s_mov_b32 s37, 0x07060302')
    stt(f'v_perm_b32 v{MB}, v{TM+4}, v{TM+4}, s37')
    stt(f'v_perm_b32 v{MB+1}, v{TM+5}, v{TM+4}, s37')
    stt(f'v_perm_b32 v{MB+2}, v{TM+1}, v{TM+5}, s37')
    stt(f'v_mov_b32 v{MB+3}, 0')
    stt('v_cmp_gt_u32 vcc, 32, v0')
    for dd in range(3):
        stt(f'v_cndmask_b32 v{MB+dd}, v{MB+3}, v{MB+dd}, vcc')

    seq = [(T, s) for s in range(32) for T in range(2)] + [(T, 32) for T in range(2)]
    for T in range(2, 7):
        seq += [(T, s) for s in range(33)]
    rseq = [x for x in seq if x[1] < 32]
    g = Asm()
    D = 6
    rpos = {x: k for k, x in enumerate(rseq)}

    def rd(k):
        T, s = rseq[k]
        if (T, s) == (2, 0):
            g.waitvm('wg2', 'wg3', 'wg4')
            g('s_barrier')
        if (T, s) == (5, 0):
            g.waitvm('wg5', 'wg6')
            g('s_barrier')
        dd = AR + 4 * (k & 7)
        off = slot(T) + s * 1024
        base = 'v1' if off < 65536 else ('v8' if off < 131072 else 'v9')
        g(f'ds_read_b128 v[{dd}:{dd+3}], {base} offset:{off & 65535}', tag=f'r{k}')
    for k in range(D):
        rd(k)
    accof = {T: T % 3 for T in range(7)}
    for (T, s) in seq:
        ac = ACC[accof[T]]
        c = f'v[{ac}:{ac+15}]'
        if s == 32:
            g(f'v_mfma_f32_32x32x16_bf16 {c}, a[{224+4*T}:{227+4*T}], v[{MB}:{MB+3}], {c}')
            continue
        k = rpos[(T, s)]
        dd = AR + 4 * (k & 7)
        if k & 1 == 0 and k + 1 < len(rseq):
            g.waitlgkm(f'r{k+1}')
        g(f'v_mfma_f32_32x32x16_bf16 {c}, v[{dd}:{dd+3}], v[{XF+4*s}:{XF+4*s+3}], {c if s else 0}')
        if k + D < len(rseq):
            rd(k + D)

    def epi(T):
        e = Asm()
        ac = ACC[accof[T]]
        steps = [lambda x: f'v_mul_f32 v{TM+x}, v{ac+x}, v{ac+x}',
                 lambda x: f'v_fma_f32 v{TM+x}, v{TM+x}, v{C1}, v{C0}',
                 lambda x: f'v_mul_f32 v{TM+x}, v{TM+x}, v{ac+x}',
                 lambda x: f'v_exp_f32 v{TM+x}, v{TM+x}',
                 lambda x: f'v_mul_f32 v{ac+x}, v{ac+x}, v{ac+8+x}',
                 lambda x: f'v_fma_f32 v{TM+x}, v{TM+x}, v{IA2}, v{IA2}',
                 lambda x: f'v_rcp_f32 v{TM+x}, v{TM+x}',
                 lambda x: f'v_mul_f32 v{ac+x}, v{ac+x}, v{TM+x}']
        ev = sorted(((8 * x + [0, 1, 2, 3, 4, 13, 15, 25][k], x, k) for x in range(8) for k in range(8)))
        for _, x, k in ev:
            e(steps[k](x))
            if k == 7 and x & 1:
                e(f'v_cvt_pk_bf16_f32 v{HP+(x>>1)}, v{ac+x-1}, v{ac+x}')
        if T == 4:
            e('s_add_u32 s33, s33, 4096')
        e(f'buffer_store_dwordx4 v[{HP}:{HP+3}], v1, s[8:11], s33 offen offset:{1024*(T&3)} sc1', tag=f'h{T}')
        return e

    def sig(st):
        e = Asm()
        e(f's_add_u32 s38, s35, {hx(F3(l, st))}')
        e('v_mov_b32 v3, 1')
        e.waitvm(*[f'h{T}' for T in cfg.stages[st]])
        signal(e, 's38', 3, wave0_only=False)
        return e

    parts = split_mfma(g.ins, (66, 99, 132, 165, 198))
    a.merge(parts[0], cat(l2, st_csf(), stt), 0, 60)
    stamp(a, f'p3.{l} T01')
    a('s_barrier')
    epis = [epi(T) for T in range(7)]
    es = cat(*epis[:6])
    ne = len(es)
    cut = [ne * k // 5 for k in range(6)]
    ep = [es[cut[k]:cut[k + 1]] for k in range(5)]
    sig_at = {}
    wd_list = st_wd(range(8) if l else list(range(8)) + list(range(8 + cfg.wdearly, 28))).ins
    nwd = len(wd_list)
    extra = [cat(st_wgu((5, 6))), wd_list[:nwd // 2], wd_list[nwd // 2:], []]
    if l == 0:
        extra = [cat(st_wgu((5, 6))), wd_list[:nwd // 3], wd_list[nwd // 3:2 * nwd // 3],
                 cat(wd_list[2 * nwd // 3:], *([t_wqkv(15), t_wo(15)] if cfg.t2 else []))]
    def with_sig(lst, st, frac):
        k = int(len(lst) * frac)
        return lst[:k] + sig(st).ins + lst[k:]
    nst = len(cfg.stages)
    last_tile = [max(x) for x in cfg.stages]
    for k in range(4):
        lst = ep[k]
        for st in range(nst):
            pos = (last_tile[st] + 1) / 1.2 + 0.72
            if k <= pos < k + 1:
                lst = with_sig(lst, st, pos - k)
                sig_at[st] = k
        a.merge(parts[1 + k], mix(lst, extra[k]), 1 if k == 0 else 0, 33, cap=24)
        stamp(a, f'p3.{l} T{k+2}')

    BR, NB = 128, (cfg.NB if l == 1 else 16)
    ko = p4_korder()
    pseq = [(t, s) for st in range(len(ko) - 2) for t in (1, 0) for s in ko[st]]
    if len(ko[-1]) <= 4:
        pseq += [(t, s) for t in (1, 0) for st in (-2, -1) for s in ko[st]]
    else:
        pseq += [(t, s) for st in (-2, -1) for t in (1, 0) for s in ko[st]]
    stage_of = {s: st for st in range(len(ko)) for s in ko[st]}
    su = Asm()
    su('s_lshl_b32 s39, s22, 1')
    su('s_lshr_b32 s52, s3, 1')
    su('s_add_u32 s39, s39, s52')
    su('s_xor_b32 s52, s39, 1')
    su('s_mul_i32 s53, s3, 28672')
    su(f's_add_u32 s53, s53, {hx(H_[l])}')
    su('s_mul_i32 s54, s39, 114688')
    su('s_mul_i32 s55, s52, 114688')
    su('s_add_u32 s54, s54, s53')
    su('s_add_u32 s55, s55, s53')
    su(f's_add_u32 s56, s36, {hx(F3(l, 0))}')
    seen = set()

    def ldB(e, idx):
        t, s = pseq[idx]
        st = stage_of[s]
        if st not in seen:
            seen.add(st)
            e(f's_add_u32 s56, s36, {hx(F3(l, st))}') if False else None
            poll_check(e, 11, 's56', 8)
        dd = BR + 4 * (idx % NB)
        e(f's_add_u32 s53, s{55 if t else 54}, {s*1024}')
        e(f'buffer_load_dwordx4 v[{dd}:{dd+3}], v1, s[8:11], s53 offen sc1')
    PF = cfg.PF if l == 1 else 14
    lst = ep[4]
    for st in range(nst):
        pos = (last_tile[st] + 1) / 1.2 + 0.72
        if 4 <= pos < 5:
            lst = with_sig(lst, st, pos - 4)
            sig_at[st] = 4
    h1, h2 = lst[:len(lst) // 2], lst[len(lst) // 2:]
    s4a = Asm()
    s4a.extend(su)
    poll_issue(s4a, 11, 's56')
    p4a, p4b = split_mfma(parts[5], (16,))
    a.merge(p4a, mix(h1, s4a), 0, 16, cap=24)
    first = Asm()
    polled = set([0])

    def maybe_poll(e, j):
        if j < 56:
            st = stage_of[pseq[j][1]]
            if st not in polled:
                polled.add(st)
                e(f's_add_u32 s56, s36, {hx(F3(l, st))}')
                poll_issue(e, 11, 's56')
    for idx in range(14):
        ldB(first, idx)
        maybe_poll(first, idx + 4)
    a.merge(p4b, mix(h2, first), 0, 17, cap=24)
    stamp(a, f'p3.{l} T6')
    second = Asm()
    for idx in range(14, PF):
        ldB(second, idx)
        maybe_poll(second, idx + 4)
    a.extend(mix(epis[6], second))
    stamp(a, f'p4.{l} start')
    ACC4 = [32, 48, 64, 80]
    RS, PK = 96, 104
    a('v_lshlrev_b32 v6, 10, v5')
    a('v_lshl_add_u32 v6, v4, 4, v6')
    for u in range(1, 4):
        a(f's_xor_b32 s30, s3, {u}')
        a('s_mul_i32 s30, s30, 12288')
        a(f's_add_u32 s30, s30, {65536 + (u-1)*4096}')
        a(f'v_add_u32 v{6+u}, s30, v1')
    a('s_mul_i32 s30, s3, 12288')
    a('s_add_u32 s30, s30, 65536')
    a('v_add_u32 v10, s30, v1')
    a('s_lshl_b32 s30, s23, 1')
    a('s_and_b32 s31, s3, 1')
    a('s_add_u32 s30, s30, s31')
    a('s_lshl_b32 s31, s39, 15')
    a('s_lshl_b32 s32, s30, 11')
    a('s_add_u32 s31, s31, s32')
    a(f's_add_u32 s32, s31, {hx(X1_[l])}')

    def spill(e, u):
        for i in range(4):
            r = ACC4[u] + 4 * i
            e(f'ds_write_b128 v{6+u}, v[{r}:{r+3}] offset:{1024*i}', tag='sp')
    last1 = max(k for k, (t, s) in enumerate(pseq) if t == 1)
    started = set()
    wq_early = st_wqkv(range(24)).ins if l == 0 else []
    wq_vm = [k for k, i in enumerate(wq_early) if i.kind == 'vmem']
    wk = 0
    for idx, (t, s) in enumerate(pseq):
        dd = BR + 4 * (idx % NB)
        for f in (1, 0):
            u = 2 * t + f
            c = f'v[{ACC4[u]}:{ACC4[u]+15}]'
            a(f'v_mfma_f32_32x32x16_bf16 {c}, {wd_loc(s, f)}, v[{dd}:{dd+3}], {c if u in started else 0}')
            started.add(u)
            if f == 1:
                if idx + PF < 56:
                    ldB(a, idx + PF)
                    maybe_poll(a, idx + PF + 4)
                for st in range(nst):
                    if st not in sig_at and idx == (4 if last_tile[st] == 5 else 10):
                        a.extend(sig(st))
                if idx == 20:
                    a(f'buffer_load_dwordx4 v[{RS}:{RS+3}], v6, s[8:11], s32 offen sc1')
                    a(f'buffer_load_dwordx4 v[{RS+4}:{RS+7}], v6, s[8:11], s32 offen offset:512 sc1')
            else:
                if l == 1 and idx in (9, 23, 39):
                    stamp(a, f'p4.1 idx{idx}')
                if idx == last1 + 2:
                    spill(a, 2)
                if idx == last1 + 5:
                    spill(a, 3)
                if l == 0 and idx >= 56 - PF - 2 and wk < len(wq_vm):
                    for rep in range(2):
                        if wk < len(wq_vm):
                            lo = wq_vm[wk - 1] + 1 if wk else 0
                            a.extend(wq_early[lo:wq_vm[wk] + 1])
                            wk += 1
    stamp(a, f'p4.{l} gemm')
    spill(a, 1)
    for dd in range(8):
        G.unpack_add(a, ACC4[0] + 2 * dd, ACC4[0] + 2 * dd + 1, RS + dd, 112)
    a('s_waitcnt lgkmcnt(0)')
    a('s_barrier')
    stamp(a, f'p4.{l} bar')
    PR = 128
    for u in range(3):
        for i in range(4):
            r = PR + 16 * u + 4 * i
            a(f'ds_read_b128 v[{r}:{r+3}], v10 offset:{4096*u + 1024*i}')
    for u in range(3):
        for e in range(16):
            a(f'v_add_f32 v{ACC4[0]+e}, v{ACC4[0]+e}, v{PR+16*u+e}')
    for dd in range(8):
        a(f'v_cvt_pk_bf16_f32 v{PK+dd}, v{ACC4[0]+2*dd}, v{ACC4[0]+2*dd+1}')
    if l == 0:
        a(f's_add_u32 s32, s31, {hx(X2)}')
        a(f'buffer_store_dwordx4 v[{PK}:{PK+3}], v6, s[8:11], s32 offen sc1', tag='xst')
        a(f'buffer_store_dwordx4 v[{PK+4}:{PK+7}], v6, s[8:11], s32 offen offset:512 sc1', tag='xst')
        a('v_mov_b32 v112, 0')
        a('v_mov_b32 v113, 0')
        for dd in range(8):
            a(f'v_dot2_f32_bf16 v112, v{PK+dd}, s25, v112')
        for dd in range(8):
            a(f'v_dot2_f32_bf16 v113, v{PK+dd}, v{PK+dd}, v113')
        a('v_lshlrev_b32 v7, 2, v5')
        a('v_lshl_add_u32 v7, v4, 3, v7')
        a('s_lshl_b32 s32, s39, 12')
        a('s_lshl_b32 s33, s30, 8')
        a('s_add_u32 s32, s32, s33')
        a(f's_add_u32 s32, s32, {hx(STA[1])}')
        a('v_permlane32_swap_b32 v112, v113')
        a('v_add_f32 v112, v112, v113')
        a('buffer_store_dword v112, v7, s[8:11], s32 offen sc1', tag='xst')
        stamp(a, f'p4.{l} stored')
        rest = Asm()
        if wk < len(wq_vm):
            rest.extend(wq_early[(wq_vm[wk - 1] + 1 if wk else 0):])
        rest.extend(st_wqkv(range(24, 48)))
        r1, r2 = vm_split(rest, 8)
        a.extend(r1)
        a('s_lshl_b32 s30, s22, 8')
        a(f's_add_u32 s30, s30, {hx(F4())}')
        a('v_mov_b32 v3, 1')
        a.waitvm('xst')
        a('s_barrier')
        signal(a, 's30', 3)
        stamp(a, f'p4.{l} signalled')
        a.extend(r2)
    else:
        a('v_lshlrev_b32 v7, 5, v5')
        a('v_lshl_add_u32 v7, v4, 10, v7')
        a('s_lshl_b32 s32, s39, 15')
        a('s_lshl_b32 s33, s30, 6')
        a('s_add_u32 s32, s32, s33')
        a(f'buffer_store_dwordx4 v[{PK}:{PK+3}], v7, s[12:15], s32 offen')
        a(f'buffer_store_dwordx4 v[{PK+4}:{PK+7}], v7, s[12:15], s32 offen offset:16')
        stamp(a, f'p4.{l} stored')


def gen_main():
    a = Asm()
    name = 'main_kernel'
    header(a, name)
    a('s_load_dwordx2 s[4:5], s[0:1], 72')
    a('s_load_dwordx2 s[6:7], s[0:1], 56')
    a('v_lshrrev_b32 v3, 6, v0')
    a('v_and_b32 v0, 63, v0')
    a('v_readfirstlane_b32 s3, v3')
    a('v_lshlrev_b32 v1, 4, v0')
    if cfg.stamp:
        a('v_mov_b32 v2, 0')
        a('s_memrealtime s[70:71]')
    stamp(a, 'entry')
    role(a, 16, 17, cfg.e1, 5, 3)
    a('s_lshl_b32 s17, s17, 2')
    a('s_add_u32 s17, s17, s3')
    role(a, 18, 19, cfg.e2, 5, 3)
    role(a, 20, 21, cfg.e3, 4, 4)
    role(a, 22, 23, cfg.e4, 5, 3)
    a(f's_mov_b32 s24, {hx(f2u(1e-5))}')
    a(f's_mov_b32 s25, {hx(ONES)}')
    a(f's_mov_b32 s26, {hx(f2u(0.25 * math.log2(math.e)))}')
    a('s_mov_b32 s28, 0xaaaaaaaa')
    a('s_mov_b32 s29, 0xaaaaaaaa')
    srd(a, 8, 4, WS_BYTES)
    srd(a, 12, 6, 2048 * 1024)
    a('s_mov_b32 s60, s4')
    a('s_or_b32 s61, s5, 0x00800000')
    a(f's_mov_b32 s62, {hx(WS_BYTES // 128)}')
    a('s_mov_b32 s63, 0x00020000')
    a('s_lshr_b32 s27, s2, 3')
    a('s_lshl_b32 s27, s27, 2')
    a('s_add_u32 s27, s27, s3')
    for l in range(2):
        p1(a, l)
        p2(a, l)
        p34(a, l)
    if cfg.stamp:
        a('s_waitcnt vmcnt(0)')
        stamp(a, 'end')
        a('s_memrealtime s[72:73]')
        a('s_waitcnt lgkmcnt(0)')
        a('v_writelane_b32 v2, s70, 62')
        a('v_writelane_b32 v2, s72, 63')
        a('s_lshl_b32 s30, s2, 2')
        a('s_add_u32 s30, s30, s3')
        a('s_lshl_b32 s30, s30, 8')
        a(f's_add_u32 s30, s30, {hx(STAMPS)}')
        a('v_lshlrev_b32 v3, 2, v0')
        a('buffer_store_dword v2, v3, s[8:11], s30 offen')
    footer(a, name)
    return name, a.finish(), dict(vgpr=256, acc=256, lds=163840)


def gen_p0():
    name, txt, inf = G.gen_p0()
    inf['acc'] = 0
    z = f"""    s_lshl_b32 s3, s2, 11
    s_add_u32 s3, s3, {hx(FLAGS)}
    v_lshlrev_b32 v1, 3, v0
    v_mov_b32 v2, 0
    v_mov_b32 v3, 0
    buffer_store_dwordx2 v[2:3], v1, s[8:11], s3 offen
"""
    key = '    s_mov_b32 s11, 0x00020000\n'
    txt = txt.replace(key, key + z, 1)
    e = Asm()
    e('s_cmp_lt_u32 s2, 64')
    e(f's_cbranch_scc1 L_end_{name}')
    e('v_and_b32 v10, 0xffff0000, v8')
    e('v_sub_f32 v11, v8, v10')
    e('v_and_b32 v12, 0xffff0000, v11')
    e('v_sub_f32 v11, v11, v12')
    e('v_perm_b32 v16, v12, v10, s41')
    e('v_perm_b32 v17, v10, v11, s41')
    e('v_perm_b32 v18, v10, v12, s41')
    e('v_mov_b32 v19, 0')
    e('v_mov_b32 v20, 0')
    e('v_mov_b32 v21, 0')
    e('v_mov_b32 v22, 0')
    e('v_mov_b32 v23, 0')
    e('v_lshrrev_b32 v13, 4, v6')
    e('v_lshlrev_b32 v13, 10, v13')
    e('v_bfe_u32 v14, v6, 2, 1')
    e('v_lshl_add_u32 v13, v14, 7, v13')
    e('v_bfe_u32 v14, v6, 3, 1')
    e('v_lshl_add_u32 v13, v14, 6, v13')
    e('v_and_b32 v14, 3, v6')
    e('v_lshl_add_u32 v13, v14, 4, v13')
    e('s_lshl_b32 s26, s6, 11')
    e('s_add_u32 s26, s26, s7')
    e(f's_add_u32 s26, s26, {hx(CSF)}')
    e('buffer_store_dwordx4 v[16:19], v13, s[8:11], s26 offen')
    e('buffer_store_dwordx4 v[20:23], v13, s[8:11], s26 offen offset:512')
    e.auto_nops()
    key = f'L_end_{name}:\n'
    txt = txt.replace(key, e.text() + key, 1)
    return name, txt, inf


def main():
    path = sys.argv[1]
    for arg in sys.argv[2:]:
        k, v = arg.split('=')
        setattr(cfg, k, eval(v))
    ks = [gen_p0(), gen_main()]
    text = G.assemble(ks, [k[0] for k in ks])
    open(path, 'w').write(text)
    open(path + '.names', 'w').write(repr(stamp_names))
    print('wrote', path, len(text), 'bytes')


if __name__ == '__main__':
    main()
```

```python
import sys
import math
sys.path.insert(0, 'dev')
from asmlib import Asm, Ins
import gen1 as G
from gen1 import (WQKV_F, WO_F, WGU_F, WD_F, CS_QKV, X0, O_, X1_, X2, H_, STA, STB, WS_BYTES, ONES, f2u, hx, srd,
                  header, footer, NAME)

CSF = 0x760000
DUMMY = 0x2400000
FLAGS = 0x2300000
STAMPS = 0x3000000
SPIN = 100000


def F1(l): return FLAGS + (l * 32) * 256
def F2(l): return FLAGS + (64 + l * 32) * 256
def F4(): return FLAGS + 128 * 256
def F3(l, st): return FLAGS + (160 + (l * 7 + st) * 128) * 256


G0 = FLAGS + 1952 * 256
GWO, GGU, GWD, GWQ, GDUM = G0, G0 + 8 * 256, G0 + 24 * 256, G0 + 32 * 256, G0 + 40 * 256
LDS_SLAB = 81920
LDS_RING = 114688
LDS_CSR = 81920 + 1024


class Cfg:
    stamp = False
    e1 = 1
    e2 = 1
    e3 = 1
    e4 = 0
    stages = ((0, 1, 2), (3,), (4,), (5,), (6,))
    spin = False
    skip = ()
    touch = True
    wdearly = 14
    t0 = False
    t1 = False
    t2 = False
    only = None
    PF = 14
    NB = 16
    fine = True
    sx2 = (0, 0, 1, 1, 2)
    sx3 = (2, 3, 3, 4, 4)
    sld = (0, 1, 1, 2, 3, 3, 4, 5)
    sst = (7, 7, 8, 8, 9, 9, 10, 10)
    xp = 0
    ssc = ' sc1'
    npf0 = 34
    ntx = ''
    ntw = ''
    nts = ' nt'
    sg0 = 15
    g0pos = 0
    ssig = 14
    wsc = ' sc1'
    spoll = True
    PD = 8
    s5 = 4
    s6 = 10


cfg = Cfg()
nstamp = [0]
stamp_names = []
spin_names = []


def stamp(a, name):
    if not cfg.stamp or any(name.startswith(x) for x in cfg.skip):
        return
    k = nstamp[0]
    nstamp[0] += 1
    stamp_names.append(name)
    assert k < (50 if cfg.spin else 62)
    a('s_memtime s[58:59]')
    a('s_waitcnt lgkmcnt(0)')
    a(f'v_writelane_b32 v2, s58, {k}')


def role(a, dtok, dcol, e, nblk_bits, ncol_bits, t=(30, 31, 32, 33)):
    cb = ncol_bits - e
    T0, T1, T2, T3 = ('s%d' % x for x in t)
    a(f's_and_b32 {T0}, s2, 7')
    a(f's_lshr_b32 {T1}, s2, 3')
    a(f's_lshr_b32 {T2}, {T0}, {e}')
    a(f's_lshl_b32 {T2}, {T2}, {nblk_bits - (3 - e)}')
    a(f's_lshr_b32 {T3}, {T1}, {cb}')
    a(f's_add_u32 s{dtok}, {T2}, {T3}')
    a(f's_and_b32 {T2}, {T0}, {(1 << e) - 1}')
    a(f's_lshl_b32 {T2}, {T2}, {cb}')
    a(f's_and_b32 {T3}, {T1}, {(1 << cb) - 1}')
    a(f's_add_u32 s{dcol}, {T2}, {T3}')


uid = [0]


def poll_wg(a, sflag, nlanes_mask, voff, target):
    uid[0] += 1
    u = uid[0]
    a('s_cmp_lg_u32 s3, 0')
    a(f's_cbranch_scc1 L_pw_done{u}')
    a(f's_mov_b64 exec, {nlanes_mask}')
    a(f's_mov_b32 s57, {SPIN}')
    a(f'L_pw{u}:')
    a(f'buffer_load_dword v3, {voff}, s[8:11], {sflag} {"offen " if voff != "off" else ""}sc1', raw=True)
    a('s_waitcnt vmcnt(0)', raw=True)
    a(f'v_cmp_ne_u32 vcc, {target}, v3', raw=True)
    a('s_sub_u32 s57, s57, 1')
    a(f's_cbranch_scc1 L_pw_out{u}')
    a(f's_cbranch_vccnz L_pw{u}')
    a(f'L_pw_out{u}:')
    a('s_mov_b64 exec, -1')
    a(f'L_pw_done{u}:')
    a('s_barrier')


def poll_issue(a, vreg, sflag, scalar=False):
    if scalar:
        a(f's_load_dword s{scalar}, s[4:5], {sflag} glc')
    else:
        a(f'buffer_load_dword v{vreg}, off, s[8:11], {sflag} sc1')


def poll_check(a, vreg, sflag, target, scalar=False):
    uid[0] += 1
    u = uid[0]
    outer, a = a, Asm()
    a(f's_mov_b32 s57, {SPIN}')
    if scalar:
        a(f's_cmp_eq_u32 s{scalar}, {target}')
        a(f's_cbranch_scc1 L_pc_ok{u}')
    else:
        a(f'v_cmp_ne_u32 vcc, {target}, v{vreg}')
        a(f's_cbranch_vccz L_pc_ok{u}')
    a(f'L_pc{u}:')
    a(f'buffer_load_dword v{vreg}, off, s[8:11], {sflag} sc1', raw=True)
    a('s_waitcnt vmcnt(0)', raw=True)
    a(f'v_cmp_ne_u32 vcc, {target}, v{vreg}', raw=True)
    a('s_sub_u32 s57, s57, 1')
    a(f's_cbranch_scc1 L_pc_ok{u}')
    a(f's_cbranch_vccnz L_pc{u}')
    a(f'L_pc_ok{u}:')
    if cfg.stamp and cfg.spin:
        k = 63 - 2 - len(spin_names)
        spin_names.append(f'spin pc{u}')
        a(f's_sub_u32 s57, {SPIN}, s57')
        a(f'v_writelane_b32 v2, s57, {50 + len(spin_names) - 1}')
    outer.group(a)


def signal(a, sflag, vone, wave0_only=True):
    uid[0] += 1
    u = uid[0]
    outer, a = a, Asm()
    if wave0_only:
        a('s_cmp_lg_u32 s3, 0')
        a(f's_cbranch_scc1 L_sg{u}')
    a('s_mov_b64 exec, 1')
    a(f'buffer_atomic_add v{vone}, off, s[8:11], {sflag} sc1', raw=wave0_only)
    a('s_mov_b64 exec, -1')
    if wave0_only:
        a(f'L_sg{u}:')
    outer.group(a)


def wq_loc(f):
    if f < 16:
        return f'v[{192+4*f}:{195+4*f}]'
    if f < 24:
        return f'a[{224+4*(f-16)}:{227+4*(f-16)}]'
    if f < 40:
        return f'a[{160+4*(f-24)}:{163+4*(f-24)}]'
    return f'v[{160+4*(f-40)}:{163+4*(f-40)}]'


def p4_korder():
    return [[7 * c + T for T in st for c in range(4)] for st in cfg.stages]


def wd_loc(s, f):
    order = [k for g in p4_korder() for k in g]
    p = order.index(s)
    r = 160 + (2 * p + f) * 4 if p < 8 else (2 * (p - 8) + f) * 4
    return f'a[{r}:{r+3}]'


LDS_WO = 98304
LDS_TAB = 81920


def slot(T):
    return (T % 5) * 32768


def st_wqkv(fs):
    a = Asm()
    a('s_mul_i32 s40, s17, 49152')
    cur = None
    for f in fs:
        g = f >> 2
        if g != cur:
            a(f's_add_u32 s41, s40, {hx(WQKV_F + g * 4096)}')
            cur = g
        a(f'buffer_load_dwordx4 {wq_loc(f)}, v1, s[8:11], s41 offen offset:{1024*(f&3)}{cfg.wsc}', tag='wq')
    return a


def st_wo():
    a = Asm()
    a('s_lshl_b32 s42, s19, 16')
    a('s_lshl_b32 s43, s3, 14')
    a('s_add_u32 s42, s42, s43')
    a(f's_add_u32 s42, s42, {hx(WO_F)}')
    a(f's_add_u32 s43, s43, {LDS_WO}')
    for g in range(4):
        a('s_mov_b32 m0, s43')
        for j in range(4):
            a(f'buffer_load_dwordx4 v1, s[8:11], s42 offen offset:{1024*j}{cfg.wsc} lds', tag='wo')
        if g < 3:
            a('s_add_u32 s42, s42, 4096')
            a('s_add_u32 s43, s43, 4096')
    return a


def st_wgu(Ts):
    a = Asm()
    a('s_mul_i32 s44, s21, 229376')
    a('s_lshl_b32 s45, s3, 13')
    a('s_add_u32 s44, s44, s45')
    for T in Ts:
        for g in range(2):
            a(f's_add_u32 s46, s45, {slot(T) + g * 4096}')
            a(f's_add_u32 s47, s44, {hx(WGU_F + T * 32768 + g * 4096)}')
            a('s_mov_b32 m0, s46')
            for j in range(4):
                a(f'buffer_load_dwordx4 v1, s[8:11], s47 offen offset:{1024*j}{cfg.wsc} lds', tag=f'wg{T}')
    return a


CF = (124, 76)
MBZ = 64


def st_csf():
    a = Asm()
    a('s_lshl_b32 s48, s21, 11')
    a(f's_add_u32 s48, s48, {hx(CSF)}')
    for j in range(2):
        a(f'buffer_load_dwordx4 v[{CF[j]}:{CF[j]+3}], v1, s[8:11], s48 offen offset:{1024*j} sc1', tag='csf')
    return a


def st_wd(positions):
    a = Asm()
    order = [k for g in p4_korder() for k in g]
    a('s_lshl_b32 s49, s23, 1')
    a('s_and_b32 s50, s3, 1')
    a('s_add_u32 s49, s49, s50')
    a('s_xor_b32 s50, s49, 1')
    a('s_mul_i32 s51, s3, 28672')
    a('s_mul_i32 s49, s49, 114688')
    a('s_mul_i32 s50, s50, 114688')
    a('s_add_u32 s49, s49, s51')
    a('s_add_u32 s50, s50, s51')
    for p in positions:
        s = order[p]
        for f in range(2):
            a(f's_add_u32 s51, s{49+f}, {hx(WD_F + s * 1024)}')
            a(f'buffer_load_dwordx4 {wd_loc(s, f)}, v1, s[8:11], s51 offen{cfg.wsc}', tag='wd')
    return a


def mix(x, y):
    x = x.ins if isinstance(x, Asm) else x
    y = y.ins if isinstance(y, Asm) else y
    out = []
    i = j = 0
    while i < len(x) or j < len(y):
        if j >= len(y) or (i < len(x) and i * len(y) <= j * len(x)):
            out.append(x[i]); i += 1
        else:
            out.append(y[j]); j += 1
    return out


def cat(*xs):
    out = []
    for x in xs:
        out.extend(x.ins if isinstance(x, Asm) else x)
    return out


def split_mfma(lst, bounds):
    parts = [[] for _ in range(len(bounds) + 1)]
    m = 0
    for i in lst:
        parts[sum(1 for b in bounds if m >= b)].append(i)
        if i.kind == 'mfma':
            m += 1
    return parts


def vm_split(st, n):
    k = 0
    L = st.ins if isinstance(st, Asm) else st
    for idx, i in enumerate(L):
        if i.kind == 'vmem':
            k += 1
            if k == n:
                return L[:idx + 1], L[idx + 1:]
    return L, []


VX, VW, VT = 248, 249, 250


def grp(a, *lines, tag=None, raw=False):
    g = Asm()
    for x in lines:
        g(x, tag=tag if x.startswith('buffer_') or x.startswith('ds_') else None, raw=raw)
    a.group(g)


def front_early(a):
    a('s_lshl_b32 s35, s3, 2')
    a('v_lshrrev_b32 v3, 4, v0')
    a('v_add_u32 v3, s35, v3')
    a('v_and_b32 v4, 15, v0')
    a('v_xor_b32 v4, v4, v3')
    a(f'v_lshlrev_b32 v{VX}, 10, v3')
    a(f'v_lshl_add_u32 v{VX}, v4, 4, v{VX}')
    a('v_lshrrev_b32 v3, 3, v0')
    a('s_and_b32 s36, s3, 1')
    a('s_lshl_b32 s36, s36, 1')
    a('v_bfe_u32 v4, v0, 4, 1')
    a('v_or_b32 v4, s36, v4')
    a('v_bfe_u32 v5, v0, 1, 2')
    a('v_xor_b32 v4, v4, v5')
    a('s_lshl_b32 s36, s3, 3')
    a('v_add_u32 v3, s36, v3')
    a(f'v_mul_u32_u24 v{VW}, 3072, v3')
    a(f'v_lshl_add_u32 v{VW}, v4, 5, v{VW}')
    a('v_and_b32 v4, 1, v0')
    a(f'v_lshl_add_u32 v{VW}, v4, 4, v{VW}')
    a('s_lshl_b32 s35, s3, 10')
    a('s_lshl_b32 s30, s16, 16')
    a('s_sub_u32 s31, s30, 16384')
    a('s_max_i32 s31, s31, 0')
    a('s_lshr_b32 s32, s17, 2')
    a('s_lshl_b32 s32, s32, 7')
    a('s_and_b32 s52, s2, 7')
    a('s_lshr_b32 s53, s2, 4')
    a('s_lshl_b32 s53, s53, 3')
    a('s_add_u32 s52, s52, s53')
    a('s_lshl_b32 s52, s52, 1')
    a('s_bfe_u32 s53, s2, 0x10003')
    a('s_add_u32 s52, s52, s53')


def slab_role():
    a = Asm()
    a('s_mov_b32 s99, 0x00020000')
    a('s_mov_b32 s51, 0')
    a('s_mov_b32 s53, 0')
    a('s_mov_b32 s54, 0')
    a('s_cmp_lt_u32 s52, 48')
    a('s_cbranch_scc1 L_sl_qkv')
    a('s_cmp_lt_u32 s52, 64')
    a('s_cbranch_scc1 L_sl_wo')
    a('s_cmp_lt_u32 s52, 176')
    a('s_cbranch_scc1 L_sl_gu')
    a('s_mov_b32 s96, s84')
    a('s_mov_b32 s97, s85')
    a(f's_mov_b32 s98, {1792 * 1024}')
    a('s_cmp_ge_u32 s52, 240')
    a('s_cselect_b32 s36, 16, 0')
    a('s_sub_u32 s36, s52, s36')
    a('s_sub_u32 s36, s36, 176')
    a('s_lshr_b32 s37, s36, 4')
    a('s_and_b32 s36, s36, 15')
    a('s_mov_b32 s40, 1024')
    a(f's_mul_i32 s41, s37, {448 * 1024}')
    a(f's_mul_i32 s38, s3, {112 * 1024}')
    a('s_add_u32 s41, s41, s38')
    a('s_lshl_b32 s38, s36, 6')
    a('s_add_u32 s41, s41, s38')
    a('s_mul_i32 s43, s36, 114688')
    a('s_mul_i32 s38, s37, 28672')
    a('s_add_u32 s43, s43, s38')
    a('s_mul_i32 s38, s3, 7168')
    a('s_add_u32 s43, s43, s38')
    a(f's_add_u32 s43, s43, {hx(WD_F)}')
    a('s_mov_b32 s44, 1024')
    a('s_mov_b32 s45, 2048')
    a('s_mov_b32 s46, 256')
    a('s_mov_b32 s47, 512')
    a('s_mov_b32 s48, 16')
    a('s_mov_b32 s49, 32')
    a('s_mov_b32 s50, 8')
    a('s_mov_b32 s51, 16384')
    a('s_mov_b32 s53, 1024')
    a('s_lshr_b32 s36, s36, 1')
    a('s_lshl_b32 s36, s36, 8')
    a(f's_add_u32 s64, s36, {hx(GWD)}')
    a('s_cmp_ge_u32 s52, 240')
    a(f's_cselect_b32 s64, {hx(GDUM)}, s64')
    a('s_mov_b32 s65, s64')
    a('s_branch L_sl_go')
    a('L_sl_gu:')
    a('s_cmp_lt_u32 s52, 120')
    a('s_cselect_b32 s96, s80, s82')
    a('s_cselect_b32 s97, s81, s83')
    a('s_cselect_b32 s36, 64, 120')
    a('s_cselect_b32 s37, 0, 256')
    a(f's_mov_b32 s98, {512 * 3584}')
    a('s_sub_u32 s36, s52, s36')
    a('s_mov_b32 s40, 3584')
    a(f's_mul_i32 s41, s3, {128 * 3584}')
    a('s_lshl_b32 s38, s36, 6')
    a('s_add_u32 s41, s41, s38')
    a('s_lshl_b32 s43, s36, 16')
    a('s_add_u32 s43, s43, s37')
    a('s_lshl_b32 s38, s3, 13')
    a('s_add_u32 s43, s43, s38')
    a(f's_add_u32 s43, s43, {hx(WGU_F)}')
    a('s_mov_b32 s44, 1024')
    a('s_mov_b32 s45, 2048')
    a('s_mov_b32 s46, 32768')
    a('s_mov_b32 s47, 512')
    a('s_mov_b32 s48, 32')
    a('s_mov_b32 s49, 16')
    a('s_mov_b32 s50, 8')
    a('s_mov_b32 s54, 2')
    for e in range(2):
        a('s_lshl_b32 s38, s36, 1')
        a(f's_add_u32 s38, s38, {e}')
        a('s_mul_i32 s39, s38, 9363')
        a('s_lshr_b32 s39, s39, 16')
        a(f's_lshl_b32 s{64+e}, s39, 8')
        a(f's_add_u32 s{64+e}, s{64+e}, {hx(GGU)}')
        a(f's_lshl_b32 s{55+e}, s39, 11')
        a('s_mul_i32 s39, s39, 7')
        a('s_sub_u32 s38, s38, s39')
        a('s_lshr_b32 s39, s38, 1')
        a('s_lshl_b32 s39, s39, 9')
        a(f's_add_u32 s{55+e}, s{55+e}, s39')
        a('s_and_b32 s38, s38, 1')
        a('s_lshl_b32 s38, s38, 3')
        a(f's_add_u32 s{55+e}, s{55+e}, s38')
        a(f's_add_u32 s{55+e}, s{55+e}, s37')
        a(f's_add_u32 s{55+e}, s{55+e}, {hx(CSF)}')
    a('s_branch L_sl_go')
    a('L_sl_wo:')
    a('s_mov_b32 s96, s76')
    a('s_mov_b32 s97, s77')
    a(f's_mov_b32 s98, {512 * 1024}')
    a('s_sub_u32 s36, s52, 48')
    a('s_mov_b32 s40, 1024')
    a('s_lshl_b32 s41, s3, 17')
    a('s_lshl_b32 s38, s36, 6')
    a('s_add_u32 s41, s41, s38')
    a('s_lshr_b32 s37, s36, 1')
    a('s_lshl_b32 s43, s37, 16')
    a('s_and_b32 s38, s36, 1')
    a('s_lshl_b32 s38, s38, 11')
    a('s_add_u32 s43, s43, s38')
    a('s_lshl_b32 s38, s3, 14')
    a('s_add_u32 s43, s43, s38')
    a(f's_add_u32 s43, s43, {hx(WO_F)}')
    a('s_mov_b32 s44, 512')
    a('s_mov_b32 s45, 4096')
    a('s_mov_b32 s46, 1024')
    a('s_mov_b32 s47, 256')
    a('s_mov_b32 s48, 8')
    a('s_mov_b32 s49, 16')
    a('s_mov_b32 s50, 32')
    a('s_lshl_b32 s37, s37, 8')
    a(f's_add_u32 s64, s37, {hx(GWO)}')
    a('s_mov_b32 s65, s64')
    a('s_branch L_sl_go')
    a('L_sl_qkv:')
    a('s_mov_b32 s96, s74')
    a('s_mov_b32 s97, s75')
    a(f's_mov_b32 s98, {512 * 3072}')
    a('s_mov_b32 s40, 3072')
    a(f's_mul_i32 s41, s3, {128 * 3072}')
    a('s_lshl_b32 s38, s52, 6')
    a('s_add_u32 s41, s41, s38')
    a('s_and_b32 s36, s52, 15')
    a('s_mul_i32 s43, s36, 98304')
    a('s_lshr_b32 s38, s52, 4')
    a('s_lshl_b32 s38, s38, 10')
    a('s_add_u32 s43, s43, s38')
    a('s_mul_i32 s38, s3, 12288')
    a('s_add_u32 s43, s43, s38')
    assert WQKV_F == 0
    a('s_mov_b32 s44, 512')
    a('s_mov_b32 s45, 3072')
    a('s_mov_b32 s46, 49152')
    a('s_mov_b32 s47, 256')
    a('s_mov_b32 s48, 32')
    a('s_mov_b32 s49, 8')
    a('s_mov_b32 s50, 16')
    a('s_mov_b32 s54, 1')
    a('s_lshl_b32 s55, s52, 7')
    a(f's_add_u32 s55, s55, {hx(CS_QKV)}')
    a('s_add_u32 s56, s55, 64')
    a('s_lshr_b32 s36, s36, 1')
    a('s_lshl_b32 s36, s36, 8')
    a(f's_add_u32 s64, s36, {hx(GWQ)}')
    a('s_mov_b32 s65, s64')
    a('L_sl_go:')
    a('s_lshl_b32 s36, s2, 2')
    a('s_add_u32 s36, s36, s3')
    a('s_lshl_b32 s36, s36, 9')
    a(f's_add_u32 s36, s36, {hx(DUMMY)}')
    a('s_add_u32 s37, s36, 256')
    a('s_cmp_eq_u32 s3, 0')
    a('s_cselect_b32 s38, s54, 0')
    a('s_cmp_lg_u32 s38, 0')
    a('s_cselect_b32 s55, s55, s36')
    a('s_cselect_b32 s56, s56, s37')
    a('s_lshl_b32 s42, s40, 4')
    a('s_sub_u32 s51, s42, s51')
    a('s_lshl_b32 s66, s3, 13')
    a(f's_add_u32 s66, s66, {LDS_SLAB}')
    return a


def spin(a, name, load, cmp_):
    a(f's_mov_b32 s57, {SPIN}')
    a(cmp_, raw=True)
    a(f's_cbranch_vccz L_{name}_ok')
    a(f'L_{name}:')
    a(load, raw=True)
    a('s_waitcnt vmcnt(0)', raw=True)
    a(cmp_, raw=True)
    a('s_sub_u32 s57, s57, 1')
    a(f's_cbranch_scc1 L_{name}_ok')
    a(f's_cbranch_vccnz L_{name}')
    a(f'L_{name}_ok:')
    if cfg.stamp and cfg.spin:
        spin_names.append(name)
        a(f's_sub_u32 s57, {SPIN}, s57')
        a(f'v_writelane_b32 v2, s57, {50 + len(spin_names) - 1}')


VG, VGT, VZ = 254, 255, 216


def g0_check():
    a = Asm()
    a.waitvm('g0')
    g = Asm()
    g('s_cmp_lg_u32 s3, 0')
    g('s_cbranch_scc1 L_g0_skip')
    g('s_mov_b64 exec, 15')
    spin(g, 'g0', f'buffer_load_dword v{VZ}, v{VG}, s[8:11], 0 offen sc1', f'v_cmp_ne_u32 vcc, v{VGT}, v{VZ}')
    g('s_mov_b64 exec, -1')
    g('L_g0_skip:')
    a.group(g)
    return a


def front0(a, consts, AK, AV, AQ, CSQ, CSK, CSV, VC):
    VXR, VXR2, VXS = 140, 144, 148
    VSL, VST, VSS = 251, 252, 253
    VCA, VCS, VCW, VCR = 153, 154, 155, 156
    WS = lambda s, P: 160 + 12 * (s & 1) + 4 * P
    CSV4, ONE, SO, GO, SH, GH = 184, 188, 192, 196, 200, 204
    RX = [84, 88, 92, 96, 208, 212]
    SF = [224, 228, 232, 236]
    CSA, SEL = 240, 244
    q4 = lambda r: f'v[{r}:{r+3}]'

    def xd(d, kq, i):
        grp(d, f's_add_u32 m0, s35, {kq * 20480 + i * 4096}',
            f's_add_u32 s39, s{31 if i == 0 else 30}, {kq * 256 + max(i - 1, 0) * 16384}',
            f'buffer_load_dwordx4 v{VX}, s[60:63], s39 offen{cfg.ntx} lds', tag=f'x{kq}')

    def wd_(d, s):
        for P in (1, 2, 0):
            grp(d, f's_add_u32 m0, s35, {LDS_RING + (s & 3) * 12288 + P * 4096}',
                f's_add_u32 s39, s32, {s * 98304 + P * 1024}',
                f'buffer_load_dwordx4 v{VW}, s[92:95], s39 offen{cfg.ntw} lds', tag=f'w{s}')

    def tr(d, s):
        for P in (1, 2, 0):
            for u in range(2):
                r = WS(s, P) + 2 * u
                d(f'ds_read_b64_tr_b16 v[{r}:{r+1}], v{VT} offset:{(s & 3) * 12288 + P * 4096 + u * 512}', tag=f't{s}')

    def sld(d, u):
        if cfg.xp & 1:
            return
        grp(d, f's_add_u32 m0, s66, {u * 1024}',
            f'buffer_load_dwordx4 v{VSL}, s[96:99], s41 offen{cfg.nts} lds',
            f's_add_u32 s41, s41, s{51 if u == 6 else 42}', tag=f'sl{u}')

    def sst(d, u):
        r = SF[u & 3]
        d.waitvm(f'sl{u}')
        for h in range(2):
            d(f'ds_read_b64_tr_b16 v[{r+2*h}:{r+2*h+1}], v{VST} offset:{u * 1024 + h * 256}')
        e = Asm()
        if u & 1:
            e('s_add_u32 s67, s43, s44')
            if u == 7:
                e('s_sub_u32 s67, s67, s53')
            if not cfg.xp & 2:
                e(f'buffer_store_dwordx4 {q4(r)}, v{VSS}, s[8:11], s67 offen{cfg.ssc}', tag='slab')
            e('s_add_u32 s43, s43, s45')
        elif not cfg.xp & 2:
            e(f'buffer_store_dwordx4 {q4(r)}, v{VSS}, s[8:11], s43 offen{cfg.ssc}', tag='slab')
        e(f'v_mfma_f32_16x16x32_bf16 {q4(CSA)}, {q4(r)}, {q4(SEL)}, {q4(CSA) if u else 0}')
        return e

    z = Asm()
    z('s_cmp_lt_u32 s52, 240')
    z('s_cbranch_scc1 L_z_skip')
    z('s_cmp_gt_u32 s3, 1')
    z('s_cbranch_scc1 L_z_skip')
    z('s_sub_u32 s36, s52, 240')
    z('s_lshl_b32 s36, s36, 1')
    z('s_add_u32 s36, s36, s3')
    z('s_lshl_b32 s36, s36, 14')
    z(f's_add_u32 s36, s36, {hx(FLAGS)}')
    z('v_lshlrev_b32 v3, 8, v0')
    z('v_mov_b32 v4, 0')
    z('buffer_store_dword v4, v3, s[8:11], s36 offen sc1', raw=True)
    z('L_z_skip:')
    a.group(z)
    L = Asm()
    for i in range(5):
        xd(L, 0, i)
    for s in range(4):
        wd_(L, s)
    for i in range(5):
        xd(L, 1, i)
    S = Asm()
    S('v_and_b32 v132, 15, v0')
    S('v_lshrrev_b32 v133, 4, v0')
    S('v_lshrrev_b32 v134, 2, v132')
    S('v_lshl_add_u32 v135, v133, 3, v134')
    S(f'v_lshlrev_b32 v{VT}, 7, v135')
    S('v_bfe_u32 v135, v0, 3, 2')
    S('v_xor_b32 v135, s3, v135')
    S(f'v_lshl_add_u32 v{VT}, v135, 5, v{VT}')
    S('v_and_b32 v135, 3, v0')
    S(f'v_lshl_add_u32 v{VT}, v135, 3, v{VT}')
    S(f'v_add_u32 v{VT}, {LDS_RING}, v{VT}')
    S('s_lshl_b32 s38, s3, 12')
    S('s_add_u32 s38, s38, 4096')
    for j in range(4):
        S(f'v_add_u32 v135, {4 * j}, v133')
        S('v_xor_b32 v135, v135, v132')
        S(f'v_lshlrev_b32 v{VXR+j}, 8, v132')
        S(f'v_lshl_add_u32 v{VXR+j}, v135, 4, v{VXR+j}')
        S(f'v_add_u32 v{VXR2+j}, 61440, v{VXR+j}')
        S(f'v_add_u32 v{VXS+j}, s38, v{VXR+j}')
    for r in range(4):
        S(f'v_mov_b32 v{ONE+r}, s25')
    for (dt, dc, e, nb, nc) in ((18, 19, cfg.e2, 5, 3), (20, 21, cfg.e3, 4, 4), (22, 23, cfg.e4, 5, 3)):
        role(S, dt, dc, e, nb, nc, (36, 37, 38, 33))
    S.group(slab_role())
    S('v_lshrrev_b32 v135, 2, v0')
    S(f'v_mul_u32_u24 v{VSL}, s40, v135')
    S('v_and_b32 v135, 3, v0')
    S(f'v_lshl_add_u32 v{VSL}, v135, 4, v{VSL}')
    S('v_lshrrev_b32 v136, 5, v0')
    S('v_and_b32 v137, 1, v133')
    S('v_lshl_add_u32 v135, v136, 3, v134')
    S(f'v_lshlrev_b32 v{VST}, 6, v135')
    S(f'v_mad_u32_u24 v{VST}, v137, s48, v{VST}')
    S('v_and_b32 v135, 1, v0')
    S(f'v_mad_u32_u24 v{VST}, v135, s49, v{VST}')
    S('v_bfe_u32 v135, v0, 1, 1')
    S(f'v_mad_u32_u24 v{VST}, v135, s50, v{VST}')
    S(f'v_add_u32 v{VST}, s66, v{VST}')
    S(f'v_lshlrev_b32 v{VSS}, 4, v132')
    S(f'v_mad_u32_u24 v{VSS}, v137, s46, v{VSS}')
    S(f'v_mad_u32_u24 v{VSS}, v136, s47, v{VSS}')
    g = Asm()
    g('v_xor_b32 v135, v0, v133')
    g('v_and_b32 v135, 1, v135')
    g('v_cmp_eq_u32 vcc, 0, v135')
    g(f'v_cndmask_b32 v{SEL}, 0, v{ONE}, vcc')
    S.group(g)
    for r in range(1, 4):
        S(f'v_mov_b32 v{SEL+r}, v{SEL}')
    S(f'v_mov_b32 v{VCA}, s64')
    S(f'v_writelane_b32 v{VCA}, s65, 1')
    g = Asm()
    g('s_cmp_eq_u32 s54, 2')
    g('s_cselect_b32 s38, 16, 4')
    g(f'v_mul_u32_u24 v{VCS}, s38, v132')
    g('v_mov_b32 v135, s55')
    g('v_mov_b32 v136, s56')
    g('v_cmp_eq_u32 vcc, 0, v137')
    g('v_cndmask_b32 v135, v136, v135, vcc')
    g(f'v_add_u32 v{VCS}, v{VCS}, v135')
    S.group(g)
    S('v_and_b32 v135, 1, v0')
    S(f'v_lshlrev_b32 v{VCW}, 6, v135')
    S(f'v_lshl_add_u32 v{VCW}, v133, 4, v{VCW}')
    S('s_lshl_b32 s38, s3, 7')
    S(f's_add_u32 s38, s38, {LDS_CSR}')
    S(f'v_add_u32 v{VCW}, s38, v{VCW}')
    S('v_and_b32 v135, 31, v0')
    S(f'v_lshlrev_b32 v{VCR}, 2, v135')
    S(f'v_add_u32 v{VCR}, {LDS_CSR}, v{VCR}')
    for k, (sr_, base, tgt, sh) in enumerate(((19, GWO, 4, 0), (21, GGU, 14, 0), (23, GWD, 16, 0), (17, GWQ, 12, 2))):
        S(f's_lshr_b32 s38, s{sr_}, {sh}')
        S('s_lshl_b32 s38, s38, 8')
        S(f's_add_u32 s38, s38, {hx(base)}')
        if k == 0:
            S(f'v_mov_b32 v{VG}, s38')
            S(f'v_mov_b32 v{VGT}, {tgt}')
        else:
            S(f'v_writelane_b32 v{VG}, s38, {k}')
            S(f'v_writelane_b32 v{VGT}, {tgt}, {k}')
    for i in consts.ins:
        S.ins.append(i)
    a.extend(L.ins[:3])
    a.extend(mix(L.ins[3:], S))
    stamp(a, 'p1.0 issued')
    a.waitvm('w0')
    a('s_barrier')
    g = Asm()
    g('s_cmp_lt_u32 s52, 240')
    g('s_cbranch_scc1 L_zf_skip')
    g('s_cmp_lg_u32 s3, 0')
    g('s_cbranch_scc1 L_zf_skip')
    g('s_sub_u32 s36, s52, 240')
    g('s_lshl_b32 s36, s36, 2')
    g('v_mov_b32 v135, 1')
    g('s_mov_b64 exec, 1')
    g('buffer_store_dword v135, off, s[88:91], s36 sc1', raw=True)
    g('s_mov_b64 exec, -1')
    g('L_zf_skip:')
    a.group(g)
    tr(a, 0)
    stamp(a, 'p1.0 first')

    groups = []
    mf = lambda d, x, y, first: f'v_mfma_f32_16x16x32_bf16 {q4(d)}, {x}, {y}, {0 if first else q4(d)}'
    for s in range(16):
        kq, j = s >> 2, s & 3
        for i in range(5):
            off = kq * 20480 + i * 4096
            ad = (VXR + j, off) if off < 65536 else (VXR2 + j, off - 61440)

            def f(B, s=s, i=i):
                r = [mf(AK(i), q4(WS(s, 1)), B, s == 0), mf(AV(i), B, q4(WS(s, 2)), s == 0)]
                if i:
                    r.append(mf(AQ(i), q4(WS(s, 0)), B, s == 0))
                return r
            groups.append((s, ad, f))
        groups.append((s, None, lambda B, s=s: [mf(CSK, q4(WS(s, 1)), q4(ONE), s == 0), mf(CSV4, q4(ONE), q4(WS(s, 2)), s == 0),
                                                mf(CSQ, q4(WS(s, 0)), q4(ONE), s == 0)]))
        if 2 <= s < 10:
            for sg in (2 * s - 4, 2 * s - 3):
                for (base, sm, gr) in ((VXS, SO, GO), (VXR, SH, GH)):
                    groups.append((s, (base + (sg & 3), (sg >> 2) * 20480),
                                   lambda B, sg=sg, sm=sm, gr=gr: [mf(sm, q4(ONE), B, sg == 0), mf(gr, B, B, sg == 0)]))
    rd_groups = [k for k, x in enumerate(groups) if x[1]]
    ring = {k: RX[n % len(RX)] for n, k in enumerate(rd_groups)}
    D = 4
    nxt = [0]

    def rd(g):
        if nxt[0] < len(rd_groups):
            k = rd_groups[nxt[0]]
            g(f'ds_read_b128 {q4(ring[k])}, v{groups[k][1][0]} offset:{groups[k][1][1]}')
            nxt[0] += 1
    for _ in range(D):
        rd(a)
    prim = [Asm() for _ in range(16)]
    trs = []
    for s in range(16):
        t_ = Asm()
        if s < 15:
            tr(t_, s + 1)
        trs.append(t_.ins)
    for k, (s, ad, f) in enumerate(groups):
        ms = f(q4(ring[k]) if ad else None)
        for n, m in enumerate(ms):
            prim[s](m)
            if ad and n == 1:
                rd(prim[s])
            elif trs[s]:
                prim[s].ins.append(trs[s].pop(0))

    fin = Asm()
    fin('s_mov_b32 s58, 0xcccccccc')
    fin('s_mov_b32 s59, 0xcccccccc')
    for gr in (GO, GH):
        fin(f'v_cndmask_b32 v{gr}, v{gr}, v{gr+1}, s[28:29]')
        fin(f'v_cndmask_b32 v{gr+2}, v{gr+2}, v{gr+3}, s[28:29]')
        fin(f'v_cndmask_b32 v{gr}, v{gr}, v{gr+2}, s[58:59]')
    fin(f'v_mov_b32 v{SO+1}, v{GO}')
    fin(f'v_mov_b32 v{SH+1}, v{GH}')
    for base in (SO, SH):
        G.stat_finalize(fin, base, base + 1, base + 2, 24)
    fin('s_lshl_b32 s38, s3, 7')
    fin(f'v_add_u32 v{GO}, s38, v{VC}')
    grp(fin, 's_mov_b32 exec_lo, 0x00f0000f', 's_mov_b32 exec_hi, 0xf0000f00',
        f'ds_write_b64 v{GO}, v[{SO}:{SO+1}] offset:128', f'ds_write_b64 v{VC}, v[{SH}:{SH+1}]',
        's_mov_b64 exec, -1', tag='tab')
    cw = Asm()
    grp(cw, 's_mov_b32 exec_lo, 0x00030003', 's_mov_b32 exec_hi, 0x00030003',
        f'ds_write_b128 v{VCW}, {q4(CSA)}', 's_mov_b64 exec, -1', tag='csw')
    cr = Asm()
    for w in range(4):
        cr(f'ds_read_b32 v{CSA+w}, v{VCR} offset:{128 * w}')
    cr(f'v_add_f32 v{CSA}, v{CSA}, v{CSA+1}')
    cr(f'v_add_f32 v{CSA+2}, v{CSA+2}, v{CSA+3}')
    cr(f'v_add_f32 v{CSA}, v{CSA}, v{CSA+2}')
    cr(f'v_cvt_pk_bf16_f32 v{CSA+3}, v{CSA}, v{CSA}')
    cr(f'v_and_b32 v{CSA+1}, 0xffff0000, v{CSA+3}')
    cr(f'v_sub_f32 v{CSA+2}, v{CSA}, v{CSA+1}')
    cr(f'v_and_b32 v{CSA+3}, 0xffff, v{CSA+3}')
    cr(f'v_cvt_pk_bf16_f32 v{CSA+2}, v{CSA+1}, v{CSA+2}')
    g = Asm()
    g('s_cmp_eq_u32 s54, 2')
    g('s_cbranch_scc1 L_cs_gu')
    g(f'buffer_store_dword v{CSA}, v{VCS}, s[8:11], 0 offen sc1', raw=True)
    g('s_branch L_cs_done')
    g('L_cs_gu:')
    g(f'buffer_store_dwordx2 v[{CSA+2}:{CSA+3}], v{VCS}, s[8:11], 0 offen sc1', tag='slab')
    g('L_cs_done:')
    if not cfg.xp & 1:
        cr.group(g)
    zl = Asm()
    grp(zl, 's_mov_b64 exec, 0xffff', f'v_lshlrev_b32 v{VZ+5}, 2, v0',
        f'buffer_load_dword v{VZ}, v{VZ+5}, s[88:91], 0 offen sc1', 's_mov_b64 exec, -1', tag='z')
    sg_ = Asm()
    sg_('s_cmp_lg_u32 s3, 0')
    sg_('s_cbranch_scc1 L_sig0_skip')
    sg_('s_mov_b64 exec, 0xffff')
    spin(sg_, 'zchk', f'buffer_load_dword v{VZ}, v{VZ+5}, s[88:91], 0 offen sc1', f'v_cmp_ne_u32 vcc, 1, v{VZ}')
    sg_('s_mov_b64 exec, 3')
    sg_(f'v_mov_b32 v{VZ}, 1')
    sg_(f'buffer_atomic_add v{VZ}, v{VCA}, s[8:11], 0 offen sc1', raw=True)
    sg_('s_mov_b64 exec, -1')
    sg_('L_sig0_skip:')
    gl = Asm()
    grp(gl, 's_mov_b64 exec, 15', f'buffer_load_dword v{VZ}, v{VG}, s[8:11], 0 offen sc1', 's_mov_b64 exec, -1', tag='g0')

    last_st = max(cfg.sst)
    for s in range(16):
        tags = [f'w{s+1}'] + {3: ['x1'], 6: ['x2'], 8: ['x3']}.get(s, [])
        if s == cfg.ssig:
            tags += ['slab', 'z']
        a.waitvm(*tags)
        a.waitlgkm(f't{s}', 'tab', 'csw')
        a('s_barrier')
        if s == cfg.ssig:
            a.group(sg_)
        sec = Asm()
        late = Asm()
        for u in range(8):
            if cfg.sst[u] == s:
                late.extend(sst(sec, u))
        ld = Asm()
        if s + 4 < 16:
            wd_(ld, s + 4)
        for i in range(5):
            if cfg.sx2[i] == s:
                xd(ld, 2, i)
            if cfg.sx3[i] == s:
                xd(ld, 3, i)
        for u in range(8):
            if cfg.sld[u] == s:
                sld(ld, u)
        oth = Asm()
        if s == last_st + 1:
            oth.extend(cw)
        if s == last_st + 2:
            oth.extend(cr)
            oth.extend(zl)
        if s == 11:
            oth.extend(fin)
        if s == cfg.sg0:
            oth.extend(gl)
        nm = sum(1 for i in prim[s].ins if i.kind == 'mfma')
        a.merge(prim[s], cat(mix(sec, ld), mix(oth, late)), 0, nm - 1)
        if s in (3, 7, 11):
            stamp(a, f'p1.0 s{s}')
    stamp(a, 'p1.0 gemm')
    a(f'v_mov_b32 v{CSV}, v{CSV4}')
    return sg_, gl


def p1(a, l):
    X = X0 if l == 0 else X2
    ST = STA[l]
    VH, VM_, VD, VC, VR = 5, 6, 7, 8, 9
    BI, SELA, SELB = 10, 16, 17
    CSQ, CSK, CSV = 18, 22, 26
    AK = lambda i: 28 + 12 * i - (4 if i else 0)
    AV = lambda i: AK(i) + 4
    AQ = lambda i: AK(i) + 8
    BR = 84
    KP, VP, QP = 100, 110, 118
    SC, CT = 127, 132
    SS, TT, PP = 28, 44, 52
    MM, OO, OS = 142, 146, 154
    NEG = f2u(-1e30)
    outer = a
    a = Asm()
    a('v_and_b32 v3, 15, v0')
    a('v_lshrrev_b32 v4, 4, v0')
    a(f'v_lshlrev_b32 v{VD}, 9, v4')
    a(f'v_lshl_add_u32 v{VD}, v3, 4, v{VD}')
    a(f'v_add_u32 v{VM_}, 65536, v1')
    a(f'v_lshlrev_b32 v{VC}, 3, v3')
    a(f'v_add_u32 v{VC}, {LDS_TAB}, v{VC}')
    a(f'v_lshlrev_b32 v{VR}, 5, v4')
    a(f'v_add_u32 v{VR}, {LDS_TAB}, v{VR}')
    if l:
        a('s_lshl_b32 s30, s17, 6')
        a(f's_add_u32 s30, s30, {hx(CS_QKV)}')
        a('v_lshlrev_b32 v132, 4, v4')
        a('v_lshlrev_b32 v133, 2, v3')
        a(f'buffer_load_dwordx4 v[{CSQ}:{CSQ+3}], v132, s[8:11], s30 offen sc1')
        a(f'buffer_load_dwordx4 v[{CSK}:{CSK+3}], v132, s[8:11], s30 offen offset:2048 sc1')
        a('s_add_u32 s30, s30, 4096')
        a(f'buffer_load_dword v{CSV}, v133, s[8:11], s30 offen sc1')
    a('v_and_b32 v134, 1, v3')
    a('v_lshl_add_u32 v135, v4, 2, v134')
    a('v_add_u32 v136, 2, v135')
    a('v_add_u32 v137, 2, v3')
    a(f'v_mov_b32 v138, {hx(NEG)}')
    a('v_mov_b32 v139, 0')
    a('v_cmp_ge_u32 vcc, v135, v137')
    a(f'v_cndmask_b32 v{BI}, v138, v139, vcc')
    a('v_cmp_ge_u32 vcc, v136, v137')
    a(f'v_cndmask_b32 v{BI+1}, v138, v139, vcc')
    a('v_cmp_le_u32 vcc, v135, v3')
    a(f'v_cndmask_b32 v{BI+2}, v138, v139, vcc')
    a('v_cmp_le_u32 vcc, v136, v3')
    a(f'v_cndmask_b32 v{BI+3}, v138, v139, vcc')
    grp(a, 's_cmp_eq_u32 s16, 0', 's_cselect_b64 s[58:59], -1, 0')
    a(f'v_cndmask_b32 v{BI+4}, v{BI}, v138, s[58:59]')
    a(f'v_cndmask_b32 v{BI+5}, v{BI+1}, v138, s[58:59]')
    a('v_mov_b32 v135, 0x0c0c0100')
    a('v_mov_b32 v136, 0x01000c0c')
    a(f'v_cndmask_b32 v{SELA}, v135, v136, s[28:29]')
    a('v_mov_b32 v135, 0x0c0c0302')
    a('v_mov_b32 v136, 0x03020c0c')
    a(f'v_cndmask_b32 v{SELB}, v135, v136, s[28:29]')
    consts = a
    a = outer
    S0 = 142
    if l:
        a.extend(consts)
        a('v_lshlrev_b32 v140, 10, v4')
        a('v_lshl_add_u32 v140, v3, 3, v140')
        a('s_lshl_b32 s30, s16, 16')
        a('s_sub_u32 s31, s30, 32512')
        a('s_cmp_eq_u32 s16, 0')
        a('s_cselect_b32 s31, 0, s31')
        a('s_lshl_b32 s32, s3, 13')
        a('s_add_u32 s31, s31, s32')
        a(f's_add_u32 s31, s31, {hx(X)}')
        a('s_add_u32 s30, s30, s32')
        a(f's_add_u32 s30, s30, {hx(X)}')
        a('s_lshl_b32 s33, s16, 13')
        a('s_sub_u32 s34, s33, 3968')
        a('s_cmp_eq_u32 s16, 0')
        a('s_cselect_b32 s34, 0, s34')
        a(f's_add_u32 s34, s34, {hx(ST)}')
        a('s_lshr_b32 s35, s3, 1')
        a('s_lshl_b32 s35, s35, 12')
        a('s_and_b32 s36, s3, 1')
        a('s_lshl_b32 s36, s36, 7')
        a('s_add_u32 s33, s33, s35')
        a('s_add_u32 s33, s33, s36')
        a(f's_add_u32 s33, s33, {hx(ST)}')
        a('s_lshl_b32 s35, s3, 12')
        sc = ' sc1'
        a('s_sub_u32 s36, s16, 1')
        a('s_max_i32 s36, s36, 0')
        a('s_lshl_b32 s36, s36, 8')
        a(f's_add_u32 s36, s36, {hx(F4())}')
        a('s_cmp_eq_u32 s16, 0')
        a('s_cselect_b32 s37, 0, 256')
        a('v_mul_u32_u24 v141, s37, v0')
        stamp(a, f'p1.{l} prepoll')
        poll_wg(a, 's36', 3, 'v141', 8)
        stamp(a, f'p1.{l} start')

        def xdma(d, i):
            d(f's_add_u32 s37, s35, {16384 * i}')
            d('s_mov_b32 m0, s37')
            for j in range(4):
                if i == 0:
                    so = 's31'
                else:
                    so = 's39'
                    d(f's_add_u32 s39, s30, {((i - 1) >> 1) * 32768 + ((i - 1) & 1) * 256 + 1024 * j}')
                d(f'buffer_load_dwordx4 v{VD}, s[8:11], {so} offen offset:{1024*j}{sc} lds', tag=f'x{i}')
                if i == 0 and j < 3:
                    d('s_add_u32 s31, s31, 1024')
        d = Asm()
        xdma(d, 0)
        xdma(d, 1)
        for j in range(4):
            d(f'buffer_load_dwordx2 v[{S0+2*j}:{S0+1+2*j}], v140, s[8:11], s33 offen offset:{256*j}{sc}')
        for j in range(4):
            d(f'buffer_load_dwordx2 v[{S0+8+2*j}:{S0+9+2*j}], v140, s[8:11], s34 offen offset:{256*j}{sc}')
        for i in range(2, 5):
            xdma(d, i)
        st = Asm()
        for base in (S0, S0 + 8):
            for j in range(1, 4):
                st(f'v_add_f32 v{base}, v{base}, v{base+2*j}')
                st(f'v_add_f32 v{base+1}, v{base+1}, v{base+2*j+1}')
        for step in range(7):
            for base in (S0, S0 + 8):
                st([f'v_permlane16_swap_b32 v{base}, v{base+1}', f'v_add_f32 v{base}, v{base}, v{base+1}',
                    f'v_mov_b32 v{base+1}, v{base}', f'v_permlane32_swap_b32 v{base}, v{base+1}',
                    f'v_add_f32 v{base}, v{base}, v{base+1}', f'v_mov_b32 v{base+1}, v{base}',
                    f'v_permlane16_swap_b32 v{base}, v{base+1}'][step])
        for base in (S0, S0 + 8):
            G.stat_finalize(st, base, base + 1, base + 2, 24)
        st('s_lshl_b32 s38, s3, 7')
        st(f'v_add_u32 v{S0+4}, s38, v{VC}')
        st(f'ds_write_b64 v{S0+4}, v[{S0}:{S0+1}] offset:128', tag='tab')
        st(f'ds_write_b64 v{VC}, v[{S0+8}:{S0+9}]', tag='tab')

    def gemm(seq, pre):
        g = Asm()
        D = 3

        def rd(idx):
            if idx in pre:
                g.extend(pre[idx])
            i, s = seq[idx]
            dst = BR + 4 * (idx & 3)
            off = i * 16384 + s * 1024
            g(f'ds_read_b128 v[{dst}:{dst+3}], v{1 if off < 65536 else VM_} offset:{off & 65535}')
        for idx in range(D):
            rd(idx)
        for idx, (i, s) in enumerate(seq):
            b = BR + 4 * (idx & 3)
            B = f'v[{b}:{b+3}]'
            acc = lambda r: f'v[{r}:{r+3}]'
            c = lambda r: acc(r) if s else '0'
            g(f'v_mfma_f32_16x16x32_bf16 {acc(AK(i))}, {wq_loc(3*s+1)}, {B}, {c(AK(i))}')
            last_b = idx + D < len(seq)
            if i == 0:
                g(f'v_mfma_f32_16x16x32_bf16 {acc(AV(i))}, {B}, {wq_loc(3*s+2)}, {c(AV(i))}')
                if last_b:
                    rd(idx + D)
            else:
                g(f'v_mfma_f32_16x16x32_bf16 {acc(AV(i))}, {B}, {wq_loc(3*s+2)}, {c(AV(i))}')
                if last_b:
                    rd(idx + D)
                g(f'v_mfma_f32_16x16x32_bf16 {acc(AQ(i))}, {wq_loc(3*s)}, {B}, {c(AQ(i))}')
        return g

    def epi(i):
        e = Asm()
        e(f'ds_read_b64 v[{CT}:{CT+1}], v{VC} offset:{128*i}')
        e(f'ds_read_b128 v[{CT+2}:{CT+5}], v{VR} offset:{128*i}')
        e(f'ds_read_b128 v[{CT+6}:{CT+9}], v{VR} offset:{128*i+16}')
        for v in range(4):
            e(f'v_fmac_f32 v{AK(i)+v}, v{CT+1}, v{CSK+v}')
        if i:
            for v in range(4):
                e(f'v_fmac_f32 v{AQ(i)+v}, v{CT+1}, v{CSQ+v}')
        for v in range(4):
            e(f'v_mul_f32 v{AK(i)+v}, v{CT}, v{AK(i)+v}')
        if i:
            e(f'v_mul_f32 v{SC+i}, s26, v{CT}')
            for dd in range(2):
                e(f'v_cvt_pk_bf16_f32 v{QP+2*i+dd}, v{AQ(i)+2*dd}, v{AQ(i)+2*dd+1}')
        for dd in range(2):
            e(f'v_cvt_pk_bf16_f32 v{KP+2*i+dd}, v{AK(i)+2*dd}, v{AK(i)+2*dd+1}')
        for v in range(4):
            e(f'v_fmac_f32 v{AV(i)+v}, v{CT+2+2*v+1}, v{CSV}')
        for v in range(4):
            e(f'v_mul_f32 v{AV(i)+v}, v{CT+2+2*v}, v{AV(i)+v}')
        for dd in range(2):
            e(f'v_cvt_pk_bf16_f32 v{VP+2*i+dd}, v{AV(i)+2*dd}, v{AV(i)+2*dd+1}')
        return e

    def attn(pr):
        e = Asm()
        tl = (1 + 2 * pr, 2 + 2 * pr)
        for u, i in enumerate(tl):
            e(f'v_mfma_f32_16x16x16_bf16 v[{SS+8*u}:{SS+8*u+3}], v[{KP+2*i-2}:{KP+2*i-1}], v[{QP+2*i}:{QP+2*i+1}], 0')
            e(f'v_mfma_f32_16x16x16_bf16 v[{SS+8*u+4}:{SS+8*u+7}], v[{KP+2*i}:{KP+2*i+1}], v[{QP+2*i}:{QP+2*i+1}], 0')
        if pr == 0:
            e('s_lshl_b32 s38, s16, 16')
            e('s_lshl_b32 s39, s17, 10')
            e('s_add_u32 s38, s38, s39')
            e(f's_add_u32 s38, s38, {hx(O_[l])}')
        else:
            e('s_add_u32 s38, s38, 32768')
        for u, i in enumerate(tl):
            for c in range(4):
                r = SS + 8 * u + 2 * c
                e(f'v_cndmask_b32 v{TT+4*u+c}, v{r}, v{r+1}, s[28:29]')
        for u, i in enumerate(tl):
            for c in range(4):
                bias = BI + c if not (i == 1 and c < 2) else BI + 4 + c
                e(f'v_fma_f32 v{TT+4*u+c}, v{TT+4*u+c}, v{SC+i}, v{bias}')
        for u in range(2):
            e(f'v_max3_f32 v{MM+u}, v{TT+4*u}, v{TT+4*u+1}, v{TT+4*u+2}')
        for u in range(2):
            e(f'v_max_f32 v{MM+u}, v{MM+u}, v{TT+4*u+3}')
        e(f'v_permlane16_swap_b32 v{MM}, v{MM+1}')
        e(f'v_max_f32 v{MM}, v{MM}, v{MM+1}')
        e(f'v_mov_b32 v{MM+1}, v{MM}')
        e(f'v_permlane32_swap_b32 v{MM}, v{MM+1}')
        e(f'v_max_f32 v{MM}, v{MM}, v{MM+1}')
        e(f'v_mov_b32 v{MM+1}, v{MM}')
        e(f'v_permlane16_swap_b32 v{MM}, v{MM+1}')
        for u in range(2):
            for c in range(4):
                e(f'v_sub_f32 v{TT+4*u+c}, v{TT+4*u+c}, v{MM+u}')
        for u in range(2):
            for c in range(4):
                e(f'v_exp_f32 v{TT+4*u+c}, v{TT+4*u+c}')
        for u, i in enumerate(tl):
            e(f'v_cvt_pk_bf16_f32 v{SS+8*u}, v{TT+4*u}, v{TT+4*u+1}')
            e(f'v_cvt_pk_bf16_f32 v{SS+8*u+1}, v{TT+4*u+2}, v{TT+4*u+3}')
            e(f'v_perm_b32 v{PP+4*u}, v{SS+8*u}, v{SS+8*u}, v{SELA}')
            e(f'v_perm_b32 v{PP+4*u+1}, v{SS+8*u}, v{SS+8*u}, v{SELB}')
            e(f'v_perm_b32 v{PP+4*u+2}, v{SS+8*u+1}, v{SS+8*u+1}, v{SELA}')
            e(f'v_perm_b32 v{PP+4*u+3}, v{SS+8*u+1}, v{SS+8*u+1}, v{SELB}')
            e(f'v_add_f32 v{MM+2+u}, v{TT+4*u}, v{TT+4*u+1}')
            e(f'v_add_f32 v{TT+4*u+2}, v{TT+4*u+2}, v{TT+4*u+3}')
            e(f'v_mfma_f32_16x16x32_bf16 v[{OO+4*u}:{OO+4*u+3}], v[{VP+2*i-2}:{VP+2*i+1}], v[{PP+4*u}:{PP+4*u+3}], 0')
            e(f'v_add_f32 v{MM+2+u}, v{MM+2+u}, v{TT+4*u+2}')
        S0_, S1_ = MM + 2, MM + 3
        e(f'v_permlane16_swap_b32 v{S0_}, v{S1_}')
        e(f'v_add_f32 v{S0_}, v{S0_}, v{S1_}')
        e(f'v_mov_b32 v{S1_}, v{S0_}')
        e(f'v_permlane32_swap_b32 v{S0_}, v{S1_}')
        e(f'v_add_f32 v{S0_}, v{S0_}, v{S1_}')
        e(f'v_rcp_f32 v{S0_}, v{S0_}')
        e(f'v_mov_b32 v{S1_}, v{S0_}')
        e(f'v_permlane16_swap_b32 v{S0_}, v{S1_}')
        for u in range(2):
            for v in range(4):
                e(f'v_mul_f32 v{OO+4*u+v}, v{OO+4*u+v}, v{S0_+u}')
        for u in range(2):
            for dd in range(2):
                e(f'v_cvt_pk_bf16_f32 v{OS+2*u+dd}, v{OO+4*u+2*dd}, v{OO+4*u+2*dd+1}')
        e(f'v_permlane16_swap_b32 v{OS}, v{OS+2}')
        e(f'v_permlane16_swap_b32 v{OS+1}, v{OS+3}')
        e(f'buffer_store_dwordx4 v[{OS}:{OS+3}], v1, s[8:11], s38 offen sc1', tag='ost')
        return e

    def bar(*tags, lg=()):
        b = Asm()
        b.waitvm(*tags)
        if lg:
            b.waitlgkm(*lg)
        b('s_barrier')
        return b

    pf = cat(st_wo(), st_wgu((0, 1)))
    if l == 0:
        sg_, gl = front0(a, consts, AK, AV, AQ, CSQ, CSK, CSV, VC)
        tail = cat(epi(0), epi(1), epi(2), attn(0), epi(3), epi(4), attn(1))
        a('s_waitcnt lgkmcnt(0)')
        done = 0
        if cfg.ssig >= 16:
            done = cfg.ssig - 16
            a.extend(tail[:done])
            a.waitvm('slab', 'z')
            a('s_barrier')
            a.group(sg_)
            stamp(a, 'p1.0 sig0')
        if cfg.sg0 >= 16:
            a.extend(tail[done:cfg.sg0 - 16])
            done = cfg.sg0 - 16
            a.extend(gl)
        a.extend(tail[done:cfg.g0pos])
        tail = tail[cfg.g0pos:]
        print('tail length', cfg.g0pos + len(tail))
        a.extend(g0_check())
        a('s_barrier')
        stamp(a, 'p1.0 g0')
        pf = cat(pf, st_wd(range(8, 8 + cfg.wdearly)))
        pf1, rest = vm_split(pf, cfg.npf0)
    else:
        d1, d2 = vm_split(d, 14)
        a.extend(d1)
        seq = [(i, s) for i in range(5) for s in range(16)]
        g = gemm(seq, {0: bar('x0'), 16: bar('x1'), 32: bar('x2', lg=('tab',)), 48: bar('x3'), 64: bar('x4')})
        parts = split_mfma(g.ins, (32, 80, 128, 176))
        d2a, d2b = vm_split(d2, 6)
        a.merge(parts[0], d2a, 0, 24)
        stamp(a, 'p1.1 st0')
        a.merge(parts[1], mix(d2b, st), 0, 36)
        stamp(a, 'p1.1 st1')
        a.merge(parts[2], cat(epi(0), epi(1)), 0, 48)
        stamp(a, 'p1.1 st2')
        at = attn(0).ins
        na = len(at) // 3
        a.merge(parts[3], cat(epi(2), at[:na]), 3, 48)
        stamp(a, 'p1.1 st3')
        a.merge(parts[4], cat(at[na:], epi(3)), 0, 48)
        stamp(a, 'p1.1 gemm')
        a('s_waitcnt lgkmcnt(0)')
        a('s_barrier')
        tail = cat(epi(4), attn(1))
        pf1, rest = vm_split(pf, 9)
    a.extend(mix(tail[:-6], pf1))
    a.extend(tail[-6:])
    stamp(a, f'p1.{l} stored')
    r1, r2 = vm_split(rest, 8)
    a.extend(r1)
    a('s_lshl_b32 s30, s16, 8')
    a(f's_add_u32 s30, s30, {hx(F1(l))}')
    a('v_mov_b32 v3, 1')
    a.waitvm('ost')
    a('s_barrier')
    signal(a, 's30', 3)
    stamp(a, f'p1.{l} signalled')
    a.extend(r2)


def p2(a, l):
    X = X0 if l == 0 else X2
    VD = 7
    BF, RS, AC, AR, PK = 28, 92, 100, 116, 148
    a(f'v_add_u32 v8, {LDS_WO}, v1')
    a('s_lshr_b32 s30, s3, 1')
    a('s_lshl_b32 s31, s18, 1')
    a('s_add_u32 s30, s30, s31')
    a('s_lshl_b32 s30, s30, 15')
    a('s_and_b32 s31, s3, 1')
    a('s_lshl_b32 s31, s31, 8')
    a('s_add_u32 s30, s30, s31')
    a(f's_add_u32 s31, s30, {hx(O_[l])}')
    a('s_lshl_b32 s32, s19, 12')
    a('s_add_u32 s30, s30, s32')
    a(f's_add_u32 s32, s30, {hx(X)}')
    a(f's_add_u32 s33, s30, {hx(X1_[l])}')
    a('s_lshl_b32 s34, s18, 8')
    a(f's_add_u32 s35, s34, {hx(F2(l))}')
    a(f's_add_u32 s34, s34, {hx(F1(l))}')
    a('s_lshl_b32 s36, s18, 2')
    a('s_add_u32 s36, s36, s3')
    a('s_lshl_b32 s36, s36, 10')
    a('s_lshl_b32 s37, s19, 7')
    a('s_add_u32 s36, s36, s37')
    a(f's_add_u32 s36, s36, {hx(STB[l])}')
    a('v_bfe_u32 v9, v0, 4, 1')
    a('v_lshlrev_b32 v9, 2, v9')
    a('v_and_b32 v10, 15, v0')
    a('v_lshl_add_u32 v9, v10, 3, v9')
    if l == 0:
        a('v_lshlrev_b32 v10, 10, v10')
        a('v_lshrrev_b32 v11, 4, v0')
        a('v_lshl_add_u32 v10, v11, 4, v10')
        a('s_lshl_b32 s32, s18, 2')
        a('s_add_u32 s32, s32, s3')
        a('s_lshl_b32 s32, s32, 14')
        a('s_lshl_b32 s37, s19, 7')
        a('s_add_u32 s32, s32, s37')
        a(f'buffer_load_dwordx4 v[{RS}:{RS+3}], v10, s[60:63], s32 offen')
        a(f'buffer_load_dwordx4 v[{RS+4}:{RS+7}], v10, s[60:63], s32 offen offset:64')
    a.waitvm('wo')
    stamp(a, f'p2.{l} prepoll')
    poll_wg(a, 's34', 1, 'off', 8)
    stamp(a, f'p2.{l} start')
    sc = ' sc1'
    ld = Asm()
    for s in range(16):
        ld(f'buffer_load_dwordx4 v[{BF+4*s}:{BF+4*s+3}], v{VD}, s[8:11], s31 offen offset:{2048*(s&1)}{sc}')
        if s & 1 and s < 15:
            ld('s_add_u32 s31, s31, 4096')
    if l:
        ld(f'buffer_load_dwordx4 v[{RS}:{RS+3}], v{VD}, s[8:11], s32 offen{sc}')
        ld(f'buffer_load_dwordx4 v[{RS+4}:{RS+7}], v{VD}, s[8:11], s32 offen offset:2048{sc}')
    l1, l2 = vm_split(ld, 10)
    a.extend(l1)
    g = Asm()

    def rd(idx):
        dd = AR + 4 * (idx & 7)
        g(f'ds_read_b128 v[{dd}:{dd+3}], v8 offset:{idx*1024}', tag=f'r{idx}')
    for idx in range(6):
        rd(idx)
    for idx in range(64):
        s, t = idx >> 2, idx & 3
        dd = AR + 4 * (idx & 7)
        c = f'v[{AC+4*t}:{AC+4*t+3}]'
        if idx & 1 == 0:
            g.waitlgkm(f'r{idx+1}')
        g(f'v_mfma_f32_16x16x32_bf16 {c}, v[{dd}:{dd+3}], v[{BF+4*s}:{BF+4*s+3}], {c if s else 0}')
        if idx + 6 < 64:
            rd(idx + 6)
    a.merge(g, l2, 0, 24)
    stamp(a, f'p2.{l} gemm')
    for p in range(2):
        for dd in range(4):
            r = AC + 8 * p + 2 * dd
            G.unpack_add(a, r, r + 1, RS + 4 * p + dd, 156)
            a(f'v_cvt_pk_bf16_f32 v{PK+4*p+dd}, v{r}, v{r+1}')
        a(f'buffer_store_dwordx4 v[{PK+4*p}:{PK+4*p+3}], v{VD}, s[8:11], s33 offen offset:{2048*p} sc1', tag='xst')
    a('v_mov_b32 v156, 0')
    a('v_mov_b32 v157, 0')
    for dd in range(8):
        a(f'v_dot2_f32_bf16 v156, v{PK+dd}, s25, v156')
    for dd in range(8):
        a(f'v_dot2_f32_bf16 v157, v{PK+dd}, v{PK+dd}, v157')
    a('v_permlane16_swap_b32 v156, v157')
    a('v_add_f32 v156, v156, v157')
    a('v_mov_b32 v157, v156')
    a('v_permlane32_swap_b32 v156, v157')
    a('v_add_f32 v156, v156, v157')
    a('buffer_store_dword v156, v9, s[8:11], s36 offen sc1', tag='xst')
    stamp(a, f'p2.{l} stored')
    a('s_barrier')
    w1, w2 = vm_split(st_wgu((2, 3, 4)), 8)
    a.extend(w1)
    a('v_mov_b32 v3, 1')
    a.waitvm('xst')
    a('s_barrier')
    signal(a, 's35', 3)
    stamp(a, f'p2.{l} signalled')
    a.extend(w2)


def p34(a, l):
    XF = 128
    ACC = [16, 32, 48]
    AR = 80
    TM = 112
    HP = 120
    C0, C1, IA2 = 12, 13, 14
    a('v_and_b32 v4, 31, v0')
    a('v_lshrrev_b32 v5, 5, v0')
    a('v_lshrrev_b32 v6, 4, v4')
    a('v_lshlrev_b32 v6, 10, v6')
    a('v_lshl_add_u32 v6, v5, 9, v6')
    a('v_and_b32 v7, 15, v4')
    a('v_lshl_add_u32 v6, v7, 3, v6')
    a('v_add_u32 v8, 65536, v1')
    a('v_add_u32 v9, 0x20000, v1')
    a('v_lshlrev_b32 v10, 8, v0')
    a('s_lshl_b32 s30, s20, 2')
    a('s_add_u32 s30, s30, s3')
    a('s_lshl_b32 s31, s30, 15')
    a(f's_add_u32 s31, s31, {hx(X1_[l])}')
    a('s_lshl_b32 s32, s30, 11')
    a(f's_add_u32 s32, s32, {hx(STB[l])}')
    a('s_mul_i32 s33, s30, 114688')
    a('s_mul_i32 s34, s21, 7168')
    a('s_add_u32 s33, s33, s34')
    a(f's_add_u32 s33, s33, {hx(H_[l])}')
    a('s_lshl_b32 s34, s20, 9')
    a(f's_add_u32 s34, s34, {hx(F2(l))}')
    a('s_lshl_b32 s35, s20, 3')
    a('s_lshr_b32 s36, s3, 1')
    a('s_lshl_b32 s36, s36, 2')
    a('s_add_u32 s35, s35, s36')
    a('s_lshr_b32 s36, s21, 2')
    a('s_add_u32 s35, s35, s36')
    a('s_lshl_b32 s35, s35, 8')
    a('s_lshl_b32 s36, s22, 2')
    a('s_add_u32 s36, s36, s3')
    a('s_lshl_b32 s36, s36, 8')
    a.waitvm('wg0', 'wg1')
    stamp(a, f'p3.{l} prepoll')
    poll_wg(a, 's34', 3, 'v10', 8)
    stamp(a, f'p3.{l} start')
    ld = Asm()
    for j in range(4):
        ld(f'buffer_load_dwordx2 v[{TM+2*j}:{TM+1+2*j}], v6, s[8:11], s32 offen offset:{128*j} sc1')
    for s in range(32):
        ld(f'buffer_load_dwordx4 v[{XF+4*s}:{XF+4*s+3}], v1, s[8:11], s31 offen offset:{1024*(s&3)} sc1')
        if (s & 3) == 3 and s < 31:
            ld('s_add_u32 s31, s31, 4096')
    l1, l2 = vm_split(ld, 13)
    a.extend(l1)
    stt = Asm()
    for j in range(1, 4):
        stt(f'v_add_f32 v{TM}, v{TM}, v{TM+2*j}')
        stt(f'v_add_f32 v{TM+1}, v{TM+1}, v{TM+1+2*j}')
    stt(f'v_permlane32_swap_b32 v{TM}, v{TM+1}')
    stt(f'v_add_f32 v{TM}, v{TM}, v{TM+1}')
    stt(f'v_mov_b32 v{TM+1}, v{TM}')
    stt(f'v_permlane32_swap_b32 v{TM}, v{TM+1}')
    G.stat_finalize(stt, TM, TM + 1, TM + 2, 24)
    k0 = -2.0 * math.sqrt(2.0 / math.pi) * math.log2(math.e)
    k1 = k0 * 0.044715
    stt(f'v_cvt_pk_bf16_f32 v{TM+4}, v{TM+1}, v{TM+1}')
    stt(f'v_mul_f32 v{TM+2}, v{TM}, v{TM}')
    stt(f'v_and_b32 v{TM+5}, 0xffff0000, v{TM+4}')
    stt(f'v_mul_f32 v{C0}, {hx(f2u(k0))}, v{TM}')
    stt(f'v_sub_f32 v{TM+1}, v{TM+1}, v{TM+5}')
    stt(f'v_mul_f32 v{TM+3}, v{TM+2}, v{TM}')
    stt(f'v_mov_b32 v{MBZ}, 0')
    stt(f'v_cvt_pk_bf16_f32 v{TM+5}, v{TM+1}, v{MBZ}')
    stt(f'v_mul_f32 v{C1}, {hx(f2u(k1))}, v{TM+3}')
    stt(f'v_rcp_f32 v{IA2}, v{TM+2}')
    for r in (1, 4, 5, 8, 9):
        stt(f'v_mov_b32 v{MBZ+r}, 0')
    stt('v_cmp_gt_u32 vcc, 32, v0')
    for dd in range(2):
        stt(f'v_cndmask_b32 v{MBZ+2+dd}, v{MBZ}, v{TM+4+dd}, vcc')
        stt(f'v_cndmask_b32 v{MBZ+6+dd}, v{TM+4+dd}, v{MBZ}, vcc')
        stt(f'v_cndmask_b32 v{CF[1]+2+dd}, v{MBZ}, v{CF[1]+2+dd}, vcc')

    seq = [(T, s) for s in range(32) for T in range(2)] + [(T, 32) for T in range(2)]
    for T in range(2, 7):
        seq += [(T, s) for s in range(33)]
    rseq = [x for x in seq if x[1] < 32]
    g = Asm()
    D = 6
    rpos = {x: k for k, x in enumerate(rseq)}

    def rd(k):
        T, s = rseq[k]
        if (T, s) == (2, 0):
            g.waitvm('wg2', 'wg3', 'wg4')
            g('s_barrier')
        if (T, s) == (5, 0):
            g.waitvm('wg5', 'wg6')
            g('s_barrier')
        dd = AR + 4 * (k & 7)
        off = slot(T) + s * 1024
        base = 'v1' if off < 65536 else ('v8' if off < 131072 else 'v9')
        g(f'ds_read_b128 v[{dd}:{dd+3}], {base} offset:{off & 65535}', tag=f'r{k}')
    for k in range(D):
        rd(k)
    accof = {T: T % 3 for T in range(7)}
    for (T, s) in seq:
        ac = ACC[accof[T]]
        c = f'v[{ac}:{ac+15}]'
        if s == 32:
            mb = MBZ + 4 * ((T >> 1) & 1) + (0 if T & 1 else 2)
            g(f'v_mfma_f32_32x32x16_bf16 {c}, v[{CF[T>>2]}:{CF[T>>2]+3}], v[{mb}:{mb+3}], {c}')
            continue
        k = rpos[(T, s)]
        dd = AR + 4 * (k & 7)
        if k & 1 == 0 and k + 1 < len(rseq):
            g.waitlgkm(f'r{k+1}')
        g(f'v_mfma_f32_32x32x16_bf16 {c}, v[{dd}:{dd+3}], v[{XF+4*s}:{XF+4*s+3}], {c if s else 0}')
        if k + D < len(rseq):
            rd(k + D)

    def epi(T):
        e = Asm()
        ac = ACC[accof[T]]
        steps = [lambda x: f'v_mul_f32 v{TM+x}, v{ac+x}, v{ac+x}',
                 lambda x: f'v_fma_f32 v{TM+x}, v{TM+x}, v{C1}, v{C0}',
                 lambda x: f'v_mul_f32 v{TM+x}, v{TM+x}, v{ac+x}',
                 lambda x: f'v_exp_f32 v{TM+x}, v{TM+x}',
                 lambda x: f'v_mul_f32 v{ac+x}, v{ac+x}, v{ac+8+x}',
                 lambda x: f'v_fma_f32 v{TM+x}, v{TM+x}, v{IA2}, v{IA2}',
                 lambda x: f'v_rcp_f32 v{TM+x}, v{TM+x}',
                 lambda x: f'v_mul_f32 v{ac+x}, v{ac+x}, v{TM+x}']
        ev = sorted(((8 * x + [0, 1, 2, 3, 4, 13, 15, 25][k], x, k) for x in range(8) for k in range(8)))
        for _, x, k in ev:
            e(steps[k](x))
            if k == 7 and x & 1:
                e(f'v_cvt_pk_bf16_f32 v{HP+(x>>1)}, v{ac+x-1}, v{ac+x}')
        if T == 4:
            e('s_add_u32 s33, s33, 4096')
        e(f'buffer_store_dwordx4 v[{HP}:{HP+3}], v1, s[8:11], s33 offen offset:{1024*(T&3)} sc1', tag=f'h{T}')
        return e

    def sig(st):
        e = Asm()
        e(f's_add_u32 s38, s35, {hx(F3(l, st))}')
        e('v_mov_b32 v3, 1')
        e.waitvm(*[f'h{T}' for T in cfg.stages[st]])
        signal(e, 's38', 3, wave0_only=False)
        return e

    parts = split_mfma(g.ins, (66, 99, 132, 165, 198))
    a.merge(parts[0], cat(l2, st_csf(), stt), 0, 60)
    stamp(a, f'p3.{l} T01')
    a('s_barrier')
    epis = [epi(T) for T in range(7)]
    es = cat(*epis[:6])
    ne = len(es)
    cut = [ne * k // 5 for k in range(6)]
    ep = [es[cut[k]:cut[k + 1]] for k in range(5)]
    sig_at = {}
    wd_list = st_wd(range(8) if l else list(range(8)) + list(range(8 + cfg.wdearly, 28))).ins
    nwd = len(wd_list)
    extra = [cat(st_wgu((5, 6))), wd_list[:nwd // 2], wd_list[nwd // 2:], []]
    if l == 0:
        extra = [cat(st_wgu((5, 6))), wd_list[:nwd // 3], wd_list[nwd // 3:2 * nwd // 3],
                 wd_list[2 * nwd // 3:]]
    def with_sig(lst, st, frac):
        k = int(len(lst) * frac)
        return lst[:k] + sig(st).ins + lst[k:]
    nst = len(cfg.stages)
    last_tile = [max(x) for x in cfg.stages]
    for k in range(4):
        lst = ep[k]
        for st in range(nst):
            pos = (last_tile[st] + 1) / 1.2 + 0.72
            if k <= pos < k + 1:
                lst = with_sig(lst, st, pos - k)
                sig_at[st] = k
        a.merge(parts[1 + k], mix(lst, extra[k]), 1 if k == 0 else 0, 33, cap=24)
        stamp(a, f'p3.{l} T{k+2}')

    BR, NB = 128, (cfg.NB if l == 1 else 16)
    ko = p4_korder()
    pseq = [(t, s) for st in range(len(ko) - 2) for t in (1, 0) for s in ko[st]]
    if len(ko[-1]) <= 4:
        pseq += [(t, s) for t in (1, 0) for st in (-2, -1) for s in ko[st]]
    else:
        pseq += [(t, s) for st in (-2, -1) for t in (1, 0) for s in ko[st]]
    stage_of = {s: st for st in range(len(ko)) for s in ko[st]}
    su = Asm()
    su('s_lshl_b32 s39, s22, 1')
    su('s_lshr_b32 s52, s3, 1')
    su('s_add_u32 s39, s39, s52')
    su('s_xor_b32 s52, s39, 1')
    su('s_mul_i32 s53, s3, 28672')
    su(f's_add_u32 s53, s53, {hx(H_[l])}')
    su('s_mul_i32 s54, s39, 114688')
    su('s_mul_i32 s55, s52, 114688')
    su('s_add_u32 s54, s54, s53')
    su('s_add_u32 s55, s55, s53')
    su(f's_add_u32 s56, s36, {hx(F3(l, 0))}')
    seen = set()

    def ldB(e, idx):
        t, s = pseq[idx]
        st = stage_of[s]
        if st not in seen:
            seen.add(st)
            if cfg.spoll and st > 0:
                e(f's_add_u32 s56, s36, {hx(F3(l, st))}')
            poll_check(e, 11, 's56', 8, scalar=(65 + st) if (cfg.spoll and st > 0) else False)
        dd = BR + 4 * (idx % NB)
        e(f's_add_u32 s53, s{55 if t else 54}, {s*1024}')
        e(f'buffer_load_dwordx4 v[{dd}:{dd+3}], v1, s[8:11], s53 offen sc1')
    PF = cfg.PF if l == 1 else 14
    lst = ep[4]
    for st in range(nst):
        pos = (last_tile[st] + 1) / 1.2 + 0.72
        if 4 <= pos < 5:
            lst = with_sig(lst, st, pos - 4)
            sig_at[st] = 4
    h1, h2 = lst[:len(lst) // 2], lst[len(lst) // 2:]
    s4a = Asm()
    s4a.extend(su)
    poll_issue(s4a, 11, 's56')
    p4a, p4b = split_mfma(parts[5], (16,))
    a.merge(p4a, mix(h1, s4a), 0, 16, cap=24)
    first = Asm()
    polled = set([0])

    def maybe_poll(e, j):
        if j < 56:
            st = stage_of[pseq[j][1]]
            if st not in polled:
                polled.add(st)
                e(f's_add_u32 s56, s36, {hx(F3(l, st))}')
                poll_issue(e, 11, 's56', scalar=(65 + st) if cfg.spoll else False)
    for idx in range(14):
        ldB(first, idx)
        maybe_poll(first, idx + cfg.PD)
    a.merge(p4b, mix(h2, first), 0, 17, cap=24)
    stamp(a, f'p3.{l} T6')
    second = Asm()
    for idx in range(14, PF):
        ldB(second, idx)
        maybe_poll(second, idx + cfg.PD)
    a.extend(mix(epis[6], second))
    stamp(a, f'p4.{l} start')
    ACC4 = [32, 48, 64, 80]
    RS, PK = 96, 104
    a('v_lshlrev_b32 v6, 10, v5')
    a('v_lshl_add_u32 v6, v4, 4, v6')
    for u in range(1, 4):
        a(f's_xor_b32 s30, s3, {u}')
        a('s_mul_i32 s30, s30, 12288')
        a(f's_add_u32 s30, s30, {65536 + (u-1)*4096}')
        a(f'v_add_u32 v{6+u}, s30, v1')
    a('s_mul_i32 s30, s3, 12288')
    a('s_add_u32 s30, s30, 65536')
    a('v_add_u32 v10, s30, v1')
    a('s_lshl_b32 s30, s23, 1')
    a('s_and_b32 s31, s3, 1')
    a('s_add_u32 s30, s30, s31')
    a('s_lshl_b32 s31, s39, 15')
    a('s_lshl_b32 s32, s30, 11')
    a('s_add_u32 s31, s31, s32')
    a(f's_add_u32 s32, s31, {hx(X1_[l])}')

    def spill(e, u):
        for i in range(4):
            r = ACC4[u] + 4 * i
            e(f'ds_write_b128 v{6+u}, v[{r}:{r+3}] offset:{1024*i}', tag='sp')
    last1 = max(k for k, (t, s) in enumerate(pseq) if t == 1)
    started = set()
    wq_early = st_wqkv(range(24)).ins if l == 0 else []
    wq_vm = [k for k, i in enumerate(wq_early) if i.kind == 'vmem']
    wk = 0
    for idx, (t, s) in enumerate(pseq):
        dd = BR + 4 * (idx % NB)
        for f in (1, 0):
            u = 2 * t + f
            c = f'v[{ACC4[u]}:{ACC4[u]+15}]'
            a(f'v_mfma_f32_32x32x16_bf16 {c}, {wd_loc(s, f)}, v[{dd}:{dd+3}], {c if u in started else 0}')
            started.add(u)
            if f == 1:
                if idx + PF < 56:
                    ldB(a, idx + PF)
                    maybe_poll(a, idx + PF + cfg.PD)
                for st in range(nst):
                    if st not in sig_at and idx == (cfg.s5 if last_tile[st] == 5 else cfg.s6):
                        a.extend(sig(st))
                if idx == 20:
                    a(f'buffer_load_dwordx4 v[{RS}:{RS+3}], v6, s[8:11], s32 offen sc1')
                    a(f'buffer_load_dwordx4 v[{RS+4}:{RS+7}], v6, s[8:11], s32 offen offset:512 sc1')
            else:
                if l == 1 and idx in (9, 23, 39):
                    stamp(a, f'p4.1 idx{idx}')
                if idx == last1 + 2:
                    spill(a, 2)
                if idx == last1 + 5:
                    spill(a, 3)
                if l == 0 and idx >= 56 - PF - 2 and wk < len(wq_vm):
                    for rep in range(2):
                        if wk < len(wq_vm):
                            lo = wq_vm[wk - 1] + 1 if wk else 0
                            a.extend(wq_early[lo:wq_vm[wk] + 1])
                            wk += 1
    stamp(a, f'p4.{l} gemm')
    spill(a, 1)
    for dd in range(8):
        G.unpack_add(a, ACC4[0] + 2 * dd, ACC4[0] + 2 * dd + 1, RS + dd, 112)
    a('s_waitcnt lgkmcnt(0)')
    a('s_barrier')
    stamp(a, f'p4.{l} bar')
    PR = 128
    for u in range(3):
        for i in range(4):
            r = PR + 16 * u + 4 * i
            a(f'ds_read_b128 v[{r}:{r+3}], v10 offset:{4096*u + 1024*i}')
    for u in range(3):
        for e in range(16):
            a(f'v_add_f32 v{ACC4[0]+e}, v{ACC4[0]+e}, v{PR+16*u+e}')
    for dd in range(8):
        a(f'v_cvt_pk_bf16_f32 v{PK+dd}, v{ACC4[0]+2*dd}, v{ACC4[0]+2*dd+1}')
    if l == 0:
        a(f's_add_u32 s32, s31, {hx(X2)}')
        a(f'buffer_store_dwordx4 v[{PK}:{PK+3}], v6, s[8:11], s32 offen sc1', tag='xst')
        a(f'buffer_store_dwordx4 v[{PK+4}:{PK+7}], v6, s[8:11], s32 offen offset:512 sc1', tag='xst')
        a('v_mov_b32 v112, 0')
        a('v_mov_b32 v113, 0')
        for dd in range(8):
            a(f'v_dot2_f32_bf16 v112, v{PK+dd}, s25, v112')
        for dd in range(8):
            a(f'v_dot2_f32_bf16 v113, v{PK+dd}, v{PK+dd}, v113')
        a('v_lshlrev_b32 v7, 2, v5')
        a('v_lshl_add_u32 v7, v4, 3, v7')
        a('s_lshl_b32 s32, s39, 12')
        a('s_lshl_b32 s33, s30, 8')
        a('s_add_u32 s32, s32, s33')
        a(f's_add_u32 s32, s32, {hx(STA[1])}')
        a('v_permlane32_swap_b32 v112, v113')
        a('v_add_f32 v112, v112, v113')
        a('buffer_store_dword v112, v7, s[8:11], s32 offen sc1', tag='xst')
        stamp(a, f'p4.{l} stored')
        rest = Asm()
        if wk < len(wq_vm):
            rest.extend(wq_early[(wq_vm[wk - 1] + 1 if wk else 0):])
        rest.extend(st_wqkv(range(24, 48)))
        r1, r2 = vm_split(rest, 8)
        a.extend(r1)
        a('s_lshl_b32 s30, s22, 8')
        a(f's_add_u32 s30, s30, {hx(F4())}')
        a('v_mov_b32 v3, 1')
        a.waitvm('xst')
        a('s_barrier')
        signal(a, 's30', 3)
        stamp(a, f'p4.{l} signalled')
        a.extend(r2)
    else:
        a('v_lshlrev_b32 v7, 5, v5')
        a('v_lshl_add_u32 v7, v4, 10, v7')
        a('s_lshl_b32 s32, s39, 15')
        a('s_lshl_b32 s33, s30, 6')
        a('s_add_u32 s32, s32, s33')
        a(f'buffer_store_dwordx4 v[{PK}:{PK+3}], v7, s[12:15], s32 offen')
        a(f'buffer_store_dwordx4 v[{PK+4}:{PK+7}], v7, s[12:15], s32 offen offset:16')
        stamp(a, f'p4.{l} stored')


def gen_main():
    a = Asm()
    name = NAME + '_kernel'
    header(a, name)
    a('s_load_dwordx16 s[72:87], s[0:1], 0')
    a('s_load_dwordx4 s[88:91], s[0:1], 64')
    a('v_lshrrev_b32 v3, 6, v0')
    a('v_and_b32 v0, 63, v0')
    a('v_readfirstlane_b32 s3, v3')
    a('v_lshlrev_b32 v1, 4, v0')
    if cfg.stamp:
        a('v_mov_b32 v2, 0')
        a('s_memrealtime s[70:71]')
    stamp(a, 'entry')
    role(a, 16, 17, cfg.e1, 5, 3)
    a('s_lshl_b32 s17, s17, 2')
    a('s_add_u32 s17, s17, s3')
    front_early(a)
    a(f's_mov_b32 s24, {hx(f2u(1e-5))}')
    a(f's_mov_b32 s25, {hx(ONES)}')
    a(f's_mov_b32 s26, {hx(f2u(0.25 * math.log2(math.e)))}')
    a('s_mov_b32 s28, 0xaaaaaaaa')
    a('s_mov_b32 s29, 0xaaaaaaaa')
    srd(a, 60, 72, 2048 * 1024)
    srd(a, 92, 74, 512 * 3072)
    srd(a, 8, 90, WS_BYTES)
    srd(a, 12, 86, 2048 * 1024)
    a('s_mov_b32 s4, s90')
    a('s_mov_b32 s5, s91')
    a('s_mov_b32 s90, 256')
    a('s_mov_b32 s91, 0x00020000')
    stamp(a, 'p1.0 start')
    for l in range(2):
        p1(a, l)
        p2(a, l)
        p34(a, l)
    if cfg.stamp:
        a('s_waitcnt vmcnt(0)')
        stamp(a, 'end')
        a('s_memrealtime s[72:73]')
        a('s_waitcnt lgkmcnt(0)')
        a('v_writelane_b32 v2, s70, 62')
        a('v_writelane_b32 v2, s72, 63')
        a('s_lshl_b32 s30, s2, 2')
        a('s_add_u32 s30, s30, s3')
        a('s_lshl_b32 s30, s30, 8')
        a(f's_add_u32 s30, s30, {hx(STAMPS)}')
        a('v_lshlrev_b32 v3, 2, v0')
        a('buffer_store_dword v2, v3, s[8:11], s30 offen')
    footer(a, name)
    return name, a.finish(), dict(vgpr=256, acc=256, lds=163840)


def assemble(name, body):
    out = []
    for line in open('cdna_kernels/' + NAME + '.s.ref').read().split('\n'):
        if '@launch' in line:
            out.append('; @launch grid=(256,1,1) block=(256,1,1) lds=163840')
        elif line.startswith(';'):
            out.append(line)
        else:
            break
    out += ['.amdgcn_target "amdgcn-amd-amdhsa--gfx950"', '.text', f'.globl {name}', body, '.section .rodata,"a"',
            '.p2align 6', f'.amdhsa_kernel {name}', '  .amdhsa_next_free_vgpr 512', '  .amdhsa_next_free_sgpr 102',
            '  .amdhsa_accum_offset 256', '  .amdhsa_group_segment_fixed_size 0', '  .amdhsa_kernarg_size 80',
            '  .amdhsa_user_sgpr_count 2', '  .amdhsa_user_sgpr_kernarg_segment_ptr 1',
            '  .amdhsa_system_sgpr_workgroup_id_x 1', '  .amdhsa_float_denorm_mode_32 3', '.end_amdhsa_kernel']
    return '\n'.join(out) + '\n'


def main():
    path = sys.argv[1]
    for arg in sys.argv[2:]:
        k, v = arg.split('=')
        assert hasattr(cfg, k), k
        setattr(cfg, k, eval(v))
    name, body, _ = gen_main()
    text = assemble(name, body)
    open(path, 'w').write(text)
    open(path + '.names', 'w').write(repr(stamp_names))
    print('wrote', path, len(text), 'bytes', spin_names)


if __name__ == '__main__':
    main()
```

```python
import sys
import math
sys.path.insert(0, 'dev')
from asmlib import Asm, Ins
import gen1 as G
from gen1 import (WQKV_F, WO_F, WGU_F, WD_F, CS_QKV, X0, O_, X1_, X2, H_, STA, STB, WS_BYTES, ONES, f2u, hx, srd,
                  header, footer, NAME)

CSF = 0x760000
DUMMY = 0x2400000
FLAGS = 0x2300000
STAMPS = 0x3000000
SPIN = 100000


def F1(l): return FLAGS + (l * 32) * 256
def F2(l): return FLAGS + (64 + l * 32) * 256
def F4(): return FLAGS + 128 * 256
def F3(l, st): return FLAGS + (160 + (l * 7 + st) * 128) * 256


G0 = FLAGS + 1952 * 256
GWO, GGU, GWD, GWQ, GDUM = G0, G0 + 8 * 256, G0 + 24 * 256, G0 + 32 * 256, G0 + 40 * 256
LDS_SLAB = 81920
LDS_RING = 114688
LDS_CSR = 81920 + 1024


class Cfg:
    stamp = False
    e1 = 1
    e2 = 1
    e3 = 1
    e4 = 0
    stages = ((0, 1, 2), (3,), (4,), (5,), (6,))
    spin = False
    skip = ()
    touch = True
    wdearly = 6
    t0 = False
    t1 = False
    t2 = False
    only = None
    PF = 14
    NB = 16
    fine = True
    sw = (-1, -1, -1, -1, 0, 1, 2, 3, 4, 5, 6, 7, 8, 9, 10, 11)
    sx1 = (-1, -1, -1, -1, -1)
    sx2 = (1, 1, 2, 2, 3)
    sx3 = (3, 4, 4, 5, 5)
    sld = (0, 1, 2, 3, 4, 5, 6, 7)
    sst = (4, 5, 6, 7, 8, 9, 10, 11)
    xp = 0
    ssc = ' sc1'
    npf0 = 34
    ntx = ''
    ntw = ''
    nts = ''
    tlb = False
    rt = False
    wtlate = 16
    spin_s = True
    sg0 = 15
    g0pos = 0
    ssig = 16
    wsc = ' sc1'
    spoll = True
    PD = 8
    s5 = 4
    s6 = 10


cfg = Cfg()
nstamp = [0]
stamp_names = []
spin_names = []


def stamp(a, name):
    if not cfg.stamp or any(name.startswith(x) for x in cfg.skip):
        return
    k = nstamp[0]
    nstamp[0] += 1
    stamp_names.append(name)
    assert k < (50 if cfg.spin else 62)
    a('s_memrealtime s[58:59]' if cfg.rt else 's_memtime s[58:59]')
    a('s_waitcnt lgkmcnt(0)')
    a(f'v_writelane_b32 v2, s58, {k}')


def role(a, dtok, dcol, e, nblk_bits, ncol_bits, t=(30, 31, 32, 33)):
    cb = ncol_bits - e
    T0, T1, T2, T3 = ('s%d' % x for x in t)
    a(f's_and_b32 {T0}, s2, 7')
    a(f's_lshr_b32 {T1}, s2, 3')
    a(f's_lshr_b32 {T2}, {T0}, {e}')
    a(f's_lshl_b32 {T2}, {T2}, {nblk_bits - (3 - e)}')
    a(f's_lshr_b32 {T3}, {T1}, {cb}')
    a(f's_add_u32 s{dtok}, {T2}, {T3}')
    a(f's_and_b32 {T2}, {T0}, {(1 << e) - 1}')
    a(f's_lshl_b32 {T2}, {T2}, {cb}')
    a(f's_and_b32 {T3}, {T1}, {(1 << cb) - 1}')
    a(f's_add_u32 s{dcol}, {T2}, {T3}')


uid = [0]


def poll_wg(a, sflag, nlanes_mask, voff, target, second=None):
    uid[0] += 1
    u = uid[0]
    if cfg.spin_s:
        a('s_cmp_lg_u32 s3, 0')
        a(f's_cbranch_scc1 L_pw_done{u}')
        a(f's_mov_b32 s57, {SPIN}')
        if second:
            a(f's_add_u32 s66, {sflag}, {second}')
        a(f'L_pw{u}:')
        a(f's_load_dword s64, s[4:5], {sflag} glc', raw=True)
        if second:
            a('s_load_dword s65, s[4:5], s66 glc', raw=True)
        a('s_sub_u32 s57, s57, 1')
        a(f's_cbranch_scc1 L_pw_done{u}')
        a('s_waitcnt lgkmcnt(0)', raw=True)
        if second:
            a('s_min_u32 s64, s64, s65', raw=True)
        a(f's_cmp_lg_u32 s64, {target}', raw=True)
        a(f's_cbranch_scc1 L_pw{u}')
        a(f'L_pw_done{u}:')
        a('s_barrier')
        return
    a('s_cmp_lg_u32 s3, 0')
    a(f's_cbranch_scc1 L_pw_done{u}')
    a(f's_mov_b64 exec, {nlanes_mask}')
    a(f's_mov_b32 s57, {SPIN}')
    a(f'L_pw{u}:')
    a(f'buffer_load_dword v3, {voff}, s[8:11], {sflag} {"offen " if voff != "off" else ""}sc1', raw=True)
    a('s_waitcnt vmcnt(0)', raw=True)
    a(f'v_cmp_ne_u32 vcc, {target}, v3', raw=True)
    a('s_sub_u32 s57, s57, 1')
    a(f's_cbranch_scc1 L_pw_out{u}')
    a(f's_cbranch_vccnz L_pw{u}')
    a(f'L_pw_out{u}:')
    a('s_mov_b64 exec, -1')
    a(f'L_pw_done{u}:')
    a('s_barrier')


def poll_issue(a, vreg, sflag, scalar=False):
    if scalar:
        a(f's_load_dword s{scalar}, s[4:5], {sflag} glc')
    else:
        a(f'buffer_load_dword v{vreg}, off, s[8:11], {sflag} sc1')


def poll_check(a, vreg, sflag, target, scalar=False):
    uid[0] += 1
    u = uid[0]
    outer, a = a, Asm()
    a(f's_mov_b32 s57, {SPIN}')
    if scalar:
        a(f's_cmp_eq_u32 s{scalar}, {target}')
        a(f's_cbranch_scc1 L_pc_ok{u}')
    else:
        a(f'v_cmp_ne_u32 vcc, {target}, v{vreg}')
        a(f's_cbranch_vccz L_pc_ok{u}')
    a(f'L_pc{u}:')
    a(f'buffer_load_dword v{vreg}, off, s[8:11], {sflag} sc1', raw=True)
    a('s_waitcnt vmcnt(0)', raw=True)
    a(f'v_cmp_ne_u32 vcc, {target}, v{vreg}', raw=True)
    a('s_sub_u32 s57, s57, 1')
    a(f's_cbranch_scc1 L_pc_ok{u}')
    a(f's_cbranch_vccnz L_pc{u}')
    a(f'L_pc_ok{u}:')
    if cfg.stamp and cfg.spin:
        k = 63 - 2 - len(spin_names)
        spin_names.append(f'spin pc{u}')
        a(f's_sub_u32 s57, {SPIN}, s57')
        a(f'v_writelane_b32 v2, s57, {50 + len(spin_names) - 1}')
    outer.group(a)


def signal(a, sflag, vone, wave0_only=True):
    uid[0] += 1
    u = uid[0]
    outer, a = a, Asm()
    if wave0_only:
        a('s_cmp_lg_u32 s3, 0')
        a(f's_cbranch_scc1 L_sg{u}')
    a('s_mov_b64 exec, 1')
    a(f'buffer_atomic_add v{vone}, off, s[8:11], {sflag} sc1', raw=wave0_only)
    a('s_mov_b64 exec, -1')
    if wave0_only:
        a(f'L_sg{u}:')
    outer.group(a)


def wq_loc(f):
    if f < 16:
        return f'v[{192+4*f}:{195+4*f}]'
    if f < 24:
        return f'a[{224+4*(f-16)}:{227+4*(f-16)}]'
    if f < 40:
        return f'a[{160+4*(f-24)}:{163+4*(f-24)}]'
    return f'v[{160+4*(f-40)}:{163+4*(f-40)}]'


def p4_korder():
    return [[7 * c + T for T in st for c in range(4)] for st in cfg.stages]


def wd_loc(s, f):
    order = [k for g in p4_korder() for k in g]
    p = order.index(s)
    r = 160 + (2 * p + f) * 4 if p < 8 else (2 * (p - 8) + f) * 4
    return f'a[{r}:{r+3}]'


LDS_WO = 98304
LDS_TAB = 81920


def slot(T):
    return (T % 5) * 32768


def st_wqkv(fs):
    a = Asm()
    a('s_mul_i32 s40, s17, 49152')
    cur = None
    for f in fs:
        g = f >> 2
        if g != cur:
            a(f's_add_u32 s41, s40, {hx(WQKV_F + g * 4096)}')
            cur = g
        a(f'buffer_load_dwordx4 {wq_loc(f)}, v1, s[8:11], s41 offen offset:{1024*(f&3)}{cfg.wsc}', tag='wq')
    return a


VWO = 5


def st_wo_f():
    a = Asm()
    a('s_lshl_b32 s42, s19, 16')
    a('s_lshl_b32 s43, s3, 14')
    a('s_add_u32 s42, s42, s43')
    a(f's_add_u32 s42, s42, {hx(WO_F)}')
    a(f's_add_u32 s43, s43, {LDS_WO}')
    for g in range(4):
        a('s_mov_b32 m0, s43')
        for j in range(4):
            a(f'buffer_load_dwordx4 v1, s[8:11], s42 offen offset:{1024*j}{cfg.wsc} lds', tag='wo')
        if g < 3:
            a('s_add_u32 s42, s42, 4096')
            a('s_add_u32 s43, s43, 4096')
    return a


def st_wo():
    a = Asm()
    a('s_lshl_b32 s42, s19, 7')
    a('s_lshl_b32 s43, s3, 17')
    a('s_add_u32 s42, s42, s43')
    a('s_lshl_b32 s43, s3, 14')
    a(f's_add_u32 s43, s43, {LDS_WO}')
    for g in range(4):
        a('s_mov_b32 m0, s43')
        for j in range(4):
            a(f'buffer_load_dwordx4 v{VWO}, s[76:79], s42 offen offset:{1024*j} lds', tag='wo')
            if j < 3:
                a('s_add_u32 s42, s42, 7168')
        if g < 3:
            a(f's_add_u32 s42, s42, {8192 + 3072}')
            a('s_add_u32 s43, s43, 4096')
    return a


def wo_tr(BF):
    a = Asm()
    A0, A1, AW = 12, 13, 14
    a('s_lshl_b32 s38, s3, 14')
    a(f's_add_u32 s38, s38, {LDS_WO}')
    a('v_lshrrev_b32 v11, 5, v0')
    a('v_bfe_u32 v15, v0, 2, 2')
    a(f'v_lshl_add_u32 v{A0}, v11, 3, v15')
    a(f'v_lshlrev_b32 v{A0}, 7, v{A0}')
    a('v_bfe_u32 v15, v0, 3, 1')
    a(f'v_lshl_add_u32 v{A0}, v15, 6, v{A0}')
    a('v_and_b32 v15, 3, v0')
    a(f'v_lshl_add_u32 v{A0}, v15, 4, v{A0}')
    a('v_bfe_u32 v15, v0, 4, 1')
    a(f'v_lshl_add_u32 v{A0}, v15, 3, v{A0}')
    a(f'v_add_u32 v{A0}, s38, v{A0}')
    a(f'v_xor_b32 v{A1}, 64, v{A0}')
    a(f'v_lshlrev_b32 v{AW}, 10, v15')
    a(f'v_lshl_add_u32 v{AW}, v11, 8, v{AW}')
    a('v_and_b32 v15, 15, v0')
    a(f'v_lshl_add_u32 v{AW}, v15, 4, v{AW}')
    a(f'v_add_u32 v{AW}, s38, v{AW}')
    a.waitvm('wo')
    for u in range(8):
        for p in range(2):
            r = BF + 4 * (2 * u + p)
            for h in range(2):
                a(f'ds_read_b64_tr_b16 v[{r+2*h}:{r+2*h+1}], v{A0+p} offset:{u * 2048 + h * 512}')
    a('s_waitcnt lgkmcnt(0)')
    for u in range(8):
        for p in range(2):
            r = BF + 4 * (2 * u + p)
            a(f'ds_write_b128 v{AW}, v[{r}:{r+3}] offset:{(u >> 1) * 4096 + p * 2048 + (u & 1) * 512}')
    return a


def st_wgu(Ts):
    a = Asm()
    a('s_mul_i32 s44, s21, 229376')
    a('s_lshl_b32 s45, s3, 13')
    a('s_add_u32 s44, s44, s45')
    for T in Ts:
        for g in range(2):
            a(f's_add_u32 s46, s45, {slot(T) + g * 4096}')
            a(f's_add_u32 s47, s44, {hx(WGU_F + T * 32768 + g * 4096)}')
            a('s_mov_b32 m0, s46')
            for j in range(4):
                a(f'buffer_load_dwordx4 v1, s[8:11], s47 offen offset:{1024*j}{cfg.wsc} lds', tag=f'wg{T}')
    return a


CF = (124, 76)
MBZ = 64


def st_csf():
    a = Asm()
    a('s_lshl_b32 s48, s21, 11')
    a(f's_add_u32 s48, s48, {hx(CSF)}')
    for j in range(2):
        a(f'buffer_load_dwordx4 v[{CF[j]}:{CF[j]+3}], v1, s[8:11], s48 offen offset:{1024*j} sc1', tag='csf')
    return a


def st_wd(positions):
    a = Asm()
    order = [k for g in p4_korder() for k in g]
    a('s_lshl_b32 s49, s23, 1')
    a('s_and_b32 s50, s3, 1')
    a('s_add_u32 s49, s49, s50')
    a('s_xor_b32 s50, s49, 1')
    a('s_mul_i32 s51, s3, 28672')
    a('s_mul_i32 s49, s49, 114688')
    a('s_mul_i32 s50, s50, 114688')
    a('s_add_u32 s49, s49, s51')
    a('s_add_u32 s50, s50, s51')
    for p in positions:
        s = order[p]
        for f in range(2):
            a(f's_add_u32 s51, s{49+f}, {hx(WD_F + s * 1024)}')
            a(f'buffer_load_dwordx4 {wd_loc(s, f)}, v1, s[8:11], s51 offen{cfg.wsc}', tag='wd')
    return a


def mix(x, y):
    x = x.ins if isinstance(x, Asm) else x
    y = y.ins if isinstance(y, Asm) else y
    out = []
    i = j = 0
    while i < len(x) or j < len(y):
        if j >= len(y) or (i < len(x) and i * len(y) <= j * len(x)):
            out.append(x[i]); i += 1
        else:
            out.append(y[j]); j += 1
    return out


def cat(*xs):
    out = []
    for x in xs:
        out.extend(x.ins if isinstance(x, Asm) else x)
    return out


def split_mfma(lst, bounds):
    parts = [[] for _ in range(len(bounds) + 1)]
    m = 0
    for i in lst:
        parts[sum(1 for b in bounds if m >= b)].append(i)
        if i.kind == 'mfma':
            m += 1
    return parts


def vm_split(st, n):
    k = 0
    L = st.ins if isinstance(st, Asm) else st
    for idx, i in enumerate(L):
        if i.kind == 'vmem':
            k += 1
            if k == n:
                return L[:idx + 1], L[idx + 1:]
    return L, []


VX, VW, VT = 248, 249, 250


def grp(a, *lines, tag=None, raw=False):
    g = Asm()
    for x in lines:
        g(x, tag=tag if x.startswith('buffer_') or x.startswith('ds_') else None, raw=raw)
    a.group(g)


def front_early(a):
    a('s_lshl_b32 s35, s3, 2')
    a('v_lshrrev_b32 v3, 4, v0')
    a('v_add_u32 v3, s35, v3')
    a('v_and_b32 v4, 15, v0')
    a('v_xor_b32 v4, v4, v3')
    a(f'v_lshlrev_b32 v{VX}, 10, v3')
    a(f'v_lshl_add_u32 v{VX}, v4, 4, v{VX}')
    a('v_lshrrev_b32 v3, 3, v0')
    a('s_and_b32 s36, s3, 1')
    a('s_lshl_b32 s36, s36, 1')
    a('v_bfe_u32 v4, v0, 4, 1')
    a('v_or_b32 v4, s36, v4')
    a('v_bfe_u32 v5, v0, 1, 2')
    a('v_xor_b32 v4, v4, v5')
    a('s_lshl_b32 s36, s3, 3')
    a('v_add_u32 v3, s36, v3')
    a(f'v_mul_u32_u24 v{VW}, 3072, v3')
    a(f'v_lshl_add_u32 v{VW}, v4, 5, v{VW}')
    a('v_and_b32 v4, 1, v0')
    a(f'v_lshl_add_u32 v{VW}, v4, 4, v{VW}')
    a('s_lshl_b32 s35, s3, 10')
    a('s_mul_i32 s34, s3, 3072')
    a('s_lshl_b32 s30, s16, 16')
    a('s_sub_u32 s31, s30, 16384')
    a('s_max_i32 s31, s31, 0')
    a('s_add_u32 s68, s30, 16384')
    a('s_add_u32 s69, s30, 32768')
    a('s_add_u32 s27, s30, 49152')
    a('s_lshr_b32 s32, s17, 2')
    a('s_lshl_b32 s32, s32, 7')
    a('s_and_b32 s52, s2, 7')
    a('s_lshr_b32 s53, s2, 4')
    a('s_lshl_b32 s53, s53, 3')
    a('s_add_u32 s52, s52, s53')
    a('s_lshl_b32 s52, s52, 1')
    a('s_bfe_u32 s53, s2, 0x10003')
    a('s_add_u32 s52, s52, s53')


def slab_role():
    a = Asm()
    a('s_mov_b32 s99, 0x00020000')
    a('s_mov_b32 s51, 0')
    a('s_mov_b32 s53, 0')
    a('s_mov_b32 s54, 0')
    a('s_cmp_lt_u32 s52, 48')
    a('s_cbranch_scc1 L_sl_qkv')
    a('s_cmp_lt_u32 s52, 64')
    a('s_cbranch_scc1 L_sl_wo')
    a('s_cmp_lt_u32 s52, 176')
    a('s_cbranch_scc1 L_sl_gu')
    a('s_mov_b32 s96, s84')
    a('s_mov_b32 s97, s85')
    a(f's_mov_b32 s98, {1792 * 1024}')
    a('s_cmp_ge_u32 s52, 240')
    a('s_cselect_b32 s36, 16, 0')
    a('s_sub_u32 s36, s52, s36')
    a('s_sub_u32 s36, s36, 176')
    a('s_lshr_b32 s37, s36, 4')
    a('s_and_b32 s36, s36, 15')
    a('s_mov_b32 s40, 1024')
    a(f's_mul_i32 s41, s37, {448 * 1024}')
    a(f's_mul_i32 s38, s3, {112 * 1024}')
    a('s_add_u32 s41, s41, s38')
    a('s_lshl_b32 s38, s36, 6')
    a('s_add_u32 s41, s41, s38')
    a('s_mul_i32 s43, s36, 114688')
    a('s_mul_i32 s38, s37, 28672')
    a('s_add_u32 s43, s43, s38')
    a('s_mul_i32 s38, s3, 7168')
    a('s_add_u32 s43, s43, s38')
    a(f's_add_u32 s43, s43, {hx(WD_F)}')
    a('s_mov_b32 s44, 1024')
    a('s_mov_b32 s45, 2048')
    a('s_mov_b32 s46, 256')
    a('s_mov_b32 s47, 512')
    a('s_mov_b32 s48, 16')
    a('s_mov_b32 s49, 32')
    a('s_mov_b32 s50, 8')
    a('s_mov_b32 s51, 16384')
    a('s_mov_b32 s53, 1024')
    a('s_lshr_b32 s36, s36, 1')
    a('s_lshl_b32 s36, s36, 8')
    a(f's_add_u32 s64, s36, {hx(GWD)}')
    a('s_cmp_ge_u32 s52, 240')
    a(f's_cselect_b32 s64, {hx(GDUM)}, s64')
    a('s_mov_b32 s65, s64')
    a('s_branch L_sl_go')
    a('L_sl_gu:')
    a('s_cmp_lt_u32 s52, 120')
    a('s_cselect_b32 s96, s80, s82')
    a('s_cselect_b32 s97, s81, s83')
    a('s_cselect_b32 s36, 64, 120')
    a('s_cselect_b32 s37, 0, 256')
    a(f's_mov_b32 s98, {512 * 3584}')
    a('s_sub_u32 s36, s52, s36')
    a('s_mov_b32 s40, 3584')
    a(f's_mul_i32 s41, s3, {128 * 3584}')
    a('s_lshl_b32 s38, s36, 6')
    a('s_add_u32 s41, s41, s38')
    a('s_lshl_b32 s43, s36, 16')
    a('s_add_u32 s43, s43, s37')
    a('s_lshl_b32 s38, s3, 13')
    a('s_add_u32 s43, s43, s38')
    a(f's_add_u32 s43, s43, {hx(WGU_F)}')
    a('s_mov_b32 s44, 1024')
    a('s_mov_b32 s45, 2048')
    a('s_mov_b32 s46, 32768')
    a('s_mov_b32 s47, 512')
    a('s_mov_b32 s48, 32')
    a('s_mov_b32 s49, 16')
    a('s_mov_b32 s50, 8')
    a('s_mov_b32 s54, 2')
    for e in range(2):
        a('s_lshl_b32 s38, s36, 1')
        a(f's_add_u32 s38, s38, {e}')
        a('s_mul_i32 s39, s38, 9363')
        a('s_lshr_b32 s39, s39, 16')
        a(f's_lshl_b32 s{64+e}, s39, 8')
        a(f's_add_u32 s{64+e}, s{64+e}, {hx(GGU)}')
        a(f's_lshl_b32 s{55+e}, s39, 11')
        a('s_mul_i32 s39, s39, 7')
        a('s_sub_u32 s38, s38, s39')
        a('s_lshr_b32 s39, s38, 1')
        a('s_lshl_b32 s39, s39, 9')
        a(f's_add_u32 s{55+e}, s{55+e}, s39')
        a('s_and_b32 s38, s38, 1')
        a('s_lshl_b32 s38, s38, 3')
        a(f's_add_u32 s{55+e}, s{55+e}, s38')
        a(f's_add_u32 s{55+e}, s{55+e}, s37')
        a(f's_add_u32 s{55+e}, s{55+e}, {hx(CSF)}')
    a('s_branch L_sl_go')
    a('L_sl_wo:')
    a('s_mov_b32 s96, s76')
    a('s_mov_b32 s97, s77')
    a(f's_mov_b32 s98, {512 * 1024}')
    a('s_sub_u32 s36, s52, 48')
    a('s_mov_b32 s40, 1024')
    a('s_lshl_b32 s41, s3, 17')
    a('s_lshl_b32 s38, s36, 6')
    a('s_add_u32 s41, s41, s38')
    a('s_lshr_b32 s37, s36, 1')
    a('s_lshl_b32 s43, s37, 16')
    a('s_and_b32 s38, s36, 1')
    a('s_lshl_b32 s38, s38, 11')
    a('s_add_u32 s43, s43, s38')
    a('s_lshl_b32 s38, s3, 14')
    a('s_add_u32 s43, s43, s38')
    a(f's_add_u32 s43, s43, {hx(WO_F)}')
    a('s_mov_b32 s44, 512')
    a('s_mov_b32 s45, 4096')
    a('s_mov_b32 s46, 1024')
    a('s_mov_b32 s47, 256')
    a('s_mov_b32 s48, 8')
    a('s_mov_b32 s49, 16')
    a('s_mov_b32 s50, 32')
    a('s_lshl_b32 s37, s37, 8')
    a(f's_add_u32 s64, s37, {hx(GWO)}')
    a('s_mov_b32 s65, s64')
    a('s_branch L_sl_go')
    a('L_sl_qkv:')
    a('s_mov_b32 s96, s74')
    a('s_mov_b32 s97, s75')
    a(f's_mov_b32 s98, {512 * 3072}')
    a('s_mov_b32 s40, 3072')
    a(f's_mul_i32 s41, s3, {128 * 3072}')
    a('s_lshl_b32 s38, s52, 6')
    a('s_add_u32 s41, s41, s38')
    a('s_and_b32 s36, s52, 15')
    a('s_mul_i32 s43, s36, 98304')
    a('s_lshr_b32 s38, s52, 4')
    a('s_lshl_b32 s38, s38, 10')
    a('s_add_u32 s43, s43, s38')
    a('s_mul_i32 s38, s3, 12288')
    a('s_add_u32 s43, s43, s38')
    assert WQKV_F == 0
    a('s_mov_b32 s44, 512')
    a('s_mov_b32 s45, 3072')
    a('s_mov_b32 s46, 49152')
    a('s_mov_b32 s47, 256')
    a('s_mov_b32 s48, 32')
    a('s_mov_b32 s49, 8')
    a('s_mov_b32 s50, 16')
    a('s_mov_b32 s54, 1')
    a('s_lshl_b32 s55, s52, 7')
    a(f's_add_u32 s55, s55, {hx(CS_QKV)}')
    a('s_add_u32 s56, s55, 64')
    a('s_lshr_b32 s36, s36, 1')
    a('s_lshl_b32 s36, s36, 8')
    a(f's_add_u32 s64, s36, {hx(GWQ)}')
    a('s_mov_b32 s65, s64')
    a('L_sl_go:')
    a('s_lshl_b32 s36, s2, 2')
    a('s_add_u32 s36, s36, s3')
    a('s_lshl_b32 s36, s36, 9')
    a(f's_add_u32 s36, s36, {hx(DUMMY)}')
    a('s_add_u32 s37, s36, 256')
    a('s_cmp_eq_u32 s3, 0')
    a('s_cselect_b32 s38, s54, 0')
    a('s_cmp_lg_u32 s38, 0')
    a('s_cselect_b32 s55, s55, s36')
    a('s_cselect_b32 s56, s56, s37')
    a('s_lshl_b32 s42, s40, 4')
    a('s_sub_u32 s51, s42, s51')
    a('s_lshl_b32 s66, s3, 13')
    a(f's_add_u32 s66, s66, {LDS_SLAB}')
    return a


def spin(a, name, load, cmp_):
    a(f's_mov_b32 s57, {SPIN}')
    a(cmp_, raw=True)
    a(f's_cbranch_vccz L_{name}_ok')
    a(f'L_{name}:')
    a(load, raw=True)
    a('s_waitcnt vmcnt(0)', raw=True)
    a(cmp_, raw=True)
    a('s_sub_u32 s57, s57, 1')
    a(f's_cbranch_scc1 L_{name}_ok')
    a(f's_cbranch_vccnz L_{name}')
    a(f'L_{name}_ok:')
    if cfg.stamp and cfg.spin:
        spin_names.append(name)
        a(f's_sub_u32 s57, {SPIN}, s57')
        a(f'v_writelane_b32 v2, s57, {50 + len(spin_names) - 1}')


VG, VGT, VZ = 254, 255, 216


def g0_check():
    a = Asm()
    a.waitvm('g0')
    g = Asm()
    g('s_cmp_lg_u32 s3, 0')
    g('s_cbranch_scc1 L_g0_skip')
    g('s_mov_b64 exec, 15')
    spin(g, 'g0', f'buffer_load_dword v{VZ}, v{VG}, s[8:11], 0 offen sc1', f'v_cmp_ne_u32 vcc, v{VGT}, v{VZ}')
    g('s_mov_b64 exec, -1')
    g('L_g0_skip:')
    a.group(g)
    return a


def fix_m0(a, start):
    from asmlib import flatten
    body = flatten(a.ins[start:])
    out = []
    cur = None
    for i in body:
        if i.kind == 'salu' and ('s', 'm0') in i.defs:
            cur = i.text
        if i.kind == 'vmem' and isinstance(i.note, str) and i.note.startswith('s_add_u32 m0'):
            if cur != i.note:
                out.append(Ins(i.note))
                cur = i.note
            i.note = None
        out.append(i)
    a.ins[start:] = out


def front0(a, consts, AK, AV, AQ, CSQ, CSK, CSV, VC):
    VXR, VXR2, VXS = 140, 144, 148
    VSL, VST, VSS = 251, 252, 253
    VCA, VCS, VCW, VCR = 153, 154, 155, 156
    WS = lambda s, P: 160 + 12 * (s & 1) + 4 * P
    CSV4, ONE, SO, GO, SH, GH = 184, 188, 192, 196, 200, 204
    RX = [84, 88, 92, 96, 208, 212]
    SF = [224, 228, 232, 236]
    CSA, SEL = 240, 244
    q4 = lambda r: f'v[{r}:{r+3}]'

    def xd(d, kq, i):
        grp(d, f's_add_u32 m0, s35, {kq * 20224 + i * 4096}',
            f'buffer_load_dwordx4 v{VX}, s[60:63], s{(31, 30, 68, 69, 27)[i]} offen offset:{kq * 256}{cfg.ntx} lds', tag=f'x{kq}')

    def wd_(d, s):
        ld = [f'buffer_load_dwordx4 v{VW}, s[92:95], s33 offen offset:{P * 1024}{cfg.ntw} lds' for P in (1, 2, 0)]
        m0 = f's_add_u32 m0, s34, {LDS_RING + (s & 3) * 12288}'
        grp(d, m0, f's_add_u32 s33, s32, {s * 98304}', ld[0], tag=f'w{s}')
        for x in ld[1:]:
            i = d(x, tag=f'w{s}')
            i.note = m0

    def tr(d, s):
        for P in (1, 2, 0):
            for u in range(2):
                r = WS(s, P) + 2 * u
                d(f'ds_read_b64_tr_b16 v[{r}:{r+1}], v{VT} offset:{(s & 3) * 12288 + P * 1024 + u * 512}', tag=f't{s}')

    def sld(d, u):
        if cfg.xp & 1:
            return
        grp(d, f's_add_u32 m0, s66, {u * 1024}',
            f'buffer_load_dwordx4 v{VSL}, s[96:99], s41 offen{cfg.nts} lds',
            f's_add_u32 s41, s41, s{51 if u == 6 else 42}', tag=f'sl{u}')

    def sst(d, u):
        r = SF[u & 3]
        d.waitvm(f'sl{u}')
        for h in range(2):
            d(f'ds_read_b64_tr_b16 v[{r+2*h}:{r+2*h+1}], v{VST} offset:{u * 1024 + h * 256}')
        e = Asm()
        if u & 1:
            e('s_add_u32 s67, s43, s44')
            if u == 7:
                e('s_sub_u32 s67, s67, s53')
            if not cfg.xp & 2:
                e(f'buffer_store_dwordx4 {q4(r)}, v{VSS}, s[8:11], s67 offen{cfg.ssc}', tag='slab')
            e('s_add_u32 s43, s43, s45')
        elif not cfg.xp & 2:
            e(f'buffer_store_dwordx4 {q4(r)}, v{VSS}, s[8:11], s43 offen{cfg.ssc}', tag='slab')
        e(f'v_mfma_f32_16x16x32_bf16 {q4(CSA)}, {q4(r)}, {q4(SEL)}, {q4(CSA) if u else 0}')
        return e

    start0 = len(a.ins)
    z = Asm()
    z('s_cmp_lt_u32 s52, 240')
    z('s_cbranch_scc1 L_z_skip')
    z('s_cmp_gt_u32 s3, 1')
    z('s_cbranch_scc1 L_z_skip')
    z('s_sub_u32 s36, s52, 240')
    z('s_lshl_b32 s36, s36, 1')
    z('s_add_u32 s36, s36, s3')
    z('s_lshl_b32 s36, s36, 14')
    z(f's_add_u32 s36, s36, {hx(FLAGS)}')
    z('v_lshlrev_b32 v3, 8, v0')
    z('v_mov_b32 v4, 0')
    z('buffer_store_dword v4, v3, s[8:11], s36 offen sc1', raw=True)
    z('L_z_skip:')
    a.group(z)
    L = Asm()
    for i in range(5):
        xd(L, 0, i)
    for s in range(4):
        if cfg.sw[s] < 0:
            wd_(L, s)
    L2 = Asm()
    for u in range(8):
        if cfg.sld[u] < 0:
            sld(L2, u)
    for i in range(5):
        if cfg.sx1[i] < 0:
            xd(L2, 1, i)
    S = Asm()
    S('v_and_b32 v132, 15, v0')
    S('v_lshrrev_b32 v133, 4, v0')
    S('v_lshrrev_b32 v134, 2, v132')
    S(f'v_mul_u32_u24 v{VT}, 3072, v133')
    S(f'v_lshl_add_u32 v{VT}, v134, 7, v{VT}')
    S('v_bfe_u32 v135, v0, 3, 2')
    S('v_xor_b32 v135, s3, v135')
    S(f'v_lshl_add_u32 v{VT}, v135, 5, v{VT}')
    S('v_and_b32 v135, 3, v0')
    S(f'v_lshl_add_u32 v{VT}, v135, 3, v{VT}')
    S(f'v_add_u32 v{VT}, {LDS_RING}, v{VT}')
    S('s_lshl_b32 s38, s3, 12')
    S('s_add_u32 s38, s38, 4096')
    for j in range(4):
        S(f'v_add_u32 v135, {4 * j}, v133')
        S('v_xor_b32 v135, v135, v132')
        S(f'v_lshlrev_b32 v{VXR+j}, 8, v132')
        S(f'v_lshl_add_u32 v{VXR+j}, v135, 4, v{VXR+j}')
        S(f'v_add_u32 v{VXR2+j}, 61440, v{VXR+j}')
        S(f'v_add_u32 v{VXS+j}, s38, v{VXR+j}')
    for r in range(4):
        S(f'v_mov_b32 v{ONE+r}, s25')
    for (dt, dc, e, nb, nc) in ((18, 19, cfg.e2, 5, 3), (20, 21, cfg.e3, 4, 4), (22, 23, cfg.e4, 5, 3)):
        role(S, dt, dc, e, nb, nc, (36, 37, 38, 57))
    S.group(slab_role())
    S('v_lshrrev_b32 v135, 2, v0')
    S(f'v_mul_u32_u24 v{VSL}, s40, v135')
    S('v_and_b32 v135, 3, v0')
    S(f'v_lshl_add_u32 v{VSL}, v135, 4, v{VSL}')
    S('v_lshrrev_b32 v136, 5, v0')
    S('v_and_b32 v137, 1, v133')
    S('v_lshl_add_u32 v135, v136, 3, v134')
    S(f'v_lshlrev_b32 v{VST}, 6, v135')
    S(f'v_mad_u32_u24 v{VST}, v137, s48, v{VST}')
    S('v_and_b32 v135, 1, v0')
    S(f'v_mad_u32_u24 v{VST}, v135, s49, v{VST}')
    S('v_bfe_u32 v135, v0, 1, 1')
    S(f'v_mad_u32_u24 v{VST}, v135, s50, v{VST}')
    S(f'v_add_u32 v{VST}, s66, v{VST}')
    S(f'v_lshlrev_b32 v{VSS}, 4, v132')
    S(f'v_mad_u32_u24 v{VSS}, v137, s46, v{VSS}')
    S(f'v_mad_u32_u24 v{VSS}, v136, s47, v{VSS}')
    g = Asm()
    g('v_xor_b32 v135, v0, v133')
    g('v_and_b32 v135, 1, v135')
    g('v_cmp_eq_u32 vcc, 0, v135')
    g(f'v_cndmask_b32 v{SEL}, 0, v{ONE}, vcc')
    S.group(g)
    for r in range(1, 4):
        S(f'v_mov_b32 v{SEL+r}, v{SEL}')
    S(f'v_mov_b32 v{VCA}, s64')
    S(f'v_writelane_b32 v{VCA}, s65, 1')
    g = Asm()
    g('s_cmp_eq_u32 s54, 2')
    g('s_cselect_b32 s38, 16, 4')
    g(f'v_mul_u32_u24 v{VCS}, s38, v132')
    g('v_mov_b32 v135, s55')
    g('v_mov_b32 v136, s56')
    g('v_cmp_eq_u32 vcc, 0, v137')
    g('v_cndmask_b32 v135, v136, v135, vcc')
    g(f'v_add_u32 v{VCS}, v{VCS}, v135')
    S.group(g)
    S('v_and_b32 v135, 1, v0')
    S(f'v_lshlrev_b32 v{VCW}, 6, v135')
    S(f'v_lshl_add_u32 v{VCW}, v133, 4, v{VCW}')
    S('s_lshl_b32 s38, s3, 7')
    S(f's_add_u32 s38, s38, {LDS_CSR}')
    S(f'v_add_u32 v{VCW}, s38, v{VCW}')
    S('v_and_b32 v135, 31, v0')
    S(f'v_lshlrev_b32 v{VCR}, 2, v135')
    S(f'v_add_u32 v{VCR}, {LDS_CSR}, v{VCR}')
    for k, (sr_, base, tgt, sh) in enumerate(((19, GWO, 4, 0), (21, GGU, 14, 0), (23, GWD, 16, 0), (17, GWQ, 12, 2))):
        S(f's_lshr_b32 s38, s{sr_}, {sh}')
        S('s_lshl_b32 s38, s38, 8')
        S(f's_add_u32 s38, s38, {hx(base)}')
        if k == 0:
            S(f'v_mov_b32 v{VG}, s38')
            S(f'v_mov_b32 v{VGT}, {tgt}')
        else:
            S(f'v_writelane_b32 v{VG}, s38, {k}')
            S(f'v_writelane_b32 v{VGT}, {tgt}, {k}')
    for i in consts.ins:
        S.ins.append(i)
    a.extend(L.ins[:3])
    ncon = len(consts.ins)
    a.extend(mix(L.ins[3:], S.ins[:-ncon]))
    a.extend(mix(L2, S.ins[-ncon:]))
    stamp(a, 'p1.0 issued')
    a.waitvm('w0')
    a('s_barrier')
    g = Asm()
    g('s_cmp_lt_u32 s52, 240')
    g('s_cbranch_scc1 L_zf_skip')
    g('s_cmp_lg_u32 s3, 0')
    g('s_cbranch_scc1 L_zf_skip')
    g('s_sub_u32 s36, s52, 240')
    g('s_lshl_b32 s36, s36, 2')
    g('v_mov_b32 v135, 1')
    g('s_mov_b64 exec, 1')
    g('buffer_store_dword v135, off, s[88:91], s36 sc1', raw=True)
    g('s_mov_b64 exec, -1')
    g('L_zf_skip:')
    a.group(g)
    tr(a, 0)
    stamp(a, 'p1.0 first')

    groups = []
    mf = lambda d, x, y, first: f'v_mfma_f32_16x16x32_bf16 {q4(d)}, {x}, {y}, {0 if first else q4(d)}'
    for s in range(16):
        kq, j = s >> 2, s & 3
        for i in range(5):
            off = kq * 20480 + i * 4096
            ad = (VXR + j, off) if off < 65536 else (VXR2 + j, off - 61440)

            def f(B, s=s, i=i):
                r = [mf(AK(i), q4(WS(s, 1)), B, s == 0), mf(AV(i), B, q4(WS(s, 2)), s == 0)]
                if i:
                    r.append(mf(AQ(i), q4(WS(s, 0)), B, s == 0))
                return r
            groups.append((s, ad, f))
        groups.append((s, None, lambda B, s=s: [mf(CSK, q4(WS(s, 1)), q4(ONE), s == 0), mf(CSV4, q4(ONE), q4(WS(s, 2)), s == 0),
                                                mf(CSQ, q4(WS(s, 0)), q4(ONE), s == 0)]))
        if 2 <= s < 10:
            for sg in (2 * s - 4, 2 * s - 3):
                for (base, sm, gr) in ((VXS, SO, GO), (VXR, SH, GH)):
                    groups.append((s, (base + (sg & 3), (sg >> 2) * 20480),
                                   lambda B, sg=sg, sm=sm, gr=gr: [mf(sm, q4(ONE), B, sg == 0), mf(gr, B, B, sg == 0)]))
    rd_groups = [k for k, x in enumerate(groups) if x[1]]
    ring = {k: RX[n % len(RX)] for n, k in enumerate(rd_groups)}
    D = 4
    nxt = [0]

    def rd(g):
        if nxt[0] < len(rd_groups):
            k = rd_groups[nxt[0]]
            g(f'ds_read_b128 {q4(ring[k])}, v{groups[k][1][0]} offset:{groups[k][1][1]}')
            nxt[0] += 1
    for _ in range(D):
        rd(a)
    prim = [Asm() for _ in range(16)]
    trs = []
    for s in range(16):
        t_ = Asm()
        if s < 15:
            tr(t_, s + 1)
        trs.append(t_.ins)
    for k, (s, ad, f) in enumerate(groups):
        ms = f(q4(ring[k]) if ad else None)
        for n, m in enumerate(ms):
            prim[s](m)
            if ad and n == 1:
                rd(prim[s])
            elif trs[s]:
                prim[s].ins.append(trs[s].pop(0))

    fin = Asm()
    fin('s_mov_b32 s58, 0xcccccccc')
    fin('s_mov_b32 s59, 0xcccccccc')
    for gr in (GO, GH):
        fin(f'v_cndmask_b32 v{gr}, v{gr}, v{gr+1}, s[28:29]')
        fin(f'v_cndmask_b32 v{gr+2}, v{gr+2}, v{gr+3}, s[28:29]')
        fin(f'v_cndmask_b32 v{gr}, v{gr}, v{gr+2}, s[58:59]')
    fin(f'v_mov_b32 v{SO+1}, v{GO}')
    fin(f'v_mov_b32 v{SH+1}, v{GH}')
    for base in (SO, SH):
        G.stat_finalize(fin, base, base + 1, base + 2, 24)
    fin('s_lshl_b32 s38, s3, 7')
    fin(f'v_add_u32 v{GO}, s38, v{VC}')
    grp(fin, 's_mov_b32 exec_lo, 0x00f0000f', 's_mov_b32 exec_hi, 0xf0000f00',
        f'ds_write_b64 v{GO}, v[{SO}:{SO+1}] offset:128', f'ds_write_b64 v{VC}, v[{SH}:{SH+1}]',
        's_mov_b64 exec, -1', tag='tab')
    cw = Asm()
    grp(cw, 's_mov_b32 exec_lo, 0x00030003', 's_mov_b32 exec_hi, 0x00030003',
        f'ds_write_b128 v{VCW}, {q4(CSA)}', 's_mov_b64 exec, -1', tag='csw')
    cr = Asm()
    for w in range(4):
        cr(f'ds_read_b32 v{CSA+w}, v{VCR} offset:{128 * w}')
    cr(f'v_add_f32 v{CSA}, v{CSA}, v{CSA+1}')
    cr(f'v_add_f32 v{CSA+2}, v{CSA+2}, v{CSA+3}')
    cr(f'v_add_f32 v{CSA}, v{CSA}, v{CSA+2}')
    cr(f'v_cvt_pk_bf16_f32 v{CSA+3}, v{CSA}, v{CSA}')
    cr(f'v_and_b32 v{CSA+1}, 0xffff0000, v{CSA+3}')
    cr(f'v_sub_f32 v{CSA+2}, v{CSA}, v{CSA+1}')
    cr(f'v_and_b32 v{CSA+3}, 0xffff, v{CSA+3}')
    cr(f'v_cvt_pk_bf16_f32 v{CSA+2}, v{CSA+1}, v{CSA+2}')
    g = Asm()
    g('s_cmp_eq_u32 s54, 2')
    g('s_cbranch_scc1 L_cs_gu')
    g(f'buffer_store_dword v{CSA}, v{VCS}, s[8:11], 0 offen sc1', raw=True)
    g('s_branch L_cs_done')
    g('L_cs_gu:')
    g(f'buffer_store_dwordx2 v[{CSA+2}:{CSA+3}], v{VCS}, s[8:11], 0 offen sc1', tag='slab')
    g('L_cs_done:')
    if not cfg.xp & 1:
        cr.group(g)
    zl = Asm()
    grp(zl, 's_mov_b64 exec, 0xffff', f'v_lshlrev_b32 v{VZ+5}, 2, v0',
        f'buffer_load_dword v{VZ}, v{VZ+5}, s[88:91], 0 offen sc1', 's_mov_b64 exec, -1', tag='z')
    sg_ = Asm()
    sg_('s_cmp_lg_u32 s3, 0')
    sg_('s_cbranch_scc1 L_sig0_skip')
    sg_('s_mov_b64 exec, 0xffff')
    spin(sg_, 'zchk', f'buffer_load_dword v{VZ}, v{VZ+5}, s[88:91], 0 offen sc1', f'v_cmp_ne_u32 vcc, 1, v{VZ}')
    sg_('s_mov_b64 exec, 3')
    sg_(f'v_mov_b32 v{VZ}, 1')
    sg_(f'buffer_atomic_add v{VZ}, v{VCA}, s[8:11], 0 offen sc1', raw=True)
    sg_('s_mov_b64 exec, -1')
    sg_('L_sig0_skip:')
    gl = Asm()
    grp(gl, 's_mov_b64 exec, 15', f'buffer_load_dword v{VZ}, v{VG}, s[8:11], 0 offen sc1', 's_mov_b64 exec, -1', tag='g0')

    last_st = max(cfg.sst)
    for s in range(16):
        tags = [f'w{s+1}'] + {3: ['x1'], 6: ['x2'], 8: ['x3']}.get(s, [])
        if s == cfg.ssig:
            tags += ['slab', 'z']
        a.waitvm(*tags)
        a.waitlgkm(f't{s}', 'tab', 'csw')
        a('s_barrier')
        if s == cfg.ssig:
            a.group(sg_)
        sec = Asm()
        late = Asm()
        for u in range(8):
            if cfg.sst[u] == s:
                late.extend(sst(sec, u))
        ld = Asm()
        for k in range(16):
            if cfg.sw[k] == s:
                assert k < 4 or s >= k - 4
                wd_(ld, k)
        for i in range(5):
            if cfg.sx1[i] == s:
                xd(ld, 1, i)
            if cfg.sx2[i] == s:
                xd(ld, 2, i)
            if cfg.sx3[i] == s:
                xd(ld, 3, i)
        for u in range(8):
            if cfg.sld[u] == s:
                sld(ld, u)
        oth = Asm()
        if s == last_st + 1:
            oth.extend(cw)
        if s == last_st + 2:
            oth.extend(cr)
            oth.extend(zl)
        if s == 11:
            oth.extend(fin)
        nm = sum(1 for i in prim[s].ins if i.kind == 'mfma')
        a.merge(prim[s], cat(mix(sec, ld), mix(oth, late)), 0, nm - 1)
        if s in (3, 7, 11):
            stamp(a, f'p1.0 s{s}')
    fix_m0(a, start0)
    stamp(a, 'p1.0 gemm')
    a(f'v_mov_b32 v{CSV}, v{CSV4}')
    return sg_, gl


def p1(a, l):
    X = X0 if l == 0 else X2
    ST = STA[l]
    VH, VM_, VD, VC, VR = 5, 6, 7, 8, 9
    BI, SELA, SELB = 10, 16, 17
    CSQ, CSK, CSV = 18, 22, 26
    AK = lambda i: 28 + 12 * i - (4 if i else 0)
    AV = lambda i: AK(i) + 4
    AQ = lambda i: AK(i) + 8
    BR = 84
    KP, VP, QP = 100, 110, 118
    SC, CT = 127, 132
    SS, TT, PP = 28, 44, 52
    MM, OO, OS = 142, 146, 154
    NEG = f2u(-1e30)
    outer = a
    a = Asm()
    a('v_and_b32 v3, 15, v0')
    a('v_lshrrev_b32 v4, 4, v0')
    a(f'v_lshlrev_b32 v{VD}, 9, v4')
    a(f'v_lshl_add_u32 v{VD}, v3, 4, v{VD}')
    a(f'v_add_u32 v{VM_}, 65536, v1')
    a(f'v_lshlrev_b32 v{VC}, 3, v3')
    a(f'v_add_u32 v{VC}, {LDS_TAB}, v{VC}')
    a(f'v_lshlrev_b32 v{VR}, 5, v4')
    a(f'v_add_u32 v{VR}, {LDS_TAB}, v{VR}')
    if l == 0:
        a('v_lshrrev_b32 v134, 3, v0')
        a(f'v_lshlrev_b32 v{VWO}, 10, v134')
        a('v_bfe_u32 v134, v0, 4, 1')
        a('v_lshlrev_b32 v134, 2, v134')
        a('v_and_b32 v135, 7, v0')
        a('v_xor_b32 v134, v134, v135')
        a(f'v_lshl_add_u32 v{VWO}, v134, 4, v{VWO}')
    if l:
        a('s_lshl_b32 s30, s17, 6')
        a(f's_add_u32 s30, s30, {hx(CS_QKV)}')
        a('v_lshlrev_b32 v132, 4, v4')
        a('v_lshlrev_b32 v133, 2, v3')
        a(f'buffer_load_dwordx4 v[{CSQ}:{CSQ+3}], v132, s[8:11], s30 offen sc1')
        a(f'buffer_load_dwordx4 v[{CSK}:{CSK+3}], v132, s[8:11], s30 offen offset:2048 sc1')
        a('s_add_u32 s30, s30, 4096')
        a(f'buffer_load_dword v{CSV}, v133, s[8:11], s30 offen sc1')
    a('v_and_b32 v134, 1, v3')
    a('v_lshl_add_u32 v135, v4, 2, v134')
    a('v_add_u32 v136, 2, v135')
    a('v_add_u32 v137, 2, v3')
    a(f'v_mov_b32 v138, {hx(NEG)}')
    a('v_mov_b32 v139, 0')
    a('v_cmp_ge_u32 vcc, v135, v137')
    a(f'v_cndmask_b32 v{BI}, v138, v139, vcc')
    a('v_cmp_ge_u32 vcc, v136, v137')
    a(f'v_cndmask_b32 v{BI+1}, v138, v139, vcc')
    a('v_cmp_le_u32 vcc, v135, v3')
    a(f'v_cndmask_b32 v{BI+2}, v138, v139, vcc')
    a('v_cmp_le_u32 vcc, v136, v3')
    a(f'v_cndmask_b32 v{BI+3}, v138, v139, vcc')
    grp(a, 's_cmp_eq_u32 s16, 0', 's_cselect_b64 s[58:59], -1, 0')
    a(f'v_cndmask_b32 v{BI+4}, v{BI}, v138, s[58:59]')
    a(f'v_cndmask_b32 v{BI+5}, v{BI+1}, v138, s[58:59]')
    a('v_mov_b32 v135, 0x0c0c0100')
    a('v_mov_b32 v136, 0x01000c0c')
    a(f'v_cndmask_b32 v{SELA}, v135, v136, s[28:29]')
    a('v_mov_b32 v135, 0x0c0c0302')
    a('v_mov_b32 v136, 0x03020c0c')
    a(f'v_cndmask_b32 v{SELB}, v135, v136, s[28:29]')
    consts = a
    a = outer
    S0 = 142
    if l:
        a.extend(consts)
        a('v_lshlrev_b32 v140, 10, v4')
        a('v_lshl_add_u32 v140, v3, 3, v140')
        a('s_lshl_b32 s30, s16, 16')
        a('s_sub_u32 s31, s30, 32512')
        a('s_cmp_eq_u32 s16, 0')
        a('s_cselect_b32 s31, 0, s31')
        a('s_lshl_b32 s32, s3, 13')
        a('s_add_u32 s31, s31, s32')
        a(f's_add_u32 s31, s31, {hx(X)}')
        a('s_add_u32 s30, s30, s32')
        a(f's_add_u32 s30, s30, {hx(X)}')
        a('s_lshl_b32 s33, s16, 13')
        a('s_sub_u32 s34, s33, 3968')
        a('s_cmp_eq_u32 s16, 0')
        a('s_cselect_b32 s34, 0, s34')
        a(f's_add_u32 s34, s34, {hx(ST)}')
        a('s_lshr_b32 s35, s3, 1')
        a('s_lshl_b32 s35, s35, 12')
        a('s_and_b32 s36, s3, 1')
        a('s_lshl_b32 s36, s36, 7')
        a('s_add_u32 s33, s33, s35')
        a('s_add_u32 s33, s33, s36')
        a(f's_add_u32 s33, s33, {hx(ST)}')
        a('s_lshl_b32 s35, s3, 12')
        sc = ' sc1'
        a('s_sub_u32 s36, s16, 1')
        a('s_max_i32 s36, s36, 0')
        a('s_lshl_b32 s36, s36, 8')
        a(f's_add_u32 s36, s36, {hx(F4())}')
        a('s_cmp_eq_u32 s16, 0')
        a('s_cselect_b32 s37, 0, 256')
        a('v_mul_u32_u24 v141, s37, v0')
        stamp(a, f'p1.{l} prepoll')
        poll_wg(a, 's36', 3, 'v141', 8, second='s37')
        stamp(a, f'p1.{l} start')

        def xdma(d, i):
            d(f's_add_u32 s37, s35, {16384 * i}')
            d('s_mov_b32 m0, s37')
            for j in range(4):
                if i == 0:
                    so = 's31'
                else:
                    so = 's39'
                    d(f's_add_u32 s39, s30, {((i - 1) >> 1) * 32768 + ((i - 1) & 1) * 256 + 1024 * j}')
                d(f'buffer_load_dwordx4 v{VD}, s[8:11], {so} offen offset:{1024*j}{sc} lds', tag=f'x{i}')
                if i == 0 and j < 3:
                    d('s_add_u32 s31, s31, 1024')
        d = Asm()
        xdma(d, 0)
        xdma(d, 1)
        for j in range(4):
            d(f'buffer_load_dwordx2 v[{S0+2*j}:{S0+1+2*j}], v140, s[8:11], s33 offen offset:{256*j}{sc}')
        for j in range(4):
            d(f'buffer_load_dwordx2 v[{S0+8+2*j}:{S0+9+2*j}], v140, s[8:11], s34 offen offset:{256*j}{sc}')
        for i in range(2, 5):
            xdma(d, i)
        st = Asm()
        for base in (S0, S0 + 8):
            for j in range(1, 4):
                st(f'v_add_f32 v{base}, v{base}, v{base+2*j}')
                st(f'v_add_f32 v{base+1}, v{base+1}, v{base+2*j+1}')
        for step in range(7):
            for base in (S0, S0 + 8):
                st([f'v_permlane16_swap_b32 v{base}, v{base+1}', f'v_add_f32 v{base}, v{base}, v{base+1}',
                    f'v_mov_b32 v{base+1}, v{base}', f'v_permlane32_swap_b32 v{base}, v{base+1}',
                    f'v_add_f32 v{base}, v{base}, v{base+1}', f'v_mov_b32 v{base+1}, v{base}',
                    f'v_permlane16_swap_b32 v{base}, v{base+1}'][step])
        for base in (S0, S0 + 8):
            G.stat_finalize(st, base, base + 1, base + 2, 24)
        st('s_lshl_b32 s38, s3, 7')
        st(f'v_add_u32 v{S0+4}, s38, v{VC}')
        st(f'ds_write_b64 v{S0+4}, v[{S0}:{S0+1}] offset:128', tag='tab')
        st(f'ds_write_b64 v{VC}, v[{S0+8}:{S0+9}]', tag='tab')

    def gemm(seq, pre):
        g = Asm()
        D = 3

        def rd(idx):
            if idx in pre:
                g.extend(pre[idx])
            i, s = seq[idx]
            dst = BR + 4 * (idx & 3)
            off = i * 16384 + s * 1024
            g(f'ds_read_b128 v[{dst}:{dst+3}], v{1 if off < 65536 else VM_} offset:{off & 65535}')
        for idx in range(D):
            rd(idx)
        for idx, (i, s) in enumerate(seq):
            b = BR + 4 * (idx & 3)
            B = f'v[{b}:{b+3}]'
            acc = lambda r: f'v[{r}:{r+3}]'
            c = lambda r: acc(r) if s else '0'
            g(f'v_mfma_f32_16x16x32_bf16 {acc(AK(i))}, {wq_loc(3*s+1)}, {B}, {c(AK(i))}')
            last_b = idx + D < len(seq)
            if i == 0:
                g(f'v_mfma_f32_16x16x32_bf16 {acc(AV(i))}, {B}, {wq_loc(3*s+2)}, {c(AV(i))}')
                if last_b:
                    rd(idx + D)
            else:
                g(f'v_mfma_f32_16x16x32_bf16 {acc(AV(i))}, {B}, {wq_loc(3*s+2)}, {c(AV(i))}')
                if last_b:
                    rd(idx + D)
                g(f'v_mfma_f32_16x16x32_bf16 {acc(AQ(i))}, {wq_loc(3*s)}, {B}, {c(AQ(i))}')
        return g

    def epi(i):
        e = Asm()
        e(f'ds_read_b64 v[{CT}:{CT+1}], v{VC} offset:{128*i}')
        e(f'ds_read_b128 v[{CT+2}:{CT+5}], v{VR} offset:{128*i}')
        e(f'ds_read_b128 v[{CT+6}:{CT+9}], v{VR} offset:{128*i+16}')
        for v in range(4):
            e(f'v_fmac_f32 v{AK(i)+v}, v{CT+1}, v{CSK+v}')
        if i:
            for v in range(4):
                e(f'v_fmac_f32 v{AQ(i)+v}, v{CT+1}, v{CSQ+v}')
        for v in range(4):
            e(f'v_mul_f32 v{AK(i)+v}, v{CT}, v{AK(i)+v}')
        if i:
            e(f'v_mul_f32 v{SC+i}, s26, v{CT}')
            for dd in range(2):
                e(f'v_cvt_pk_bf16_f32 v{QP+2*i+dd}, v{AQ(i)+2*dd}, v{AQ(i)+2*dd+1}')
        for dd in range(2):
            e(f'v_cvt_pk_bf16_f32 v{KP+2*i+dd}, v{AK(i)+2*dd}, v{AK(i)+2*dd+1}')
        for v in range(4):
            e(f'v_fmac_f32 v{AV(i)+v}, v{CT+2+2*v+1}, v{CSV}')
        for v in range(4):
            e(f'v_mul_f32 v{AV(i)+v}, v{CT+2+2*v}, v{AV(i)+v}')
        for dd in range(2):
            e(f'v_cvt_pk_bf16_f32 v{VP+2*i+dd}, v{AV(i)+2*dd}, v{AV(i)+2*dd+1}')
        return e

    def attn(pr):
        e = Asm()
        tl = (1 + 2 * pr, 2 + 2 * pr)
        for u, i in enumerate(tl):
            e(f'v_mfma_f32_16x16x16_bf16 v[{SS+8*u}:{SS+8*u+3}], v[{KP+2*i-2}:{KP+2*i-1}], v[{QP+2*i}:{QP+2*i+1}], 0')
            e(f'v_mfma_f32_16x16x16_bf16 v[{SS+8*u+4}:{SS+8*u+7}], v[{KP+2*i}:{KP+2*i+1}], v[{QP+2*i}:{QP+2*i+1}], 0')
        if pr == 0:
            e('s_lshl_b32 s38, s16, 16')
            e('s_lshl_b32 s39, s17, 10')
            e('s_add_u32 s38, s38, s39')
            e(f's_add_u32 s38, s38, {hx(O_[l])}')
        else:
            e('s_add_u32 s38, s38, 32768')
        for u, i in enumerate(tl):
            for c in range(4):
                r = SS + 8 * u + 2 * c
                e(f'v_cndmask_b32 v{TT+4*u+c}, v{r}, v{r+1}, s[28:29]')
        for u, i in enumerate(tl):
            for c in range(4):
                bias = BI + c if not (i == 1 and c < 2) else BI + 4 + c
                e(f'v_fma_f32 v{TT+4*u+c}, v{TT+4*u+c}, v{SC+i}, v{bias}')
        for u in range(2):
            e(f'v_max3_f32 v{MM+u}, v{TT+4*u}, v{TT+4*u+1}, v{TT+4*u+2}')
        for u in range(2):
            e(f'v_max_f32 v{MM+u}, v{MM+u}, v{TT+4*u+3}')
        e(f'v_permlane16_swap_b32 v{MM}, v{MM+1}')
        e(f'v_max_f32 v{MM}, v{MM}, v{MM+1}')
        e(f'v_mov_b32 v{MM+1}, v{MM}')
        e(f'v_permlane32_swap_b32 v{MM}, v{MM+1}')
        e(f'v_max_f32 v{MM}, v{MM}, v{MM+1}')
        e(f'v_mov_b32 v{MM+1}, v{MM}')
        e(f'v_permlane16_swap_b32 v{MM}, v{MM+1}')
        for u in range(2):
            for c in range(4):
                e(f'v_sub_f32 v{TT+4*u+c}, v{TT+4*u+c}, v{MM+u}')
        for u in range(2):
            for c in range(4):
                e(f'v_exp_f32 v{TT+4*u+c}, v{TT+4*u+c}')
        for u, i in enumerate(tl):
            e(f'v_cvt_pk_bf16_f32 v{SS+8*u}, v{TT+4*u}, v{TT+4*u+1}')
            e(f'v_cvt_pk_bf16_f32 v{SS+8*u+1}, v{TT+4*u+2}, v{TT+4*u+3}')
            e(f'v_perm_b32 v{PP+4*u}, v{SS+8*u}, v{SS+8*u}, v{SELA}')
            e(f'v_perm_b32 v{PP+4*u+1}, v{SS+8*u}, v{SS+8*u}, v{SELB}')
            e(f'v_perm_b32 v{PP+4*u+2}, v{SS+8*u+1}, v{SS+8*u+1}, v{SELA}')
            e(f'v_perm_b32 v{PP+4*u+3}, v{SS+8*u+1}, v{SS+8*u+1}, v{SELB}')
            e(f'v_add_f32 v{MM+2+u}, v{TT+4*u}, v{TT+4*u+1}')
            e(f'v_add_f32 v{TT+4*u+2}, v{TT+4*u+2}, v{TT+4*u+3}')
            e(f'v_mfma_f32_16x16x32_bf16 v[{OO+4*u}:{OO+4*u+3}], v[{VP+2*i-2}:{VP+2*i+1}], v[{PP+4*u}:{PP+4*u+3}], 0')
            e(f'v_add_f32 v{MM+2+u}, v{MM+2+u}, v{TT+4*u+2}')
        S0_, S1_ = MM + 2, MM + 3
        e(f'v_permlane16_swap_b32 v{S0_}, v{S1_}')
        e(f'v_add_f32 v{S0_}, v{S0_}, v{S1_}')
        e(f'v_mov_b32 v{S1_}, v{S0_}')
        e(f'v_permlane32_swap_b32 v{S0_}, v{S1_}')
        e(f'v_add_f32 v{S0_}, v{S0_}, v{S1_}')
        e(f'v_rcp_f32 v{S0_}, v{S0_}')
        e(f'v_mov_b32 v{S1_}, v{S0_}')
        e(f'v_permlane16_swap_b32 v{S0_}, v{S1_}')
        for u in range(2):
            for v in range(4):
                e(f'v_mul_f32 v{OO+4*u+v}, v{OO+4*u+v}, v{S0_+u}')
        for u in range(2):
            for dd in range(2):
                e(f'v_cvt_pk_bf16_f32 v{OS+2*u+dd}, v{OO+4*u+2*dd}, v{OO+4*u+2*dd+1}')
        e(f'v_permlane16_swap_b32 v{OS}, v{OS+2}')
        e(f'v_permlane16_swap_b32 v{OS+1}, v{OS+3}')
        e(f'buffer_store_dwordx4 v[{OS}:{OS+3}], v1, s[8:11], s38 offen sc1', tag='ost')
        return e

    def bar(*tags, lg=()):
        b = Asm()
        b.waitvm(*tags)
        if lg:
            b.waitlgkm(*lg)
        b('s_barrier')
        return b

    pf = cat(st_wo_f(), st_wgu((0, 1)))
    if l == 0:
        sg_, gl = front0(a, consts, AK, AV, AQ, CSQ, CSK, CSV, VC)
        tail = cat(epi(0), epi(1), epi(2), attn(0), epi(3), epi(4), attn(1))
        a('s_waitcnt lgkmcnt(0)')
        if cfg.ssig == 16:
            a.waitvm('slab', 'z')
        a('s_barrier')
        if cfg.ssig == 16:
            a.group(sg_)
        pf1, rest = st_wo().ins, []
    else:
        d1, d2 = vm_split(d, 14)
        a.extend(d1)
        seq = [(i, s) for i in range(5) for s in range(16)]
        g = gemm(seq, {0: bar('x0'), 16: bar('x1'), 32: bar('x2', lg=('tab',)), 48: bar('x3'), 64: bar('x4')})
        parts = split_mfma(g.ins, (32, 80, 128, 176))
        d2a, d2b = vm_split(d2, 6)
        a.merge(parts[0], d2a, 0, 24)
        stamp(a, 'p1.1 st0')
        a.merge(parts[1], mix(d2b, st), 0, 36)
        stamp(a, 'p1.1 st1')
        a.merge(parts[2], cat(epi(0), epi(1)), 0, 48)
        stamp(a, 'p1.1 st2')
        at = attn(0).ins
        na = len(at) // 3
        a.merge(parts[3], cat(epi(2), at[:na]), 3, 48)
        stamp(a, 'p1.1 st3')
        a.merge(parts[4], cat(at[na:], epi(3)), 0, 48)
        stamp(a, 'p1.1 gemm')
        a('s_waitcnt lgkmcnt(0)')
        a('s_barrier')
        tail = cat(epi(4), attn(1))
        pf1, rest = vm_split(pf, 9)
    a.extend(mix(tail[:-6], pf1))
    a.extend(tail[-6:])
    stamp(a, f'p1.{l} stored')
    r1, r2 = vm_split(rest, 8)
    a.extend(r1)
    if l == 0:
        wt = wo_tr(28).ins
        k = len(wt) - cfg.wtlate
        a.extend(wt[:k])
        a.extend(gl)
    a('s_lshl_b32 s30, s16, 8')
    a(f's_add_u32 s30, s30, {hx(F1(l))}')
    a('v_mov_b32 v3, 1')
    a.waitvm('ost')
    a('s_barrier')
    signal(a, 's30', 3)
    stamp(a, f'p1.{l} signalled')
    if l == 0:
        a.extend(wt[k:])
        a.extend(g0_check())
        a('s_barrier')
        stamp(a, 'p1.0 g0')
        r2 = cat(st_wgu((0, 1)), st_wd(range(8, 8 + cfg.wdearly)))
    return r2


def p2(a, l, r2):
    X = X0 if l == 0 else X2
    VD = 7
    BF, RS, AC, AR, PK = 28, 92, 100, 116, 148
    a(f'v_add_u32 v8, {LDS_WO}, v1')
    a('s_lshr_b32 s30, s3, 1')
    a('s_lshl_b32 s31, s18, 1')
    a('s_add_u32 s30, s30, s31')
    a('s_lshl_b32 s30, s30, 15')
    a('s_and_b32 s31, s3, 1')
    a('s_lshl_b32 s31, s31, 8')
    a('s_add_u32 s30, s30, s31')
    a(f's_add_u32 s31, s30, {hx(O_[l])}')
    a('s_lshl_b32 s32, s19, 12')
    a('s_add_u32 s30, s30, s32')
    a(f's_add_u32 s32, s30, {hx(X)}')
    a(f's_add_u32 s33, s30, {hx(X1_[l])}')
    a('s_lshl_b32 s34, s18, 8')
    a(f's_add_u32 s35, s34, {hx(F2(l))}')
    a(f's_add_u32 s34, s34, {hx(F1(l))}')
    a('s_lshl_b32 s36, s18, 2')
    a('s_add_u32 s36, s36, s3')
    a('s_lshl_b32 s36, s36, 10')
    a('s_lshl_b32 s37, s19, 7')
    a('s_add_u32 s36, s36, s37')
    a(f's_add_u32 s36, s36, {hx(STB[l])}')
    a('v_bfe_u32 v9, v0, 4, 1')
    a('v_lshlrev_b32 v9, 2, v9')
    a('v_and_b32 v10, 15, v0')
    a('v_lshl_add_u32 v9, v10, 3, v9')
    if l == 0:
        a('v_lshlrev_b32 v10, 10, v10')
        a('v_lshrrev_b32 v11, 4, v0')
        a('v_lshl_add_u32 v10, v11, 4, v10')
        a('s_lshl_b32 s32, s18, 2')
        a('s_add_u32 s32, s32, s3')
        a('s_lshl_b32 s32, s32, 14')
        a('s_lshl_b32 s37, s19, 7')
        a('s_add_u32 s32, s32, s37')
        a(f'buffer_load_dwordx4 v[{RS}:{RS+3}], v10, s[60:63], s32 offen')
        a(f'buffer_load_dwordx4 v[{RS+4}:{RS+7}], v10, s[60:63], s32 offen offset:64')
    a.extend(r2)
    a.waitvm('wo')
    a('s_waitcnt lgkmcnt(0)')
    stamp(a, f'p2.{l} prepoll')
    poll_wg(a, 's34', 1, 'off', 8)
    stamp(a, f'p2.{l} start')
    sc = ' sc1'
    ld = Asm()
    for s in range(16):
        ld(f'buffer_load_dwordx4 v[{BF+4*s}:{BF+4*s+3}], v{VD}, s[8:11], s31 offen offset:{2048*(s&1)}{sc}')
        if s & 1 and s < 15:
            ld('s_add_u32 s31, s31, 4096')
    if l:
        ld(f'buffer_load_dwordx4 v[{RS}:{RS+3}], v{VD}, s[8:11], s32 offen{sc}')
        ld(f'buffer_load_dwordx4 v[{RS+4}:{RS+7}], v{VD}, s[8:11], s32 offen offset:2048{sc}')
    l1, l2 = vm_split(ld, 10)
    a.extend(l1)
    g = Asm()

    def rd(idx):
        dd = AR + 4 * (idx & 7)
        g(f'ds_read_b128 v[{dd}:{dd+3}], v8 offset:{idx*1024}', tag=f'r{idx}')
    for idx in range(6):
        rd(idx)
    for idx in range(64):
        s, t = idx >> 2, idx & 3
        dd = AR + 4 * (idx & 7)
        c = f'v[{AC+4*t}:{AC+4*t+3}]'
        if idx & 1 == 0:
            g.waitlgkm(f'r{idx+1}')
        g(f'v_mfma_f32_16x16x32_bf16 {c}, v[{dd}:{dd+3}], v[{BF+4*s}:{BF+4*s+3}], {c if s else 0}')
        if idx + 6 < 64:
            rd(idx + 6)
    a.merge(g, l2, 0, 24)
    stamp(a, f'p2.{l} gemm')
    for p in range(2):
        for dd in range(4):
            r = AC + 8 * p + 2 * dd
            G.unpack_add(a, r, r + 1, RS + 4 * p + dd, 156)
            a(f'v_cvt_pk_bf16_f32 v{PK+4*p+dd}, v{r}, v{r+1}')
        a(f'buffer_store_dwordx4 v[{PK+4*p}:{PK+4*p+3}], v{VD}, s[8:11], s33 offen offset:{2048*p} sc1', tag='xst')
    a('v_mov_b32 v156, 0')
    a('v_mov_b32 v157, 0')
    for dd in range(8):
        a(f'v_dot2_f32_bf16 v156, v{PK+dd}, s25, v156')
    for dd in range(8):
        a(f'v_dot2_f32_bf16 v157, v{PK+dd}, v{PK+dd}, v157')
    a('v_permlane16_swap_b32 v156, v157')
    a('v_add_f32 v156, v156, v157')
    a('v_mov_b32 v157, v156')
    a('v_permlane32_swap_b32 v156, v157')
    a('v_add_f32 v156, v156, v157')
    a('buffer_store_dword v156, v9, s[8:11], s36 offen sc1', tag='xst')
    stamp(a, f'p2.{l} stored')
    a('s_barrier')
    w1, w2 = vm_split(st_wgu((2, 3, 4)), 8)
    a.extend(w1)
    a('v_mov_b32 v3, 1')
    a.waitvm('xst')
    a('s_barrier')
    signal(a, 's35', 3)
    stamp(a, f'p2.{l} signalled')
    a.extend(w2)


def p34(a, l):
    XF = 128
    ACC = [16, 32, 48]
    AR = 80
    TM = 112
    HP = 120
    C0, C1, IA2 = 12, 13, 14
    a('v_and_b32 v4, 31, v0')
    a('v_lshrrev_b32 v5, 5, v0')
    a('v_lshrrev_b32 v6, 4, v4')
    a('v_lshlrev_b32 v6, 10, v6')
    a('v_lshl_add_u32 v6, v5, 9, v6')
    a('v_and_b32 v7, 15, v4')
    a('v_lshl_add_u32 v6, v7, 3, v6')
    a('v_add_u32 v8, 65536, v1')
    a('v_add_u32 v9, 0x20000, v1')
    a('v_lshlrev_b32 v10, 8, v0')
    a('s_lshl_b32 s30, s20, 2')
    a('s_add_u32 s30, s30, s3')
    a('s_lshl_b32 s31, s30, 15')
    a(f's_add_u32 s31, s31, {hx(X1_[l])}')
    a('s_lshl_b32 s32, s30, 11')
    a(f's_add_u32 s32, s32, {hx(STB[l])}')
    a('s_mul_i32 s33, s30, 114688')
    a('s_mul_i32 s34, s21, 7168')
    a('s_add_u32 s33, s33, s34')
    a(f's_add_u32 s33, s33, {hx(H_[l])}')
    a('s_lshl_b32 s34, s20, 9')
    a(f's_add_u32 s34, s34, {hx(F2(l))}')
    a('s_lshl_b32 s35, s20, 3')
    a('s_lshr_b32 s36, s3, 1')
    a('s_lshl_b32 s36, s36, 2')
    a('s_add_u32 s35, s35, s36')
    a('s_lshr_b32 s36, s21, 2')
    a('s_add_u32 s35, s35, s36')
    a('s_lshl_b32 s35, s35, 8')
    a('s_lshl_b32 s36, s22, 2')
    a('s_add_u32 s36, s36, s3')
    a('s_lshl_b32 s36, s36, 8')
    a.waitvm('wg0', 'wg1')
    stamp(a, f'p3.{l} prepoll')
    poll_wg(a, 's34', 3, 'v10', 8, second='256')
    stamp(a, f'p3.{l} start')
    ld = Asm()
    for j in range(4):
        ld(f'buffer_load_dwordx2 v[{TM+2*j}:{TM+1+2*j}], v6, s[8:11], s32 offen offset:{128*j} sc1')
    for s in range(32):
        ld(f'buffer_load_dwordx4 v[{XF+4*s}:{XF+4*s+3}], v1, s[8:11], s31 offen offset:{1024*(s&3)} sc1')
        if (s & 3) == 3 and s < 31:
            ld('s_add_u32 s31, s31, 4096')
    l1, l2 = vm_split(ld, 13)
    a.extend(l1)
    stt = Asm()
    for j in range(1, 4):
        stt(f'v_add_f32 v{TM}, v{TM}, v{TM+2*j}')
        stt(f'v_add_f32 v{TM+1}, v{TM+1}, v{TM+1+2*j}')
    stt(f'v_permlane32_swap_b32 v{TM}, v{TM+1}')
    stt(f'v_add_f32 v{TM}, v{TM}, v{TM+1}')
    stt(f'v_mov_b32 v{TM+1}, v{TM}')
    stt(f'v_permlane32_swap_b32 v{TM}, v{TM+1}')
    G.stat_finalize(stt, TM, TM + 1, TM + 2, 24)
    k0 = -2.0 * math.sqrt(2.0 / math.pi) * math.log2(math.e)
    k1 = k0 * 0.044715
    stt(f'v_cvt_pk_bf16_f32 v{TM+4}, v{TM+1}, v{TM+1}')
    stt(f'v_mul_f32 v{TM+2}, v{TM}, v{TM}')
    stt(f'v_and_b32 v{TM+5}, 0xffff0000, v{TM+4}')
    stt(f'v_mul_f32 v{C0}, {hx(f2u(k0))}, v{TM}')
    stt(f'v_sub_f32 v{TM+1}, v{TM+1}, v{TM+5}')
    stt(f'v_mul_f32 v{TM+3}, v{TM+2}, v{TM}')
    stt(f'v_mov_b32 v{MBZ}, 0')
    stt(f'v_cvt_pk_bf16_f32 v{TM+5}, v{TM+1}, v{MBZ}')
    stt(f'v_mul_f32 v{C1}, {hx(f2u(k1))}, v{TM+3}')
    stt(f'v_rcp_f32 v{IA2}, v{TM+2}')
    for r in (1, 4, 5, 8, 9):
        stt(f'v_mov_b32 v{MBZ+r}, 0')
    stt('v_cmp_gt_u32 vcc, 32, v0')
    for dd in range(2):
        stt(f'v_cndmask_b32 v{MBZ+2+dd}, v{MBZ}, v{TM+4+dd}, vcc')
        stt(f'v_cndmask_b32 v{MBZ+6+dd}, v{TM+4+dd}, v{MBZ}, vcc')
        stt(f'v_cndmask_b32 v{CF[1]+2+dd}, v{MBZ}, v{CF[1]+2+dd}, vcc')

    seq = [(T, s) for s in range(32) for T in range(2)] + [(T, 32) for T in range(2)]
    for T in range(2, 7):
        seq += [(T, s) for s in range(33)]
    rseq = [x for x in seq if x[1] < 32]
    g = Asm()
    D = 6
    rpos = {x: k for k, x in enumerate(rseq)}

    def rd(k):
        T, s = rseq[k]
        if (T, s) == (2, 0):
            g.waitvm('wg2', 'wg3', 'wg4')
            g('s_barrier')
        if (T, s) == (5, 0):
            g.waitvm('wg5', 'wg6')
            g('s_barrier')
        dd = AR + 4 * (k & 7)
        off = slot(T) + s * 1024
        base = 'v1' if off < 65536 else ('v8' if off < 131072 else 'v9')
        g(f'ds_read_b128 v[{dd}:{dd+3}], {base} offset:{off & 65535}', tag=f'r{k}')
    for k in range(D):
        rd(k)
    accof = {T: T % 3 for T in range(7)}
    for (T, s) in seq:
        ac = ACC[accof[T]]
        c = f'v[{ac}:{ac+15}]'
        if s == 32:
            mb = MBZ + 4 * ((T >> 1) & 1) + (0 if T & 1 else 2)
            g(f'v_mfma_f32_32x32x16_bf16 {c}, v[{CF[T>>2]}:{CF[T>>2]+3}], v[{mb}:{mb+3}], {c}')
            continue
        k = rpos[(T, s)]
        dd = AR + 4 * (k & 7)
        if k & 1 == 0 and k + 1 < len(rseq):
            g.waitlgkm(f'r{k+1}')
        g(f'v_mfma_f32_32x32x16_bf16 {c}, v[{dd}:{dd+3}], v[{XF+4*s}:{XF+4*s+3}], {c if s else 0}')
        if k + D < len(rseq):
            rd(k + D)

    def epi(T):
        e = Asm()
        ac = ACC[accof[T]]
        steps = [lambda x: f'v_mul_f32 v{TM+x}, v{ac+x}, v{ac+x}',
                 lambda x: f'v_fma_f32 v{TM+x}, v{TM+x}, v{C1}, v{C0}',
                 lambda x: f'v_mul_f32 v{TM+x}, v{TM+x}, v{ac+x}',
                 lambda x: f'v_exp_f32 v{TM+x}, v{TM+x}',
                 lambda x: f'v_mul_f32 v{ac+x}, v{ac+x}, v{ac+8+x}',
                 lambda x: f'v_fma_f32 v{TM+x}, v{TM+x}, v{IA2}, v{IA2}',
                 lambda x: f'v_rcp_f32 v{TM+x}, v{TM+x}',
                 lambda x: f'v_mul_f32 v{ac+x}, v{ac+x}, v{TM+x}']
        ev = sorted(((8 * x + [0, 1, 2, 3, 4, 13, 15, 25][k], x, k) for x in range(8) for k in range(8)))
        for _, x, k in ev:
            e(steps[k](x))
            if k == 7 and x & 1:
                e(f'v_cvt_pk_bf16_f32 v{HP+(x>>1)}, v{ac+x-1}, v{ac+x}')
        if T == 4:
            e('s_add_u32 s33, s33, 4096')
        e(f'buffer_store_dwordx4 v[{HP}:{HP+3}], v1, s[8:11], s33 offen offset:{1024*(T&3)} sc1', tag=f'h{T}')
        return e

    def sig(st):
        e = Asm()
        e(f's_add_u32 s38, s35, {hx(F3(l, st))}')
        e('v_mov_b32 v3, 1')
        e.waitvm(*[f'h{T}' for T in cfg.stages[st]])
        signal(e, 's38', 3, wave0_only=False)
        return e

    parts = split_mfma(g.ins, (66, 99, 132, 165, 198))
    a.merge(parts[0], cat(l2, st_csf(), stt), 0, 60)
    stamp(a, f'p3.{l} T01')
    a('s_barrier')
    epis = [epi(T) for T in range(7)]
    es = cat(*epis[:6])
    ne = len(es)
    cut = [ne * k // 5 for k in range(6)]
    ep = [es[cut[k]:cut[k + 1]] for k in range(5)]
    sig_at = {}
    wd_list = st_wd(range(8) if l else list(range(8)) + list(range(8 + cfg.wdearly, 28))).ins
    nwd = len(wd_list)
    extra = [cat(st_wgu((5, 6))), wd_list[:nwd // 2], wd_list[nwd // 2:], []]
    if l == 0:
        extra = [cat(st_wgu((5, 6))), wd_list[:nwd // 3], wd_list[nwd // 3:2 * nwd // 3],
                 wd_list[2 * nwd // 3:]]
    def with_sig(lst, st, frac):
        k = int(len(lst) * frac)
        return lst[:k] + sig(st).ins + lst[k:]
    nst = len(cfg.stages)
    last_tile = [max(x) for x in cfg.stages]
    for k in range(4):
        lst = ep[k]
        for st in range(nst):
            pos = (last_tile[st] + 1) / 1.2 + 0.72
            if k <= pos < k + 1:
                lst = with_sig(lst, st, pos - k)
                sig_at[st] = k
        a.merge(parts[1 + k], mix(lst, extra[k]), 1 if k == 0 else 0, 33, cap=24)
        stamp(a, f'p3.{l} T{k+2}')

    BR, NB = 128, (cfg.NB if l == 1 else 16)
    ko = p4_korder()
    pseq = [(t, s) for st in range(len(ko) - 2) for t in (1, 0) for s in ko[st]]
    if len(ko[-1]) <= 4:
        pseq += [(t, s) for t in (1, 0) for st in (-2, -1) for s in ko[st]]
    else:
        pseq += [(t, s) for st in (-2, -1) for t in (1, 0) for s in ko[st]]
    stage_of = {s: st for st in range(len(ko)) for s in ko[st]}
    su = Asm()
    su('s_lshl_b32 s39, s22, 1')
    su('s_lshr_b32 s52, s3, 1')
    su('s_add_u32 s39, s39, s52')
    su('s_xor_b32 s52, s39, 1')
    su('s_mul_i32 s53, s3, 28672')
    su(f's_add_u32 s53, s53, {hx(H_[l])}')
    su('s_mul_i32 s54, s39, 114688')
    su('s_mul_i32 s55, s52, 114688')
    su('s_add_u32 s54, s54, s53')
    su('s_add_u32 s55, s55, s53')
    su(f's_add_u32 s56, s36, {hx(F3(l, 0))}')
    seen = set()

    def ldB(e, idx):
        t, s = pseq[idx]
        st = stage_of[s]
        if st not in seen:
            seen.add(st)
            if cfg.spoll and st > 0:
                e(f's_add_u32 s56, s36, {hx(F3(l, st))}')
            poll_check(e, 11, 's56', 8, scalar=(65 + st) if (cfg.spoll and st > 0) else False)
        dd = BR + 4 * (idx % NB)
        e(f's_add_u32 s53, s{55 if t else 54}, {s*1024}')
        e(f'buffer_load_dwordx4 v[{dd}:{dd+3}], v1, s[8:11], s53 offen sc1')
    PF = cfg.PF if l == 1 else 14
    lst = ep[4]
    for st in range(nst):
        pos = (last_tile[st] + 1) / 1.2 + 0.72
        if 4 <= pos < 5:
            lst = with_sig(lst, st, pos - 4)
            sig_at[st] = 4
    h1, h2 = lst[:len(lst) // 2], lst[len(lst) // 2:]
    s4a = Asm()
    s4a.extend(su)
    poll_issue(s4a, 11, 's56')
    p4a, p4b = split_mfma(parts[5], (16,))
    a.merge(p4a, mix(h1, s4a), 0, 16, cap=24)
    first = Asm()
    polled = set([0])

    def maybe_poll(e, j):
        if j < 56:
            st = stage_of[pseq[j][1]]
            if st not in polled:
                polled.add(st)
                e(f's_add_u32 s56, s36, {hx(F3(l, st))}')
                poll_issue(e, 11, 's56', scalar=(65 + st) if cfg.spoll else False)
    for idx in range(14):
        ldB(first, idx)
        maybe_poll(first, idx + cfg.PD)
    a.merge(p4b, mix(h2, first), 0, 17, cap=24)
    stamp(a, f'p3.{l} T6')
    second = Asm()
    for idx in range(14, PF):
        ldB(second, idx)
        maybe_poll(second, idx + cfg.PD)
    a.extend(mix(epis[6], second))
    stamp(a, f'p4.{l} start')
    ACC4 = [32, 48, 64, 80]
    RS, PK = 96, 104
    a('v_lshlrev_b32 v6, 10, v5')
    a('v_lshl_add_u32 v6, v4, 4, v6')
    for u in range(1, 4):
        a(f's_xor_b32 s30, s3, {u}')
        a('s_mul_i32 s30, s30, 12288')
        a(f's_add_u32 s30, s30, {65536 + (u-1)*4096}')
        a(f'v_add_u32 v{6+u}, s30, v1')
    a('s_mul_i32 s30, s3, 12288')
    a('s_add_u32 s30, s30, 65536')
    a('v_add_u32 v10, s30, v1')
    a('s_lshl_b32 s30, s23, 1')
    a('s_and_b32 s31, s3, 1')
    a('s_add_u32 s30, s30, s31')
    a('s_lshl_b32 s31, s39, 15')
    a('s_lshl_b32 s32, s30, 11')
    a('s_add_u32 s31, s31, s32')
    a(f's_add_u32 s32, s31, {hx(X1_[l])}')

    def spill(e, u):
        for i in range(4):
            r = ACC4[u] + 4 * i
            e(f'ds_write_b128 v{6+u}, v[{r}:{r+3}] offset:{1024*i}', tag='sp')
    last1 = max(k for k, (t, s) in enumerate(pseq) if t == 1)
    started = set()
    wq_early = st_wqkv(range(24)).ins if l == 0 else []
    wq_vm = [k for k, i in enumerate(wq_early) if i.kind == 'vmem']
    wk = 0
    for idx, (t, s) in enumerate(pseq):
        dd = BR + 4 * (idx % NB)
        for f in (1, 0):
            u = 2 * t + f
            c = f'v[{ACC4[u]}:{ACC4[u]+15}]'
            a(f'v_mfma_f32_32x32x16_bf16 {c}, {wd_loc(s, f)}, v[{dd}:{dd+3}], {c if u in started else 0}')
            started.add(u)
            if f == 1:
                if idx + PF < 56:
                    ldB(a, idx + PF)
                    maybe_poll(a, idx + PF + cfg.PD)
                for st in range(nst):
                    if st not in sig_at and idx == (cfg.s5 if last_tile[st] == 5 else cfg.s6):
                        a.extend(sig(st))
                if idx == 20:
                    a(f'buffer_load_dwordx4 v[{RS}:{RS+3}], v6, s[8:11], s32 offen sc1')
                    a(f'buffer_load_dwordx4 v[{RS+4}:{RS+7}], v6, s[8:11], s32 offen offset:512 sc1')
            else:
                if l == 1 and idx in (9, 23, 39):
                    stamp(a, f'p4.1 idx{idx}')
                if idx == last1 + 2:
                    spill(a, 2)
                if idx == last1 + 5:
                    spill(a, 3)
                if l == 0 and idx >= 56 - PF - 2 and wk < len(wq_vm):
                    for rep in range(2):
                        if wk < len(wq_vm):
                            lo = wq_vm[wk - 1] + 1 if wk else 0
                            a.extend(wq_early[lo:wq_vm[wk] + 1])
                            wk += 1
    stamp(a, f'p4.{l} gemm')
    spill(a, 1)
    for dd in range(8):
        G.unpack_add(a, ACC4[0] + 2 * dd, ACC4[0] + 2 * dd + 1, RS + dd, 112)
    a('s_waitcnt lgkmcnt(0)')
    a('s_barrier')
    stamp(a, f'p4.{l} bar')
    PR = 128
    for u in range(3):
        for i in range(4):
            r = PR + 16 * u + 4 * i
            a(f'ds_read_b128 v[{r}:{r+3}], v10 offset:{4096*u + 1024*i}')
    for u in range(3):
        for e in range(16):
            a(f'v_add_f32 v{ACC4[0]+e}, v{ACC4[0]+e}, v{PR+16*u+e}')
    for dd in range(8):
        a(f'v_cvt_pk_bf16_f32 v{PK+dd}, v{ACC4[0]+2*dd}, v{ACC4[0]+2*dd+1}')
    if l == 0:
        a(f's_add_u32 s32, s31, {hx(X2)}')
        a(f'buffer_store_dwordx4 v[{PK}:{PK+3}], v6, s[8:11], s32 offen sc1', tag='xst')
        a(f'buffer_store_dwordx4 v[{PK+4}:{PK+7}], v6, s[8:11], s32 offen offset:512 sc1', tag='xst')
        a('v_mov_b32 v112, 0')
        a('v_mov_b32 v113, 0')
        for dd in range(8):
            a(f'v_dot2_f32_bf16 v112, v{PK+dd}, s25, v112')
        for dd in range(8):
            a(f'v_dot2_f32_bf16 v113, v{PK+dd}, v{PK+dd}, v113')
        a('v_lshlrev_b32 v7, 2, v5')
        a('v_lshl_add_u32 v7, v4, 3, v7')
        a('s_lshl_b32 s32, s39, 12')
        a('s_lshl_b32 s33, s30, 8')
        a('s_add_u32 s32, s32, s33')
        a(f's_add_u32 s32, s32, {hx(STA[1])}')
        a('v_permlane32_swap_b32 v112, v113')
        a('v_add_f32 v112, v112, v113')
        a('buffer_store_dword v112, v7, s[8:11], s32 offen sc1', tag='xst')
        stamp(a, f'p4.{l} stored')
        rest = Asm()
        if wk < len(wq_vm):
            rest.extend(wq_early[(wq_vm[wk - 1] + 1 if wk else 0):])
        rest.extend(st_wqkv(range(24, 48)))
        r1, r2 = vm_split(rest, 8)
        a.extend(r1)
        a('s_lshl_b32 s30, s22, 8')
        a(f's_add_u32 s30, s30, {hx(F4())}')
        a('v_mov_b32 v3, 1')
        a.waitvm('xst')
        a('s_barrier')
        signal(a, 's30', 3)
        stamp(a, f'p4.{l} signalled')
        a.extend(r2)
    else:
        a('v_lshlrev_b32 v7, 5, v5')
        a('v_lshl_add_u32 v7, v4, 10, v7')
        a('s_lshl_b32 s32, s39, 15')
        a('s_lshl_b32 s33, s30, 6')
        a('s_add_u32 s32, s32, s33')
        a(f'buffer_store_dwordx4 v[{PK}:{PK+3}], v7, s[12:15], s32 offen')
        a(f'buffer_store_dwordx4 v[{PK+4}:{PK+7}], v7, s[12:15], s32 offen offset:16')
        stamp(a, f'p4.{l} stored')


def gen_main():
    a = Asm()
    name = NAME + '_kernel'
    header(a, name)
    a('s_load_dwordx16 s[72:87], s[0:1], 0')
    a('s_load_dwordx4 s[88:91], s[0:1], 64')
    a('v_lshrrev_b32 v3, 6, v0')
    a('v_and_b32 v0, 63, v0')
    a('v_readfirstlane_b32 s3, v3')
    a('v_lshlrev_b32 v1, 4, v0')
    if cfg.stamp:
        a('v_mov_b32 v2, 0')
        a('s_memrealtime s[70:71]')
    stamp(a, 'entry')
    role(a, 16, 17, cfg.e1, 5, 3)
    a('s_lshl_b32 s17, s17, 2')
    a('s_add_u32 s17, s17, s3')
    front_early(a)
    a(f's_mov_b32 s24, {hx(f2u(1e-5))}')
    a(f's_mov_b32 s25, {hx(ONES)}')
    a(f's_mov_b32 s26, {hx(f2u(0.25 * math.log2(math.e)))}')
    a('s_mov_b32 s28, 0xaaaaaaaa')
    a('s_mov_b32 s29, 0xaaaaaaaa')
    if cfg.tlb:
        a('s_waitcnt lgkmcnt(0)')
        for k, r in enumerate((76, 80, 82, 84)):
            a(f's_load_dword s{(6, 7, 100, 101)[k]}, s[{r}:{r+1}], 0', raw=True)
    srd(a, 60, 72, 2048 * 1024)
    srd(a, 92, 74, 512 * 3072)
    srd(a, 8, 90, WS_BYTES)
    srd(a, 12, 86, 2048 * 1024)
    a('s_mov_b32 s4, s90')
    a('s_mov_b32 s5, s91')
    a(f's_mov_b32 s78, {512 * 1024}')
    a('s_mov_b32 s79, 0x00020000')
    a('s_mov_b32 s90, 256')
    a('s_mov_b32 s91, 0x00020000')
    stamp(a, 'p1.0 start')
    for l in range(2):
        p2(a, l, p1(a, l))
        p34(a, l)
    if cfg.stamp:
        a('s_waitcnt vmcnt(0)')
        stamp(a, 'end')
        a('s_memrealtime s[72:73]')
        a('s_waitcnt lgkmcnt(0)')
        a('v_writelane_b32 v2, s70, 62')
        a('v_writelane_b32 v2, s72, 63')
        a('s_lshl_b32 s30, s2, 2')
        a('s_add_u32 s30, s30, s3')
        a('s_lshl_b32 s30, s30, 8')
        a(f's_add_u32 s30, s30, {hx(STAMPS)}')
        a('v_lshlrev_b32 v3, 2, v0')
        a('buffer_store_dword v2, v3, s[8:11], s30 offen')
    footer(a, name)
    return name, a.finish(), dict(vgpr=256, acc=256, lds=163840)


def assemble(name, body):
    out = []
    for line in open('cdna_kernels/' + NAME + '.s.ref').read().split('\n'):
        if '@launch' in line:
            out.append('; @launch grid=(256,1,1) block=(256,1,1) lds=163840')
        elif line.startswith(';'):
            out.append(line)
        else:
            break
    out += ['.amdgcn_target "amdgcn-amd-amdhsa--gfx950"', '.text', f'.globl {name}', body, '.section .rodata,"a"',
            '.p2align 6', f'.amdhsa_kernel {name}', '  .amdhsa_next_free_vgpr 512', '  .amdhsa_next_free_sgpr 102',
            '  .amdhsa_accum_offset 256', '  .amdhsa_group_segment_fixed_size 0', '  .amdhsa_kernarg_size 80',
            '  .amdhsa_user_sgpr_count 2', '  .amdhsa_user_sgpr_kernarg_segment_ptr 1',
            '  .amdhsa_system_sgpr_workgroup_id_x 1', '  .amdhsa_float_denorm_mode_32 3', '.end_amdhsa_kernel']
    return '\n'.join(out) + '\n'


def main():
    path = sys.argv[1]
    for arg in sys.argv[2:]:
        k, v = arg.split('=')
        assert hasattr(cfg, k), k
        setattr(cfg, k, eval(v))
    name, body, _ = gen_main()
    text = assemble(name, body)
    open(path, 'w').write(text)
    open(path + '.names', 'w').write(repr(stamp_names))
    print('wrote', path, len(text), 'bytes', spin_names)


if __name__ == '__main__':
    main()
```

```python
import sys
import math
sys.path.insert(0, 'dev')
from asmlib import Asm, Ins
import gen1 as G
from gen1 import (WQKV_F, WO_F, WGU_F, WD_F, CS_QKV, X0, O_, X1_, X2, H_, STA, STB, WS_BYTES, ONES, f2u, hx, srd,
                  header, footer, NAME)

CSF = 0x760000
DUMMY = 0x2400000
FLAGS = 0x2300000
STAMPS = 0x3000000
SPIN = 100000


def F1(l): return FLAGS + (l * 32) * 256
def F2(l): return FLAGS + (64 + l * 32) * 256
def F4(): return FLAGS + 128 * 256
def F3(l, st): return FLAGS + (160 + (l * 7 + st) * 128) * 256


G0 = FLAGS + 1952 * 256
GWO, GGU, GWD, GWQ, GDUM = G0, G0 + 8 * 256, G0 + 24 * 256, G0 + 32 * 256, G0 + 40 * 256
LDS_SLAB = 81920
LDS_RING = 114688
LDS_CSR = 81920 + 1024


class Cfg:
    stamp = False
    e1 = 1
    e2 = 1
    e3 = 1
    e4 = 0
    stages = ((0, 1, 2), (3,), (4,), (5,), (6,))
    spin = False
    skip = ()
    touch = True
    wdearly = 6
    t0 = False
    t1 = False
    t2 = False
    only = None
    PF = 14
    NB = 16
    fine = True
    sw = (-1, -1, -1, -1, 0, 1, 2, 3, 4, 5, 6, 7, 8, 9, 10, 11)
    sx1 = (-1, -1, -1, -1, -1)
    sx2 = (1, 1, 2, 2, 3)
    sx3 = (3, 4, 4, 5, 5)
    sld = (0, 1, 2, 3, 4, 5, 6, 7)
    sst = (4, 5, 6, 7, 8, 9, 10, 11)
    xp = 0
    ssc = ' sc1'
    npf0 = 34
    ntx = ''
    ntw = ''
    nts = ''
    tlb = False
    rt = False
    wtlate = 16
    spin_s = True
    tlb2 = -1
    sg0 = 15
    g0pos = 0
    ssig = 16
    wsc = ' sc1'
    spoll = True
    PD = 8
    s5 = 4
    s6 = 10


cfg = Cfg()
nstamp = [0]
stamp_names = []
spin_names = []


def stamp(a, name):
    if not cfg.stamp or any(name.startswith(x) for x in cfg.skip):
        return
    k = nstamp[0]
    nstamp[0] += 1
    stamp_names.append(name)
    assert k < (50 if cfg.spin else 62)
    a('s_memrealtime s[58:59]' if cfg.rt else 's_memtime s[58:59]')
    a('s_waitcnt lgkmcnt(0)')
    a(f'v_writelane_b32 v2, s58, {k}')


def role(a, dtok, dcol, e, nblk_bits, ncol_bits, t=(30, 31, 32, 33)):
    cb = ncol_bits - e
    T0, T1, T2, T3 = ('s%d' % x for x in t)
    a(f's_and_b32 {T0}, s2, 7')
    a(f's_lshr_b32 {T1}, s2, 3')
    a(f's_lshr_b32 {T2}, {T0}, {e}')
    a(f's_lshl_b32 {T2}, {T2}, {nblk_bits - (3 - e)}')
    a(f's_lshr_b32 {T3}, {T1}, {cb}')
    a(f's_add_u32 s{dtok}, {T2}, {T3}')
    a(f's_and_b32 {T2}, {T0}, {(1 << e) - 1}')
    a(f's_lshl_b32 {T2}, {T2}, {cb}')
    a(f's_and_b32 {T3}, {T1}, {(1 << cb) - 1}')
    a(f's_add_u32 s{dcol}, {T2}, {T3}')


uid = [0]


def poll_wg(a, sflag, nlanes_mask, voff, target, second=None):
    uid[0] += 1
    u = uid[0]
    if cfg.spin_s:
        a('s_cmp_lg_u32 s3, 0')
        a(f's_cbranch_scc1 L_pw_done{u}')
        a(f's_mov_b32 s57, {SPIN}')
        if second:
            a(f's_add_u32 s66, {sflag}, {second}')
        a(f'L_pw{u}:')
        a(f's_load_dword s64, s[4:5], {sflag} glc', raw=True)
        if second:
            a('s_load_dword s65, s[4:5], s66 glc', raw=True)
        a('s_sub_u32 s57, s57, 1')
        a(f's_cbranch_scc1 L_pw_done{u}')
        a('s_waitcnt lgkmcnt(0)', raw=True)
        if second:
            a('s_min_u32 s64, s64, s65', raw=True)
        a(f's_cmp_lg_u32 s64, {target}', raw=True)
        a(f's_cbranch_scc1 L_pw{u}')
        a(f'L_pw_done{u}:')
        a('s_barrier')
        return
    a('s_cmp_lg_u32 s3, 0')
    a(f's_cbranch_scc1 L_pw_done{u}')
    a(f's_mov_b64 exec, {nlanes_mask}')
    a(f's_mov_b32 s57, {SPIN}')
    a(f'L_pw{u}:')
    a(f'buffer_load_dword v3, {voff}, s[8:11], {sflag} {"offen " if voff != "off" else ""}sc1', raw=True)
    a('s_waitcnt vmcnt(0)', raw=True)
    a(f'v_cmp_ne_u32 vcc, {target}, v3', raw=True)
    a('s_sub_u32 s57, s57, 1')
    a(f's_cbranch_scc1 L_pw_out{u}')
    a(f's_cbranch_vccnz L_pw{u}')
    a(f'L_pw_out{u}:')
    a('s_mov_b64 exec, -1')
    a(f'L_pw_done{u}:')
    a('s_barrier')


def poll_issue(a, vreg, sflag, scalar=False):
    if scalar:
        a(f's_load_dword s{scalar}, s[4:5], {sflag} glc')
    else:
        a(f'buffer_load_dword v{vreg}, off, s[8:11], {sflag} sc1')


def poll_check(a, vreg, sflag, target, scalar=False):
    uid[0] += 1
    u = uid[0]
    outer, a = a, Asm()
    a(f's_mov_b32 s57, {SPIN}')
    if scalar:
        a(f's_cmp_eq_u32 s{scalar}, {target}')
        a(f's_cbranch_scc1 L_pc_ok{u}')
    else:
        a(f'v_cmp_ne_u32 vcc, {target}, v{vreg}')
        a(f's_cbranch_vccz L_pc_ok{u}')
    a(f'L_pc{u}:')
    a(f'buffer_load_dword v{vreg}, off, s[8:11], {sflag} sc1', raw=True)
    a('s_waitcnt vmcnt(0)', raw=True)
    a(f'v_cmp_ne_u32 vcc, {target}, v{vreg}', raw=True)
    a('s_sub_u32 s57, s57, 1')
    a(f's_cbranch_scc1 L_pc_ok{u}')
    a(f's_cbranch_vccnz L_pc{u}')
    a(f'L_pc_ok{u}:')
    if cfg.stamp and cfg.spin:
        k = 63 - 2 - len(spin_names)
        spin_names.append(f'spin pc{u}')
        a(f's_sub_u32 s57, {SPIN}, s57')
        a(f'v_writelane_b32 v2, s57, {50 + len(spin_names) - 1}')
    outer.group(a)


def signal(a, sflag, vone, wave0_only=True):
    uid[0] += 1
    u = uid[0]
    outer, a = a, Asm()
    if wave0_only:
        a('s_cmp_lg_u32 s3, 0')
        a(f's_cbranch_scc1 L_sg{u}')
    a('s_mov_b64 exec, 1')
    a(f'buffer_atomic_add v{vone}, off, s[8:11], {sflag} sc1', raw=wave0_only)
    a('s_mov_b64 exec, -1')
    if wave0_only:
        a(f'L_sg{u}:')
    outer.group(a)


def wq_loc(f):
    if f < 16:
        return f'v[{192+4*f}:{195+4*f}]'
    if f < 24:
        return f'a[{224+4*(f-16)}:{227+4*(f-16)}]'
    if f < 40:
        return f'a[{160+4*(f-24)}:{163+4*(f-24)}]'
    return f'v[{160+4*(f-40)}:{163+4*(f-40)}]'


def p4_korder():
    return [[7 * c + T for T in st for c in range(4)] for st in cfg.stages]


def wd_loc(s, f):
    order = [k for g in p4_korder() for k in g]
    p = order.index(s)
    r = 160 + (2 * p + f) * 4 if p < 8 else (2 * (p - 8) + f) * 4
    return f'a[{r}:{r+3}]'


LDS_WO = 98304
LDS_TAB = 81920


def slot(T):
    return (T % 5) * 32768


def st_wqkv(fs):
    a = Asm()
    a('s_mul_i32 s40, s17, 49152')
    cur = None
    for f in fs:
        g = f >> 2
        if g != cur:
            a(f's_add_u32 s41, s40, {hx(WQKV_F + g * 4096)}')
            cur = g
        a(f'buffer_load_dwordx4 {wq_loc(f)}, v1, s[8:11], s41 offen offset:{1024*(f&3)}{cfg.wsc}', tag='wq')
    return a


VWO = 5


def st_wo_f():
    a = Asm()
    a('s_lshl_b32 s42, s19, 16')
    a('s_lshl_b32 s43, s3, 14')
    a('s_add_u32 s42, s42, s43')
    a(f's_add_u32 s42, s42, {hx(WO_F)}')
    a(f's_add_u32 s43, s43, {LDS_WO}')
    for g in range(4):
        a('s_mov_b32 m0, s43')
        for j in range(4):
            a(f'buffer_load_dwordx4 v1, s[8:11], s42 offen offset:{1024*j}{cfg.wsc} lds', tag='wo')
        if g < 3:
            a('s_add_u32 s42, s42, 4096')
            a('s_add_u32 s43, s43, 4096')
    return a


def st_wo():
    a = Asm()
    a('s_lshl_b32 s42, s19, 7')
    a('s_lshl_b32 s43, s3, 17')
    a('s_add_u32 s42, s42, s43')
    a('s_lshl_b32 s43, s3, 14')
    a(f's_add_u32 s43, s43, {LDS_WO}')
    for g in range(4):
        a('s_mov_b32 m0, s43')
        for j in range(4):
            a(f'buffer_load_dwordx4 v{VWO}, s[76:79], s42 offen offset:{1024*j} lds', tag='wo')
            if j < 3:
                a('s_add_u32 s42, s42, 7168')
        if g < 3:
            a(f's_add_u32 s42, s42, {8192 + 3072}')
            a('s_add_u32 s43, s43, 4096')
    return a


def wo_tr(BF):
    a = Asm()
    A0, A1, AW = 12, 13, 14
    a('s_lshl_b32 s38, s3, 14')
    a(f's_add_u32 s38, s38, {LDS_WO}')
    a('v_lshrrev_b32 v11, 5, v0')
    a('v_bfe_u32 v15, v0, 2, 2')
    a(f'v_lshl_add_u32 v{A0}, v11, 3, v15')
    a(f'v_lshlrev_b32 v{A0}, 7, v{A0}')
    a('v_bfe_u32 v15, v0, 3, 1')
    a(f'v_lshl_add_u32 v{A0}, v15, 6, v{A0}')
    a('v_and_b32 v15, 3, v0')
    a(f'v_lshl_add_u32 v{A0}, v15, 4, v{A0}')
    a('v_bfe_u32 v15, v0, 4, 1')
    a(f'v_lshl_add_u32 v{A0}, v15, 3, v{A0}')
    a(f'v_add_u32 v{A0}, s38, v{A0}')
    a(f'v_xor_b32 v{A1}, 64, v{A0}')
    a(f'v_lshlrev_b32 v{AW}, 10, v15')
    a(f'v_lshl_add_u32 v{AW}, v11, 8, v{AW}')
    a('v_and_b32 v15, 15, v0')
    a(f'v_lshl_add_u32 v{AW}, v15, 4, v{AW}')
    a(f'v_add_u32 v{AW}, s38, v{AW}')
    a.waitvm('wo')
    for u in range(8):
        for p in range(2):
            r = BF + 4 * (2 * u + p)
            for h in range(2):
                a(f'ds_read_b64_tr_b16 v[{r+2*h}:{r+2*h+1}], v{A0+p} offset:{u * 2048 + h * 512}')
    a('s_waitcnt lgkmcnt(0)')
    for u in range(8):
        for p in range(2):
            r = BF + 4 * (2 * u + p)
            a(f'ds_write_b128 v{AW}, v[{r}:{r+3}] offset:{(u >> 1) * 4096 + p * 2048 + (u & 1) * 512}')
    return a


def st_wgu(Ts):
    a = Asm()
    a('s_mul_i32 s44, s21, 229376')
    a('s_lshl_b32 s45, s3, 13')
    a('s_add_u32 s44, s44, s45')
    for T in Ts:
        for g in range(2):
            a(f's_add_u32 s46, s45, {slot(T) + g * 4096}')
            a(f's_add_u32 s47, s44, {hx(WGU_F + T * 32768 + g * 4096)}')
            a('s_mov_b32 m0, s46')
            for j in range(4):
                a(f'buffer_load_dwordx4 v1, s[8:11], s47 offen offset:{1024*j}{cfg.wsc} lds', tag=f'wg{T}')
    return a


CF = (124, 76)
MBZ = 64


def st_csf():
    a = Asm()
    a('s_lshl_b32 s48, s21, 11')
    a(f's_add_u32 s48, s48, {hx(CSF)}')
    for j in range(2):
        a(f'buffer_load_dwordx4 v[{CF[j]}:{CF[j]+3}], v1, s[8:11], s48 offen offset:{1024*j} sc1', tag='csf')
    return a


def st_wd(positions):
    a = Asm()
    order = [k for g in p4_korder() for k in g]
    a('s_lshl_b32 s49, s23, 1')
    a('s_and_b32 s50, s3, 1')
    a('s_add_u32 s49, s49, s50')
    a('s_xor_b32 s50, s49, 1')
    a('s_mul_i32 s51, s3, 28672')
    a('s_mul_i32 s49, s49, 114688')
    a('s_mul_i32 s50, s50, 114688')
    a('s_add_u32 s49, s49, s51')
    a('s_add_u32 s50, s50, s51')
    for p in positions:
        s = order[p]
        for f in range(2):
            a(f's_add_u32 s51, s{49+f}, {hx(WD_F + s * 1024)}')
            a(f'buffer_load_dwordx4 {wd_loc(s, f)}, v1, s[8:11], s51 offen{cfg.wsc}', tag='wd')
    return a


def mix(x, y):
    x = x.ins if isinstance(x, Asm) else x
    y = y.ins if isinstance(y, Asm) else y
    out = []
    i = j = 0
    while i < len(x) or j < len(y):
        if j >= len(y) or (i < len(x) and i * len(y) <= j * len(x)):
            out.append(x[i]); i += 1
        else:
            out.append(y[j]); j += 1
    return out


def cat(*xs):
    out = []
    for x in xs:
        out.extend(x.ins if isinstance(x, Asm) else x)
    return out


def split_mfma(lst, bounds):
    parts = [[] for _ in range(len(bounds) + 1)]
    m = 0
    for i in lst:
        parts[sum(1 for b in bounds if m >= b)].append(i)
        if i.kind == 'mfma':
            m += 1
    return parts


def vm_split(st, n):
    k = 0
    L = st.ins if isinstance(st, Asm) else st
    for idx, i in enumerate(L):
        if i.kind == 'vmem':
            k += 1
            if k == n:
                return L[:idx + 1], L[idx + 1:]
    return L, []


VX, VW, VT = 248, 249, 250


def grp(a, *lines, tag=None, raw=False):
    g = Asm()
    for x in lines:
        g(x, tag=tag if x.startswith('buffer_') or x.startswith('ds_') else None, raw=raw)
    a.group(g)


def front_early(a):
    a('s_lshl_b32 s35, s3, 2')
    a('v_lshrrev_b32 v3, 4, v0')
    a('v_add_u32 v3, s35, v3')
    a('v_and_b32 v4, 15, v0')
    a('v_xor_b32 v4, v4, v3')
    a(f'v_lshlrev_b32 v{VX}, 10, v3')
    a(f'v_lshl_add_u32 v{VX}, v4, 4, v{VX}')
    a('v_lshrrev_b32 v3, 3, v0')
    a('s_and_b32 s36, s3, 1')
    a('s_lshl_b32 s36, s36, 1')
    a('v_bfe_u32 v4, v0, 4, 1')
    a('v_or_b32 v4, s36, v4')
    a('v_bfe_u32 v5, v0, 1, 2')
    a('v_xor_b32 v4, v4, v5')
    a('s_lshl_b32 s36, s3, 3')
    a('v_add_u32 v3, s36, v3')
    a(f'v_mul_u32_u24 v{VW}, 3072, v3')
    a(f'v_lshl_add_u32 v{VW}, v4, 5, v{VW}')
    a('v_and_b32 v4, 1, v0')
    a(f'v_lshl_add_u32 v{VW}, v4, 4, v{VW}')
    a('s_lshl_b32 s35, s3, 10')
    a('s_mul_i32 s34, s3, 3072')
    a('s_lshl_b32 s30, s16, 16')
    a('s_sub_u32 s31, s30, 16384')
    a('s_max_i32 s31, s31, 0')
    a('s_add_u32 s68, s30, 16384')
    a('s_add_u32 s69, s30, 32768')
    a('s_add_u32 s27, s30, 49152')
    a('s_lshr_b32 s32, s17, 2')
    a('s_lshl_b32 s32, s32, 7')
    a('s_and_b32 s52, s2, 7')
    a('s_lshr_b32 s53, s2, 4')
    a('s_lshl_b32 s53, s53, 3')
    a('s_add_u32 s52, s52, s53')
    a('s_lshl_b32 s52, s52, 1')
    a('s_bfe_u32 s53, s2, 0x10003')
    a('s_add_u32 s52, s52, s53')


def slab_role():
    a = Asm()
    a('s_mov_b32 s99, 0x00020000')
    a('s_mov_b32 s51, 0')
    a('s_mov_b32 s53, 0')
    a('s_mov_b32 s54, 0')
    a('s_cmp_lt_u32 s52, 48')
    a('s_cbranch_scc1 L_sl_qkv')
    a('s_cmp_lt_u32 s52, 64')
    a('s_cbranch_scc1 L_sl_wo')
    a('s_cmp_lt_u32 s52, 176')
    a('s_cbranch_scc1 L_sl_gu')
    a('s_mov_b32 s96, s84')
    a('s_mov_b32 s97, s85')
    a(f's_mov_b32 s98, {1792 * 1024}')
    a('s_cmp_ge_u32 s52, 240')
    a('s_cselect_b32 s36, 16, 0')
    a('s_sub_u32 s36, s52, s36')
    a('s_sub_u32 s36, s36, 176')
    a('s_lshr_b32 s37, s36, 4')
    a('s_and_b32 s36, s36, 15')
    a('s_mov_b32 s40, 1024')
    a(f's_mul_i32 s41, s37, {448 * 1024}')
    a(f's_mul_i32 s38, s3, {112 * 1024}')
    a('s_add_u32 s41, s41, s38')
    a('s_lshl_b32 s38, s36, 6')
    a('s_add_u32 s41, s41, s38')
    a('s_mul_i32 s43, s36, 114688')
    a('s_mul_i32 s38, s37, 28672')
    a('s_add_u32 s43, s43, s38')
    a('s_mul_i32 s38, s3, 7168')
    a('s_add_u32 s43, s43, s38')
    a(f's_add_u32 s43, s43, {hx(WD_F)}')
    a('s_mov_b32 s44, 1024')
    a('s_mov_b32 s45, 2048')
    a('s_mov_b32 s46, 256')
    a('s_mov_b32 s47, 512')
    a('s_mov_b32 s48, 16')
    a('s_mov_b32 s49, 32')
    a('s_mov_b32 s50, 8')
    a('s_mov_b32 s51, 16384')
    a('s_mov_b32 s53, 1024')
    a('s_lshr_b32 s36, s36, 1')
    a('s_lshl_b32 s36, s36, 8')
    a(f's_add_u32 s64, s36, {hx(GWD)}')
    a('s_cmp_ge_u32 s52, 240')
    a(f's_cselect_b32 s64, {hx(GDUM)}, s64')
    a('s_mov_b32 s65, s64')
    a('s_branch L_sl_go')
    a('L_sl_gu:')
    a('s_cmp_lt_u32 s52, 120')
    a('s_cselect_b32 s96, s80, s82')
    a('s_cselect_b32 s97, s81, s83')
    a('s_cselect_b32 s36, 64, 120')
    a('s_cselect_b32 s37, 0, 256')
    a(f's_mov_b32 s98, {512 * 3584}')
    a('s_sub_u32 s36, s52, s36')
    a('s_mov_b32 s40, 3584')
    a(f's_mul_i32 s41, s3, {128 * 3584}')
    a('s_lshl_b32 s38, s36, 6')
    a('s_add_u32 s41, s41, s38')
    a('s_lshl_b32 s43, s36, 16')
    a('s_add_u32 s43, s43, s37')
    a('s_lshl_b32 s38, s3, 13')
    a('s_add_u32 s43, s43, s38')
    a(f's_add_u32 s43, s43, {hx(WGU_F)}')
    a('s_mov_b32 s44, 1024')
    a('s_mov_b32 s45, 2048')
    a('s_mov_b32 s46, 32768')
    a('s_mov_b32 s47, 512')
    a('s_mov_b32 s48, 32')
    a('s_mov_b32 s49, 16')
    a('s_mov_b32 s50, 8')
    a('s_mov_b32 s54, 2')
    for e in range(2):
        a('s_lshl_b32 s38, s36, 1')
        a(f's_add_u32 s38, s38, {e}')
        a('s_mul_i32 s39, s38, 9363')
        a('s_lshr_b32 s39, s39, 16')
        a(f's_lshl_b32 s{64+e}, s39, 8')
        a(f's_add_u32 s{64+e}, s{64+e}, {hx(GGU)}')
        a(f's_lshl_b32 s{55+e}, s39, 11')
        a('s_mul_i32 s39, s39, 7')
        a('s_sub_u32 s38, s38, s39')
        a('s_lshr_b32 s39, s38, 1')
        a('s_lshl_b32 s39, s39, 9')
        a(f's_add_u32 s{55+e}, s{55+e}, s39')
        a('s_and_b32 s38, s38, 1')
        a('s_lshl_b32 s38, s38, 3')
        a(f's_add_u32 s{55+e}, s{55+e}, s38')
        a(f's_add_u32 s{55+e}, s{55+e}, s37')
        a(f's_add_u32 s{55+e}, s{55+e}, {hx(CSF)}')
    a('s_branch L_sl_go')
    a('L_sl_wo:')
    a('s_mov_b32 s96, s76')
    a('s_mov_b32 s97, s77')
    a(f's_mov_b32 s98, {512 * 1024}')
    a('s_sub_u32 s36, s52, 48')
    a('s_mov_b32 s40, 1024')
    a('s_lshl_b32 s41, s3, 17')
    a('s_lshl_b32 s38, s36, 6')
    a('s_add_u32 s41, s41, s38')
    a('s_lshr_b32 s37, s36, 1')
    a('s_lshl_b32 s43, s37, 16')
    a('s_and_b32 s38, s36, 1')
    a('s_lshl_b32 s38, s38, 11')
    a('s_add_u32 s43, s43, s38')
    a('s_lshl_b32 s38, s3, 14')
    a('s_add_u32 s43, s43, s38')
    a(f's_add_u32 s43, s43, {hx(WO_F)}')
    a('s_mov_b32 s44, 512')
    a('s_mov_b32 s45, 4096')
    a('s_mov_b32 s46, 1024')
    a('s_mov_b32 s47, 256')
    a('s_mov_b32 s48, 8')
    a('s_mov_b32 s49, 16')
    a('s_mov_b32 s50, 32')
    a('s_lshl_b32 s37, s37, 8')
    a(f's_add_u32 s64, s37, {hx(GWO)}')
    a('s_mov_b32 s65, s64')
    a('s_branch L_sl_go')
    a('L_sl_qkv:')
    a('s_mov_b32 s96, s74')
    a('s_mov_b32 s97, s75')
    a(f's_mov_b32 s98, {512 * 3072}')
    a('s_mov_b32 s40, 3072')
    a(f's_mul_i32 s41, s3, {128 * 3072}')
    a('s_lshl_b32 s38, s52, 6')
    a('s_add_u32 s41, s41, s38')
    a('s_and_b32 s36, s52, 15')
    a('s_mul_i32 s43, s36, 98304')
    a('s_lshr_b32 s38, s52, 4')
    a('s_lshl_b32 s38, s38, 10')
    a('s_add_u32 s43, s43, s38')
    a('s_mul_i32 s38, s3, 12288')
    a('s_add_u32 s43, s43, s38')
    assert WQKV_F == 0
    a('s_mov_b32 s44, 512')
    a('s_mov_b32 s45, 3072')
    a('s_mov_b32 s46, 49152')
    a('s_mov_b32 s47, 256')
    a('s_mov_b32 s48, 32')
    a('s_mov_b32 s49, 8')
    a('s_mov_b32 s50, 16')
    a('s_mov_b32 s54, 1')
    a('s_lshl_b32 s55, s52, 7')
    a(f's_add_u32 s55, s55, {hx(CS_QKV)}')
    a('s_add_u32 s56, s55, 64')
    a('s_lshr_b32 s36, s36, 1')
    a('s_lshl_b32 s36, s36, 8')
    a(f's_add_u32 s64, s36, {hx(GWQ)}')
    a('s_mov_b32 s65, s64')
    a('L_sl_go:')
    a('s_lshl_b32 s36, s2, 2')
    a('s_add_u32 s36, s36, s3')
    a('s_lshl_b32 s36, s36, 9')
    a(f's_add_u32 s36, s36, {hx(DUMMY)}')
    a('s_add_u32 s37, s36, 256')
    a('s_cmp_eq_u32 s3, 0')
    a('s_cselect_b32 s38, s54, 0')
    a('s_cmp_lg_u32 s38, 0')
    a('s_cselect_b32 s55, s55, s36')
    a('s_cselect_b32 s56, s56, s37')
    a('s_lshl_b32 s42, s40, 4')
    a('s_sub_u32 s51, s42, s51')
    a('s_lshl_b32 s66, s3, 13')
    a(f's_add_u32 s66, s66, {LDS_SLAB}')
    return a


def spin(a, name, load, cmp_):
    a(f's_mov_b32 s57, {SPIN}')
    a(cmp_, raw=True)
    a(f's_cbranch_vccz L_{name}_ok')
    a(f'L_{name}:')
    a(load, raw=True)
    a('s_waitcnt vmcnt(0)', raw=True)
    a(cmp_, raw=True)
    a('s_sub_u32 s57, s57, 1')
    a(f's_cbranch_scc1 L_{name}_ok')
    a(f's_cbranch_vccnz L_{name}')
    a(f'L_{name}_ok:')
    if cfg.stamp and cfg.spin:
        spin_names.append(name)
        a(f's_sub_u32 s57, {SPIN}, s57')
        a(f'v_writelane_b32 v2, s57, {50 + len(spin_names) - 1}')


VG, VGT, VZ = 254, 255, 216


def g0_check():
    a = Asm()
    a.waitvm('g0')
    g = Asm()
    g('s_cmp_lg_u32 s3, 0')
    g('s_cbranch_scc1 L_g0_skip')
    g('s_mov_b64 exec, 15')
    spin(g, 'g0', f'buffer_load_dword v{VZ}, v{VG}, s[8:11], 0 offen sc1', f'v_cmp_ne_u32 vcc, v{VGT}, v{VZ}')
    g('s_mov_b64 exec, -1')
    g('L_g0_skip:')
    a.group(g)
    return a


def fix_m0(a, start):
    from asmlib import flatten
    body = flatten(a.ins[start:])
    out = []
    cur = None
    for i in body:
        if i.kind == 'salu' and ('s', 'm0') in i.defs:
            cur = i.text
        if i.kind == 'vmem' and isinstance(i.note, str) and i.note.startswith('s_add_u32 m0'):
            if cur != i.note:
                out.append(Ins(i.note))
                cur = i.note
            i.note = None
        out.append(i)
    a.ins[start:] = out


def front0(a, consts, AK, AV, AQ, CSQ, CSK, CSV, VC):
    VXR, VXR2, VXS = 140, 144, 148
    VSL, VST, VSS = 251, 252, 253
    VCA, VCS, VCW, VCR = 153, 154, 155, 156
    WS = lambda s, P: 160 + 12 * (s & 1) + 4 * P
    CSV4, ONE, SO, GO, SH, GH = 184, 188, 192, 196, 200, 204
    RX = [84, 88, 92, 96, 208, 212]
    SF = [224, 228, 232, 236]
    CSA, SEL = 240, 244
    q4 = lambda r: f'v[{r}:{r+3}]'

    def xd(d, kq, i):
        grp(d, f's_add_u32 m0, s35, {kq * 20224 + i * 4096}',
            f'buffer_load_dwordx4 v{VX}, s[60:63], s{(31, 30, 68, 69, 27)[i]} offen offset:{kq * 256}{cfg.ntx} lds', tag=f'x{kq}')

    def wd_(d, s):
        ld = [f'buffer_load_dwordx4 v{VW}, s[92:95], s33 offen offset:{P * 1024}{cfg.ntw} lds' for P in (1, 2, 0)]
        m0 = f's_add_u32 m0, s34, {LDS_RING + (s & 3) * 12288}'
        grp(d, m0, f's_add_u32 s33, s32, {s * 98304}', ld[0], tag=f'w{s}')
        for x in ld[1:]:
            i = d(x, tag=f'w{s}')
            i.note = m0

    def tr(d, s):
        for P in (1, 2, 0):
            for u in range(2):
                r = WS(s, P) + 2 * u
                d(f'ds_read_b64_tr_b16 v[{r}:{r+1}], v{VT} offset:{(s & 3) * 12288 + P * 1024 + u * 512}', tag=f't{s}')

    def sld(d, u):
        if cfg.xp & 1:
            return
        grp(d, f's_add_u32 m0, s66, {u * 1024}',
            f'buffer_load_dwordx4 v{VSL}, s[96:99], s41 offen{cfg.nts} lds',
            f's_add_u32 s41, s41, s{51 if u == 6 else 42}', tag=f'sl{u}')

    def sst(d, u):
        r = SF[u & 3]
        d.waitvm(f'sl{u}')
        for h in range(2):
            d(f'ds_read_b64_tr_b16 v[{r+2*h}:{r+2*h+1}], v{VST} offset:{u * 1024 + h * 256}')
        e = Asm()
        if u & 1:
            e('s_add_u32 s67, s43, s44')
            if u == 7:
                e('s_sub_u32 s67, s67, s53')
            if not cfg.xp & 2:
                e(f'buffer_store_dwordx4 {q4(r)}, v{VSS}, s[8:11], s67 offen{cfg.ssc}', tag='slab')
            e('s_add_u32 s43, s43, s45')
        elif not cfg.xp & 2:
            e(f'buffer_store_dwordx4 {q4(r)}, v{VSS}, s[8:11], s43 offen{cfg.ssc}', tag='slab')
        e(f'v_mfma_f32_16x16x32_bf16 {q4(CSA)}, {q4(r)}, {q4(SEL)}, {q4(CSA) if u else 0}')
        return e

    start0 = len(a.ins)
    z = Asm()
    z('s_cmp_lt_u32 s52, 240')
    z('s_cbranch_scc1 L_z_skip')
    z('s_cmp_gt_u32 s3, 1')
    z('s_cbranch_scc1 L_z_skip')
    z('s_sub_u32 s36, s52, 240')
    z('s_lshl_b32 s36, s36, 1')
    z('s_add_u32 s36, s36, s3')
    z('s_lshl_b32 s36, s36, 14')
    z(f's_add_u32 s36, s36, {hx(FLAGS)}')
    z('v_lshlrev_b32 v3, 8, v0')
    z('v_mov_b32 v4, 0')
    z('buffer_store_dword v4, v3, s[8:11], s36 offen sc1', raw=True)
    z('L_z_skip:')
    a.group(z)
    L = Asm()
    for i in range(5):
        xd(L, 0, i)
    for s in range(4):
        if cfg.sw[s] < 0:
            wd_(L, s)
    L2 = Asm()
    for u in range(8):
        if cfg.sld[u] < 0:
            sld(L2, u)
    for i in range(5):
        if cfg.sx1[i] < 0:
            xd(L2, 1, i)
    S = Asm()
    S('v_and_b32 v132, 15, v0')
    S('v_lshrrev_b32 v133, 4, v0')
    S('v_lshrrev_b32 v134, 2, v132')
    S(f'v_mul_u32_u24 v{VT}, 3072, v133')
    S(f'v_lshl_add_u32 v{VT}, v134, 7, v{VT}')
    S('v_bfe_u32 v135, v0, 3, 2')
    S('v_xor_b32 v135, s3, v135')
    S(f'v_lshl_add_u32 v{VT}, v135, 5, v{VT}')
    S('v_and_b32 v135, 3, v0')
    S(f'v_lshl_add_u32 v{VT}, v135, 3, v{VT}')
    S(f'v_add_u32 v{VT}, {LDS_RING}, v{VT}')
    S('s_lshl_b32 s38, s3, 12')
    S('s_add_u32 s38, s38, 4096')
    for j in range(4):
        S(f'v_add_u32 v135, {4 * j}, v133')
        S('v_xor_b32 v135, v135, v132')
        S(f'v_lshlrev_b32 v{VXR+j}, 8, v132')
        S(f'v_lshl_add_u32 v{VXR+j}, v135, 4, v{VXR+j}')
        S(f'v_add_u32 v{VXR2+j}, 61440, v{VXR+j}')
        S(f'v_add_u32 v{VXS+j}, s38, v{VXR+j}')
    for r in range(4):
        S(f'v_mov_b32 v{ONE+r}, s25')
    for (dt, dc, e, nb, nc) in ((18, 19, cfg.e2, 5, 3), (20, 21, cfg.e3, 4, 4), (22, 23, cfg.e4, 5, 3)):
        role(S, dt, dc, e, nb, nc, (36, 37, 38, 57))
    S.group(slab_role())
    S('v_lshrrev_b32 v135, 2, v0')
    S(f'v_mul_u32_u24 v{VSL}, s40, v135')
    S('v_and_b32 v135, 3, v0')
    S(f'v_lshl_add_u32 v{VSL}, v135, 4, v{VSL}')
    S('v_lshrrev_b32 v136, 5, v0')
    S('v_and_b32 v137, 1, v133')
    S('v_lshl_add_u32 v135, v136, 3, v134')
    S(f'v_lshlrev_b32 v{VST}, 6, v135')
    S(f'v_mad_u32_u24 v{VST}, v137, s48, v{VST}')
    S('v_and_b32 v135, 1, v0')
    S(f'v_mad_u32_u24 v{VST}, v135, s49, v{VST}')
    S('v_bfe_u32 v135, v0, 1, 1')
    S(f'v_mad_u32_u24 v{VST}, v135, s50, v{VST}')
    S(f'v_add_u32 v{VST}, s66, v{VST}')
    S(f'v_lshlrev_b32 v{VSS}, 4, v132')
    S(f'v_mad_u32_u24 v{VSS}, v137, s46, v{VSS}')
    S(f'v_mad_u32_u24 v{VSS}, v136, s47, v{VSS}')
    g = Asm()
    g('v_xor_b32 v135, v0, v133')
    g('v_and_b32 v135, 1, v135')
    g('v_cmp_eq_u32 vcc, 0, v135')
    g(f'v_cndmask_b32 v{SEL}, 0, v{ONE}, vcc')
    S.group(g)
    for r in range(1, 4):
        S(f'v_mov_b32 v{SEL+r}, v{SEL}')
    S(f'v_mov_b32 v{VCA}, s64')
    S(f'v_writelane_b32 v{VCA}, s65, 1')
    g = Asm()
    g('s_cmp_eq_u32 s54, 2')
    g('s_cselect_b32 s38, 16, 4')
    g(f'v_mul_u32_u24 v{VCS}, s38, v132')
    g('v_mov_b32 v135, s55')
    g('v_mov_b32 v136, s56')
    g('v_cmp_eq_u32 vcc, 0, v137')
    g('v_cndmask_b32 v135, v136, v135, vcc')
    g(f'v_add_u32 v{VCS}, v{VCS}, v135')
    S.group(g)
    S('v_and_b32 v135, 1, v0')
    S(f'v_lshlrev_b32 v{VCW}, 6, v135')
    S(f'v_lshl_add_u32 v{VCW}, v133, 4, v{VCW}')
    S('s_lshl_b32 s38, s3, 7')
    S(f's_add_u32 s38, s38, {LDS_CSR}')
    S(f'v_add_u32 v{VCW}, s38, v{VCW}')
    S('v_and_b32 v135, 31, v0')
    S(f'v_lshlrev_b32 v{VCR}, 2, v135')
    S(f'v_add_u32 v{VCR}, {LDS_CSR}, v{VCR}')
    for k, (sr_, base, tgt, sh) in enumerate(((19, GWO, 4, 0), (21, GGU, 14, 0), (23, GWD, 16, 0), (17, GWQ, 12, 2))):
        S(f's_lshr_b32 s38, s{sr_}, {sh}')
        S('s_lshl_b32 s38, s38, 8')
        S(f's_add_u32 s38, s38, {hx(base)}')
        if k == 0:
            S(f'v_mov_b32 v{VG}, s38')
            S(f'v_mov_b32 v{VGT}, {tgt}')
        else:
            S(f'v_writelane_b32 v{VG}, s38, {k}')
            S(f'v_writelane_b32 v{VGT}, {tgt}, {k}')
    for i in consts.ins:
        S.ins.append(i)
    a.extend(L.ins[:3])
    ncon = len(consts.ins)
    a.extend(mix(L.ins[3:], S.ins[:-ncon]))
    a.extend(mix(L2, S.ins[-ncon:]))
    stamp(a, 'p1.0 issued')
    a.waitvm('w0')
    a('s_barrier')
    g = Asm()
    g('s_cmp_lt_u32 s52, 240')
    g('s_cbranch_scc1 L_zf_skip')
    g('s_cmp_lg_u32 s3, 0')
    g('s_cbranch_scc1 L_zf_skip')
    g('s_sub_u32 s36, s52, 240')
    g('s_lshl_b32 s36, s36, 2')
    g('v_mov_b32 v135, 1')
    g('s_mov_b64 exec, 1')
    g('buffer_store_dword v135, off, s[88:91], s36 sc1', raw=True)
    g('s_mov_b64 exec, -1')
    g('L_zf_skip:')
    a.group(g)
    tr(a, 0)
    stamp(a, 'p1.0 first')

    groups = []
    mf = lambda d, x, y, first: f'v_mfma_f32_16x16x32_bf16 {q4(d)}, {x}, {y}, {0 if first else q4(d)}'
    for s in range(16):
        kq, j = s >> 2, s & 3
        for i in range(5):
            off = kq * 20480 + i * 4096
            ad = (VXR + j, off) if off < 65536 else (VXR2 + j, off - 61440)

            def f(B, s=s, i=i):
                r = [mf(AK(i), q4(WS(s, 1)), B, s == 0), mf(AV(i), B, q4(WS(s, 2)), s == 0)]
                if i:
                    r.append(mf(AQ(i), q4(WS(s, 0)), B, s == 0))
                return r
            groups.append((s, ad, f))
        groups.append((s, None, lambda B, s=s: [mf(CSK, q4(WS(s, 1)), q4(ONE), s == 0), mf(CSV4, q4(ONE), q4(WS(s, 2)), s == 0),
                                                mf(CSQ, q4(WS(s, 0)), q4(ONE), s == 0)]))
        if 2 <= s < 10:
            for sg in (2 * s - 4, 2 * s - 3):
                for (base, sm, gr) in ((VXS, SO, GO), (VXR, SH, GH)):
                    groups.append((s, (base + (sg & 3), (sg >> 2) * 20480),
                                   lambda B, sg=sg, sm=sm, gr=gr: [mf(sm, q4(ONE), B, sg == 0), mf(gr, B, B, sg == 0)]))
    rd_groups = [k for k, x in enumerate(groups) if x[1]]
    ring = {k: RX[n % len(RX)] for n, k in enumerate(rd_groups)}
    D = 4
    nxt = [0]

    def rd(g):
        if nxt[0] < len(rd_groups):
            k = rd_groups[nxt[0]]
            g(f'ds_read_b128 {q4(ring[k])}, v{groups[k][1][0]} offset:{groups[k][1][1]}')
            nxt[0] += 1
    for _ in range(D):
        rd(a)
    prim = [Asm() for _ in range(16)]
    trs = []
    for s in range(16):
        t_ = Asm()
        if s < 15:
            tr(t_, s + 1)
        trs.append(t_.ins)
    for k, (s, ad, f) in enumerate(groups):
        ms = f(q4(ring[k]) if ad else None)
        for n, m in enumerate(ms):
            prim[s](m)
            if ad and n == 1:
                rd(prim[s])
            elif trs[s]:
                prim[s].ins.append(trs[s].pop(0))

    fin = Asm()
    fin('s_mov_b32 s58, 0xcccccccc')
    fin('s_mov_b32 s59, 0xcccccccc')
    for gr in (GO, GH):
        fin(f'v_cndmask_b32 v{gr}, v{gr}, v{gr+1}, s[28:29]')
        fin(f'v_cndmask_b32 v{gr+2}, v{gr+2}, v{gr+3}, s[28:29]')
        fin(f'v_cndmask_b32 v{gr}, v{gr}, v{gr+2}, s[58:59]')
    fin(f'v_mov_b32 v{SO+1}, v{GO}')
    fin(f'v_mov_b32 v{SH+1}, v{GH}')
    for base in (SO, SH):
        G.stat_finalize(fin, base, base + 1, base + 2, 24)
    fin('s_lshl_b32 s38, s3, 7')
    fin(f'v_add_u32 v{GO}, s38, v{VC}')
    grp(fin, 's_mov_b32 exec_lo, 0x00f0000f', 's_mov_b32 exec_hi, 0xf0000f00',
        f'ds_write_b64 v{GO}, v[{SO}:{SO+1}] offset:128', f'ds_write_b64 v{VC}, v[{SH}:{SH+1}]',
        's_mov_b64 exec, -1', tag='tab')
    cw = Asm()
    grp(cw, 's_mov_b32 exec_lo, 0x00030003', 's_mov_b32 exec_hi, 0x00030003',
        f'ds_write_b128 v{VCW}, {q4(CSA)}', 's_mov_b64 exec, -1', tag='csw')
    cr = Asm()
    for w in range(4):
        cr(f'ds_read_b32 v{CSA+w}, v{VCR} offset:{128 * w}')
    cr(f'v_add_f32 v{CSA}, v{CSA}, v{CSA+1}')
    cr(f'v_add_f32 v{CSA+2}, v{CSA+2}, v{CSA+3}')
    cr(f'v_add_f32 v{CSA}, v{CSA}, v{CSA+2}')
    cr(f'v_cvt_pk_bf16_f32 v{CSA+3}, v{CSA}, v{CSA}')
    cr(f'v_and_b32 v{CSA+1}, 0xffff0000, v{CSA+3}')
    cr(f'v_sub_f32 v{CSA+2}, v{CSA}, v{CSA+1}')
    cr(f'v_and_b32 v{CSA+3}, 0xffff, v{CSA+3}')
    cr(f'v_cvt_pk_bf16_f32 v{CSA+2}, v{CSA+1}, v{CSA+2}')
    g = Asm()
    g('s_cmp_eq_u32 s54, 2')
    g('s_cbranch_scc1 L_cs_gu')
    g(f'buffer_store_dword v{CSA}, v{VCS}, s[8:11], 0 offen sc1', raw=True)
    g('s_branch L_cs_done')
    g('L_cs_gu:')
    g(f'buffer_store_dwordx2 v[{CSA+2}:{CSA+3}], v{VCS}, s[8:11], 0 offen sc1', tag='slab')
    g('L_cs_done:')
    if not cfg.xp & 1:
        cr.group(g)
    zl = Asm()
    grp(zl, 's_mov_b64 exec, 0xffff', f'v_lshlrev_b32 v{VZ+5}, 2, v0',
        f'buffer_load_dword v{VZ}, v{VZ+5}, s[88:91], 0 offen sc1', 's_mov_b64 exec, -1', tag='z')
    sg_ = Asm()
    sg_('s_cmp_lg_u32 s3, 0')
    sg_('s_cbranch_scc1 L_sig0_skip')
    sg_('s_mov_b64 exec, 0xffff')
    spin(sg_, 'zchk', f'buffer_load_dword v{VZ}, v{VZ+5}, s[88:91], 0 offen sc1', f'v_cmp_ne_u32 vcc, 1, v{VZ}')
    sg_('s_mov_b64 exec, 3')
    sg_(f'v_mov_b32 v{VZ}, 1')
    sg_(f'buffer_atomic_add v{VZ}, v{VCA}, s[8:11], 0 offen sc1', raw=True)
    sg_('s_mov_b64 exec, -1')
    sg_('L_sig0_skip:')
    gl = Asm()
    grp(gl, 's_mov_b64 exec, 15', f'buffer_load_dword v{VZ}, v{VG}, s[8:11], 0 offen sc1', 's_mov_b64 exec, -1', tag='g0')

    last_st = max(cfg.sst)
    for s in range(16):
        tags = [f'w{s+1}'] + {3: ['x1'], 6: ['x2'], 8: ['x3']}.get(s, [])
        if s == cfg.ssig:
            tags += ['slab', 'z']
        a.waitvm(*tags)
        a.waitlgkm(f't{s}', 'tab', 'csw')
        a('s_barrier')
        if s == cfg.ssig:
            a.group(sg_)
        sec = Asm()
        late = Asm()
        for u in range(8):
            if cfg.sst[u] == s:
                late.extend(sst(sec, u))
        ld = Asm()
        for k in range(16):
            if cfg.sw[k] == s:
                assert k < 4 or s >= k - 4
                wd_(ld, k)
        for i in range(5):
            if cfg.sx1[i] == s:
                xd(ld, 1, i)
            if cfg.sx2[i] == s:
                xd(ld, 2, i)
            if cfg.sx3[i] == s:
                xd(ld, 3, i)
        for u in range(8):
            if cfg.sld[u] == s:
                sld(ld, u)
        oth = Asm()
        if s == last_st + 1:
            oth.extend(cw)
        if s == last_st + 2:
            oth.extend(cr)
            oth.extend(zl)
        if s == 11:
            oth.extend(fin)
        if s == cfg.tlb2:
            oth('v_min_u32 v222, 12, v0')
            oth('v_lshlrev_b32 v222, 21, v222')
            oth('s_lshl_b32 s38, s2, 7')
            oth(f's_add_u32 s39, s38, {hx(0xA00000)}')
            oth('buffer_load_dword v223, v222, s[8:11], s39 offen')
            oth('buffer_load_dword v222, off, s[12:15], s38')
        nm = sum(1 for i in prim[s].ins if i.kind == 'mfma')
        a.merge(prim[s], cat(mix(sec, ld), mix(oth, late)), 0, nm - 1)
        if s in (3, 7, 11):
            stamp(a, f'p1.0 s{s}')
    fix_m0(a, start0)
    stamp(a, 'p1.0 gemm')
    a(f'v_mov_b32 v{CSV}, v{CSV4}')
    return sg_, gl


def p1(a, l):
    X = X0 if l == 0 else X2
    ST = STA[l]
    VH, VM_, VD, VC, VR = 5, 6, 7, 8, 9
    BI, SELA, SELB = 10, 16, 17
    CSQ, CSK, CSV = 18, 22, 26
    AK = lambda i: 28 + 12 * i - (4 if i else 0)
    AV = lambda i: AK(i) + 4
    AQ = lambda i: AK(i) + 8
    BR = 84
    KP, VP, QP = 100, 110, 118
    SC, CT = 127, 132
    SS, TT, PP = 28, 44, 52
    MM, OO, OS = 142, 146, 154
    NEG = f2u(-1e30)
    outer = a
    a = Asm()
    a('v_and_b32 v3, 15, v0')
    a('v_lshrrev_b32 v4, 4, v0')
    a(f'v_lshlrev_b32 v{VD}, 9, v4')
    a(f'v_lshl_add_u32 v{VD}, v3, 4, v{VD}')
    a(f'v_add_u32 v{VM_}, 65536, v1')
    a(f'v_lshlrev_b32 v{VC}, 3, v3')
    a(f'v_add_u32 v{VC}, {LDS_TAB}, v{VC}')
    a(f'v_lshlrev_b32 v{VR}, 5, v4')
    a(f'v_add_u32 v{VR}, {LDS_TAB}, v{VR}')
    if l == 0:
        a('v_lshrrev_b32 v134, 3, v0')
        a(f'v_lshlrev_b32 v{VWO}, 10, v134')
        a('v_bfe_u32 v134, v0, 4, 1')
        a('v_lshlrev_b32 v134, 2, v134')
        a('v_and_b32 v135, 7, v0')
        a('v_xor_b32 v134, v134, v135')
        a(f'v_lshl_add_u32 v{VWO}, v134, 4, v{VWO}')
    if l:
        a('s_lshl_b32 s30, s17, 6')
        a(f's_add_u32 s30, s30, {hx(CS_QKV)}')
        a('v_lshlrev_b32 v132, 4, v4')
        a('v_lshlrev_b32 v133, 2, v3')
        a(f'buffer_load_dwordx4 v[{CSQ}:{CSQ+3}], v132, s[8:11], s30 offen sc1')
        a(f'buffer_load_dwordx4 v[{CSK}:{CSK+3}], v132, s[8:11], s30 offen offset:2048 sc1')
        a('s_add_u32 s30, s30, 4096')
        a(f'buffer_load_dword v{CSV}, v133, s[8:11], s30 offen sc1')
    a('v_and_b32 v134, 1, v3')
    a('v_lshl_add_u32 v135, v4, 2, v134')
    a('v_add_u32 v136, 2, v135')
    a('v_add_u32 v137, 2, v3')
    a(f'v_mov_b32 v138, {hx(NEG)}')
    a('v_mov_b32 v139, 0')
    a('v_cmp_ge_u32 vcc, v135, v137')
    a(f'v_cndmask_b32 v{BI}, v138, v139, vcc')
    a('v_cmp_ge_u32 vcc, v136, v137')
    a(f'v_cndmask_b32 v{BI+1}, v138, v139, vcc')
    a('v_cmp_le_u32 vcc, v135, v3')
    a(f'v_cndmask_b32 v{BI+2}, v138, v139, vcc')
    a('v_cmp_le_u32 vcc, v136, v3')
    a(f'v_cndmask_b32 v{BI+3}, v138, v139, vcc')
    grp(a, 's_cmp_eq_u32 s16, 0', 's_cselect_b64 s[58:59], -1, 0')
    a(f'v_cndmask_b32 v{BI+4}, v{BI}, v138, s[58:59]')
    a(f'v_cndmask_b32 v{BI+5}, v{BI+1}, v138, s[58:59]')
    a('v_mov_b32 v135, 0x0c0c0100')
    a('v_mov_b32 v136, 0x01000c0c')
    a(f'v_cndmask_b32 v{SELA}, v135, v136, s[28:29]')
    a('v_mov_b32 v135, 0x0c0c0302')
    a('v_mov_b32 v136, 0x03020c0c')
    a(f'v_cndmask_b32 v{SELB}, v135, v136, s[28:29]')
    consts = a
    a = outer
    S0 = 142
    if l:
        a.extend(consts)
        a('v_lshlrev_b32 v140, 10, v4')
        a('v_lshl_add_u32 v140, v3, 3, v140')
        a('s_lshl_b32 s30, s16, 16')
        a('s_sub_u32 s31, s30, 32512')
        a('s_cmp_eq_u32 s16, 0')
        a('s_cselect_b32 s31, 0, s31')
        a('s_lshl_b32 s32, s3, 13')
        a('s_add_u32 s31, s31, s32')
        a(f's_add_u32 s31, s31, {hx(X)}')
        a('s_add_u32 s30, s30, s32')
        a(f's_add_u32 s30, s30, {hx(X)}')
        a('s_lshl_b32 s33, s16, 13')
        a('s_sub_u32 s34, s33, 3968')
        a('s_cmp_eq_u32 s16, 0')
        a('s_cselect_b32 s34, 0, s34')
        a(f's_add_u32 s34, s34, {hx(ST)}')
        a('s_lshr_b32 s35, s3, 1')
        a('s_lshl_b32 s35, s35, 12')
        a('s_and_b32 s36, s3, 1')
        a('s_lshl_b32 s36, s36, 7')
        a('s_add_u32 s33, s33, s35')
        a('s_add_u32 s33, s33, s36')
        a(f's_add_u32 s33, s33, {hx(ST)}')
        a('s_lshl_b32 s35, s3, 12')
        sc = ' sc1'
        a('s_sub_u32 s36, s16, 1')
        a('s_max_i32 s36, s36, 0')
        a('s_lshl_b32 s36, s36, 8')
        a(f's_add_u32 s36, s36, {hx(F4())}')
        a('s_cmp_eq_u32 s16, 0')
        a('s_cselect_b32 s37, 0, 256')
        a('v_mul_u32_u24 v141, s37, v0')
        stamp(a, f'p1.{l} prepoll')
        poll_wg(a, 's36', 3, 'v141', 8, second='s37')
        stamp(a, f'p1.{l} start')

        def xdma(d, i):
            d(f's_add_u32 s37, s35, {16384 * i}')
            d('s_mov_b32 m0, s37')
            for j in range(4):
                if i == 0:
                    so = 's31'
                else:
                    so = 's39'
                    d(f's_add_u32 s39, s30, {((i - 1) >> 1) * 32768 + ((i - 1) & 1) * 256 + 1024 * j}')
                d(f'buffer_load_dwordx4 v{VD}, s[8:11], {so} offen offset:{1024*j}{sc} lds', tag=f'x{i}')
                if i == 0 and j < 3:
                    d('s_add_u32 s31, s31, 1024')
        d = Asm()
        xdma(d, 0)
        xdma(d, 1)
        for j in range(4):
            d(f'buffer_load_dwordx2 v[{S0+2*j}:{S0+1+2*j}], v140, s[8:11], s33 offen offset:{256*j}{sc}')
        for j in range(4):
            d(f'buffer_load_dwordx2 v[{S0+8+2*j}:{S0+9+2*j}], v140, s[8:11], s34 offen offset:{256*j}{sc}')
        for i in range(2, 5):
            xdma(d, i)
        st = Asm()
        for base in (S0, S0 + 8):
            for j in range(1, 4):
                st(f'v_add_f32 v{base}, v{base}, v{base+2*j}')
                st(f'v_add_f32 v{base+1}, v{base+1}, v{base+2*j+1}')
        for step in range(7):
            for base in (S0, S0 + 8):
                st([f'v_permlane16_swap_b32 v{base}, v{base+1}', f'v_add_f32 v{base}, v{base}, v{base+1}',
                    f'v_mov_b32 v{base+1}, v{base}', f'v_permlane32_swap_b32 v{base}, v{base+1}',
                    f'v_add_f32 v{base}, v{base}, v{base+1}', f'v_mov_b32 v{base+1}, v{base}',
                    f'v_permlane16_swap_b32 v{base}, v{base+1}'][step])
        for base in (S0, S0 + 8):
            G.stat_finalize(st, base, base + 1, base + 2, 24)
        st('s_lshl_b32 s38, s3, 7')
        st(f'v_add_u32 v{S0+4}, s38, v{VC}')
        st(f'ds_write_b64 v{S0+4}, v[{S0}:{S0+1}] offset:128', tag='tab')
        st(f'ds_write_b64 v{VC}, v[{S0+8}:{S0+9}]', tag='tab')

    def gemm(seq, pre):
        g = Asm()
        D = 3

        def rd(idx):
            if idx in pre:
                g.extend(pre[idx])
            i, s = seq[idx]
            dst = BR + 4 * (idx & 3)
            off = i * 16384 + s * 1024
            g(f'ds_read_b128 v[{dst}:{dst+3}], v{1 if off < 65536 else VM_} offset:{off & 65535}')
        for idx in range(D):
            rd(idx)
        for idx, (i, s) in enumerate(seq):
            b = BR + 4 * (idx & 3)
            B = f'v[{b}:{b+3}]'
            acc = lambda r: f'v[{r}:{r+3}]'
            c = lambda r: acc(r) if s else '0'
            g(f'v_mfma_f32_16x16x32_bf16 {acc(AK(i))}, {wq_loc(3*s+1)}, {B}, {c(AK(i))}')
            last_b = idx + D < len(seq)
            if i == 0:
                g(f'v_mfma_f32_16x16x32_bf16 {acc(AV(i))}, {B}, {wq_loc(3*s+2)}, {c(AV(i))}')
                if last_b:
                    rd(idx + D)
            else:
                g(f'v_mfma_f32_16x16x32_bf16 {acc(AV(i))}, {B}, {wq_loc(3*s+2)}, {c(AV(i))}')
                if last_b:
                    rd(idx + D)
                g(f'v_mfma_f32_16x16x32_bf16 {acc(AQ(i))}, {wq_loc(3*s)}, {B}, {c(AQ(i))}')
        return g

    def epi(i):
        e = Asm()
        e(f'ds_read_b64 v[{CT}:{CT+1}], v{VC} offset:{128*i}')
        e(f'ds_read_b128 v[{CT+2}:{CT+5}], v{VR} offset:{128*i}')
        e(f'ds_read_b128 v[{CT+6}:{CT+9}], v{VR} offset:{128*i+16}')
        for v in range(4):
            e(f'v_fmac_f32 v{AK(i)+v}, v{CT+1}, v{CSK+v}')
        if i:
            for v in range(4):
                e(f'v_fmac_f32 v{AQ(i)+v}, v{CT+1}, v{CSQ+v}')
        for v in range(4):
            e(f'v_mul_f32 v{AK(i)+v}, v{CT}, v{AK(i)+v}')
        if i:
            e(f'v_mul_f32 v{SC+i}, s26, v{CT}')
            for dd in range(2):
                e(f'v_cvt_pk_bf16_f32 v{QP+2*i+dd}, v{AQ(i)+2*dd}, v{AQ(i)+2*dd+1}')
        for dd in range(2):
            e(f'v_cvt_pk_bf16_f32 v{KP+2*i+dd}, v{AK(i)+2*dd}, v{AK(i)+2*dd+1}')
        for v in range(4):
            e(f'v_fmac_f32 v{AV(i)+v}, v{CT+2+2*v+1}, v{CSV}')
        for v in range(4):
            e(f'v_mul_f32 v{AV(i)+v}, v{CT+2+2*v}, v{AV(i)+v}')
        for dd in range(2):
            e(f'v_cvt_pk_bf16_f32 v{VP+2*i+dd}, v{AV(i)+2*dd}, v{AV(i)+2*dd+1}')
        return e

    def attn(pr):
        e = Asm()
        tl = (1 + 2 * pr, 2 + 2 * pr)
        for u, i in enumerate(tl):
            e(f'v_mfma_f32_16x16x16_bf16 v[{SS+8*u}:{SS+8*u+3}], v[{KP+2*i-2}:{KP+2*i-1}], v[{QP+2*i}:{QP+2*i+1}], 0')
            e(f'v_mfma_f32_16x16x16_bf16 v[{SS+8*u+4}:{SS+8*u+7}], v[{KP+2*i}:{KP+2*i+1}], v[{QP+2*i}:{QP+2*i+1}], 0')
        if pr == 0:
            e('s_lshl_b32 s38, s16, 16')
            e('s_lshl_b32 s39, s17, 10')
            e('s_add_u32 s38, s38, s39')
            e(f's_add_u32 s38, s38, {hx(O_[l])}')
        else:
            e('s_add_u32 s38, s38, 32768')
        for u, i in enumerate(tl):
            for c in range(4):
                r = SS + 8 * u + 2 * c
                e(f'v_cndmask_b32 v{TT+4*u+c}, v{r}, v{r+1}, s[28:29]')
        for u, i in enumerate(tl):
            for c in range(4):
                bias = BI + c if not (i == 1 and c < 2) else BI + 4 + c
                e(f'v_fma_f32 v{TT+4*u+c}, v{TT+4*u+c}, v{SC+i}, v{bias}')
        for u in range(2):
            e(f'v_max3_f32 v{MM+u}, v{TT+4*u}, v{TT+4*u+1}, v{TT+4*u+2}')
        for u in range(2):
            e(f'v_max_f32 v{MM+u}, v{MM+u}, v{TT+4*u+3}')
        e(f'v_permlane16_swap_b32 v{MM}, v{MM+1}')
        e(f'v_max_f32 v{MM}, v{MM}, v{MM+1}')
        e(f'v_mov_b32 v{MM+1}, v{MM}')
        e(f'v_permlane32_swap_b32 v{MM}, v{MM+1}')
        e(f'v_max_f32 v{MM}, v{MM}, v{MM+1}')
        e(f'v_mov_b32 v{MM+1}, v{MM}')
        e(f'v_permlane16_swap_b32 v{MM}, v{MM+1}')
        for u in range(2):
            for c in range(4):
                e(f'v_sub_f32 v{TT+4*u+c}, v{TT+4*u+c}, v{MM+u}')
        for u in range(2):
            for c in range(4):
                e(f'v_exp_f32 v{TT+4*u+c}, v{TT+4*u+c}')
        for u, i in enumerate(tl):
            e(f'v_cvt_pk_bf16_f32 v{SS+8*u}, v{TT+4*u}, v{TT+4*u+1}')
            e(f'v_cvt_pk_bf16_f32 v{SS+8*u+1}, v{TT+4*u+2}, v{TT+4*u+3}')
            e(f'v_perm_b32 v{PP+4*u}, v{SS+8*u}, v{SS+8*u}, v{SELA}')
            e(f'v_perm_b32 v{PP+4*u+1}, v{SS+8*u}, v{SS+8*u}, v{SELB}')
            e(f'v_perm_b32 v{PP+4*u+2}, v{SS+8*u+1}, v{SS+8*u+1}, v{SELA}')
            e(f'v_perm_b32 v{PP+4*u+3}, v{SS+8*u+1}, v{SS+8*u+1}, v{SELB}')
            e(f'v_add_f32 v{MM+2+u}, v{TT+4*u}, v{TT+4*u+1}')
            e(f'v_add_f32 v{TT+4*u+2}, v{TT+4*u+2}, v{TT+4*u+3}')
            e(f'v_mfma_f32_16x16x32_bf16 v[{OO+4*u}:{OO+4*u+3}], v[{VP+2*i-2}:{VP+2*i+1}], v[{PP+4*u}:{PP+4*u+3}], 0')
            e(f'v_add_f32 v{MM+2+u}, v{MM+2+u}, v{TT+4*u+2}')
        S0_, S1_ = MM + 2, MM + 3
        e(f'v_permlane16_swap_b32 v{S0_}, v{S1_}')
        e(f'v_add_f32 v{S0_}, v{S0_}, v{S1_}')
        e(f'v_mov_b32 v{S1_}, v{S0_}')
        e(f'v_permlane32_swap_b32 v{S0_}, v{S1_}')
        e(f'v_add_f32 v{S0_}, v{S0_}, v{S1_}')
        e(f'v_rcp_f32 v{S0_}, v{S0_}')
        e(f'v_mov_b32 v{S1_}, v{S0_}')
        e(f'v_permlane16_swap_b32 v{S0_}, v{S1_}')
        for u in range(2):
            for v in range(4):
                e(f'v_mul_f32 v{OO+4*u+v}, v{OO+4*u+v}, v{S0_+u}')
        for u in range(2):
            for dd in range(2):
                e(f'v_cvt_pk_bf16_f32 v{OS+2*u+dd}, v{OO+4*u+2*dd}, v{OO+4*u+2*dd+1}')
        e(f'v_permlane16_swap_b32 v{OS}, v{OS+2}')
        e(f'v_permlane16_swap_b32 v{OS+1}, v{OS+3}')
        e(f'buffer_store_dwordx4 v[{OS}:{OS+3}], v1, s[8:11], s38 offen sc1', tag='ost')
        return e

    def bar(*tags, lg=()):
        b = Asm()
        b.waitvm(*tags)
        if lg:
            b.waitlgkm(*lg)
        b('s_barrier')
        return b

    pf = cat(st_wo_f(), st_wgu((0, 1)))
    if l == 0:
        sg_, gl = front0(a, consts, AK, AV, AQ, CSQ, CSK, CSV, VC)
        tail = cat(epi(0), epi(1), epi(2), attn(0), epi(3), epi(4), attn(1))
        a('s_waitcnt lgkmcnt(0)')
        if cfg.ssig == 16:
            a.waitvm('slab', 'z')
        a('s_barrier')
        if cfg.ssig == 16:
            a.group(sg_)
        pf1, rest = st_wo().ins, []
    else:
        d1, d2 = vm_split(d, 14)
        a.extend(d1)
        seq = [(i, s) for i in range(5) for s in range(16)]
        g = gemm(seq, {0: bar('x0'), 16: bar('x1'), 32: bar('x2', lg=('tab',)), 48: bar('x3'), 64: bar('x4')})
        parts = split_mfma(g.ins, (32, 80, 128, 176))
        d2a, d2b = vm_split(d2, 6)
        a.merge(parts[0], d2a, 0, 24)
        stamp(a, 'p1.1 st0')
        a.merge(parts[1], mix(d2b, st), 0, 36)
        stamp(a, 'p1.1 st1')
        a.merge(parts[2], cat(epi(0), epi(1)), 0, 48)
        stamp(a, 'p1.1 st2')
        at = attn(0).ins
        na = len(at) // 3
        a.merge(parts[3], cat(epi(2), at[:na]), 3, 48)
        stamp(a, 'p1.1 st3')
        a.merge(parts[4], cat(at[na:], epi(3)), 0, 48)
        stamp(a, 'p1.1 gemm')
        a('s_waitcnt lgkmcnt(0)')
        a('s_barrier')
        tail = cat(epi(4), attn(1))
        pf1, rest = vm_split(pf, 9)
    a.extend(mix(tail[:-6], pf1))
    a.extend(tail[-6:])
    stamp(a, f'p1.{l} stored')
    r1, r2 = vm_split(rest, 8)
    a.extend(r1)
    if l == 0:
        wt = wo_tr(28).ins
        k = len(wt) - cfg.wtlate
        a.extend(wt[:k])
        a.extend(gl)
    a('s_lshl_b32 s30, s16, 8')
    a(f's_add_u32 s30, s30, {hx(F1(l))}')
    a('v_mov_b32 v3, 1')
    a.waitvm('ost')
    a('s_barrier')
    signal(a, 's30', 3)
    stamp(a, f'p1.{l} signalled')
    if l == 0:
        a.extend(wt[k:])
        a.extend(g0_check())
        a('s_barrier')
        stamp(a, 'p1.0 g0')
        r2 = cat(st_wgu((0, 1)), st_wd(range(8, 8 + cfg.wdearly)))
    return r2


def p2(a, l, r2):
    X = X0 if l == 0 else X2
    VD = 7
    BF, RS, AC, AR, PK = 28, 92, 100, 116, 148
    a(f'v_add_u32 v8, {LDS_WO}, v1')
    a('s_lshr_b32 s30, s3, 1')
    a('s_lshl_b32 s31, s18, 1')
    a('s_add_u32 s30, s30, s31')
    a('s_lshl_b32 s30, s30, 15')
    a('s_and_b32 s31, s3, 1')
    a('s_lshl_b32 s31, s31, 8')
    a('s_add_u32 s30, s30, s31')
    a(f's_add_u32 s31, s30, {hx(O_[l])}')
    a('s_lshl_b32 s32, s19, 12')
    a('s_add_u32 s30, s30, s32')
    a(f's_add_u32 s32, s30, {hx(X)}')
    a(f's_add_u32 s33, s30, {hx(X1_[l])}')
    a('s_lshl_b32 s34, s18, 8')
    a(f's_add_u32 s35, s34, {hx(F2(l))}')
    a(f's_add_u32 s34, s34, {hx(F1(l))}')
    a('s_lshl_b32 s36, s18, 2')
    a('s_add_u32 s36, s36, s3')
    a('s_lshl_b32 s36, s36, 10')
    a('s_lshl_b32 s37, s19, 7')
    a('s_add_u32 s36, s36, s37')
    a(f's_add_u32 s36, s36, {hx(STB[l])}')
    a('v_bfe_u32 v9, v0, 4, 1')
    a('v_lshlrev_b32 v9, 2, v9')
    a('v_and_b32 v10, 15, v0')
    a('v_lshl_add_u32 v9, v10, 3, v9')
    if l == 0:
        a('v_lshlrev_b32 v10, 10, v10')
        a('v_lshrrev_b32 v11, 4, v0')
        a('v_lshl_add_u32 v10, v11, 4, v10')
        a('s_lshl_b32 s32, s18, 2')
        a('s_add_u32 s32, s32, s3')
        a('s_lshl_b32 s32, s32, 14')
        a('s_lshl_b32 s37, s19, 7')
        a('s_add_u32 s32, s32, s37')
        a(f'buffer_load_dwordx4 v[{RS}:{RS+3}], v10, s[60:63], s32 offen')
        a(f'buffer_load_dwordx4 v[{RS+4}:{RS+7}], v10, s[60:63], s32 offen offset:64')
    a.extend(r2)
    a.waitvm('wo')
    a('s_waitcnt lgkmcnt(0)')
    stamp(a, f'p2.{l} prepoll')
    poll_wg(a, 's34', 1, 'off', 8)
    stamp(a, f'p2.{l} start')
    sc = ' sc1'
    ld = Asm()
    for s in range(16):
        ld(f'buffer_load_dwordx4 v[{BF+4*s}:{BF+4*s+3}], v{VD}, s[8:11], s31 offen offset:{2048*(s&1)}{sc}')
        if s & 1 and s < 15:
            ld('s_add_u32 s31, s31, 4096')
    if l:
        ld(f'buffer_load_dwordx4 v[{RS}:{RS+3}], v{VD}, s[8:11], s32 offen{sc}')
        ld(f'buffer_load_dwordx4 v[{RS+4}:{RS+7}], v{VD}, s[8:11], s32 offen offset:2048{sc}')
    l1, l2 = vm_split(ld, 10)
    a.extend(l1)
    g = Asm()

    def rd(idx):
        dd = AR + 4 * (idx & 7)
        g(f'ds_read_b128 v[{dd}:{dd+3}], v8 offset:{idx*1024}', tag=f'r{idx}')
    for idx in range(6):
        rd(idx)
    for idx in range(64):
        s, t = idx >> 2, idx & 3
        dd = AR + 4 * (idx & 7)
        c = f'v[{AC+4*t}:{AC+4*t+3}]'
        if idx & 1 == 0:
            g.waitlgkm(f'r{idx+1}')
        g(f'v_mfma_f32_16x16x32_bf16 {c}, v[{dd}:{dd+3}], v[{BF+4*s}:{BF+4*s+3}], {c if s else 0}')
        if idx + 6 < 64:
            rd(idx + 6)
    a.merge(g, l2, 0, 24)
    stamp(a, f'p2.{l} gemm')
    for p in range(2):
        for dd in range(4):
            r = AC + 8 * p + 2 * dd
            G.unpack_add(a, r, r + 1, RS + 4 * p + dd, 156)
            a(f'v_cvt_pk_bf16_f32 v{PK+4*p+dd}, v{r}, v{r+1}')
        a(f'buffer_store_dwordx4 v[{PK+4*p}:{PK+4*p+3}], v{VD}, s[8:11], s33 offen offset:{2048*p} sc1', tag='xst')
    a('v_mov_b32 v156, 0')
    a('v_mov_b32 v157, 0')
    for dd in range(8):
        a(f'v_dot2_f32_bf16 v156, v{PK+dd}, s25, v156')
    for dd in range(8):
        a(f'v_dot2_f32_bf16 v157, v{PK+dd}, v{PK+dd}, v157')
    a('v_permlane16_swap_b32 v156, v157')
    a('v_add_f32 v156, v156, v157')
    a('v_mov_b32 v157, v156')
    a('v_permlane32_swap_b32 v156, v157')
    a('v_add_f32 v156, v156, v157')
    a('buffer_store_dword v156, v9, s[8:11], s36 offen sc1', tag='xst')
    stamp(a, f'p2.{l} stored')
    a('s_barrier')
    w1, w2 = vm_split(st_wgu((2, 3, 4)), 8)
    a.extend(w1)
    a('v_mov_b32 v3, 1')
    a.waitvm('xst')
    a('s_barrier')
    signal(a, 's35', 3)
    stamp(a, f'p2.{l} signalled')
    a.extend(w2)


def p34(a, l):
    XF = 128
    ACC = [16, 32, 48]
    AR = 80
    TM = 112
    HP = 120
    C0, C1, IA2 = 12, 13, 14
    a('v_and_b32 v4, 31, v0')
    a('v_lshrrev_b32 v5, 5, v0')
    a('v_lshrrev_b32 v6, 4, v4')
    a('v_lshlrev_b32 v6, 10, v6')
    a('v_lshl_add_u32 v6, v5, 9, v6')
    a('v_and_b32 v7, 15, v4')
    a('v_lshl_add_u32 v6, v7, 3, v6')
    a('v_add_u32 v8, 65536, v1')
    a('v_add_u32 v9, 0x20000, v1')
    a('v_lshlrev_b32 v10, 8, v0')
    a('s_lshl_b32 s30, s20, 2')
    a('s_add_u32 s30, s30, s3')
    a('s_lshl_b32 s31, s30, 15')
    a(f's_add_u32 s31, s31, {hx(X1_[l])}')
    a('s_lshl_b32 s32, s30, 11')
    a(f's_add_u32 s32, s32, {hx(STB[l])}')
    a('s_mul_i32 s33, s30, 114688')
    a('s_mul_i32 s34, s21, 7168')
    a('s_add_u32 s33, s33, s34')
    a(f's_add_u32 s33, s33, {hx(H_[l])}')
    a('s_lshl_b32 s34, s20, 9')
    a(f's_add_u32 s34, s34, {hx(F2(l))}')
    a('s_lshl_b32 s35, s20, 3')
    a('s_lshr_b32 s36, s3, 1')
    a('s_lshl_b32 s36, s36, 2')
    a('s_add_u32 s35, s35, s36')
    a('s_lshr_b32 s36, s21, 2')
    a('s_add_u32 s35, s35, s36')
    a('s_lshl_b32 s35, s35, 8')
    a('s_lshl_b32 s36, s22, 2')
    a('s_add_u32 s36, s36, s3')
    a('s_lshl_b32 s36, s36, 8')
    a.waitvm('wg0', 'wg1')
    stamp(a, f'p3.{l} prepoll')
    poll_wg(a, 's34', 3, 'v10', 8, second='256')
    stamp(a, f'p3.{l} start')
    ld = Asm()
    for j in range(4):
        ld(f'buffer_load_dwordx2 v[{TM+2*j}:{TM+1+2*j}], v6, s[8:11], s32 offen offset:{128*j} sc1')
    for s in range(32):
        ld(f'buffer_load_dwordx4 v[{XF+4*s}:{XF+4*s+3}], v1, s[8:11], s31 offen offset:{1024*(s&3)} sc1')
        if (s & 3) == 3 and s < 31:
            ld('s_add_u32 s31, s31, 4096')
    l1, l2 = vm_split(ld, 13)
    a.extend(l1)
    stt = Asm()
    for j in range(1, 4):
        stt(f'v_add_f32 v{TM}, v{TM}, v{TM+2*j}')
        stt(f'v_add_f32 v{TM+1}, v{TM+1}, v{TM+1+2*j}')
    stt(f'v_permlane32_swap_b32 v{TM}, v{TM+1}')
    stt(f'v_add_f32 v{TM}, v{TM}, v{TM+1}')
    stt(f'v_mov_b32 v{TM+1}, v{TM}')
    stt(f'v_permlane32_swap_b32 v{TM}, v{TM+1}')
    G.stat_finalize(stt, TM, TM + 1, TM + 2, 24)
    k0 = -2.0 * math.sqrt(2.0 / math.pi) * math.log2(math.e)
    k1 = k0 * 0.044715
    stt(f'v_cvt_pk_bf16_f32 v{TM+4}, v{TM+1}, v{TM+1}')
    stt(f'v_mul_f32 v{TM+2}, v{TM}, v{TM}')
    stt(f'v_and_b32 v{TM+5}, 0xffff0000, v{TM+4}')
    stt(f'v_mul_f32 v{C0}, {hx(f2u(k0))}, v{TM}')
    stt(f'v_sub_f32 v{TM+1}, v{TM+1}, v{TM+5}')
    stt(f'v_mul_f32 v{TM+3}, v{TM+2}, v{TM}')
    stt(f'v_mov_b32 v{MBZ}, 0')
    stt(f'v_cvt_pk_bf16_f32 v{TM+5}, v{TM+1}, v{MBZ}')
    stt(f'v_mul_f32 v{C1}, {hx(f2u(k1))}, v{TM+3}')
    stt(f'v_rcp_f32 v{IA2}, v{TM+2}')
    for r in (1, 4, 5, 8, 9):
        stt(f'v_mov_b32 v{MBZ+r}, 0')
    stt('v_cmp_gt_u32 vcc, 32, v0')
    for dd in range(2):
        stt(f'v_cndmask_b32 v{MBZ+2+dd}, v{MBZ}, v{TM+4+dd}, vcc')
        stt(f'v_cndmask_b32 v{MBZ+6+dd}, v{TM+4+dd}, v{MBZ}, vcc')
        stt(f'v_cndmask_b32 v{CF[1]+2+dd}, v{MBZ}, v{CF[1]+2+dd}, vcc')

    seq = [(T, s) for s in range(32) for T in range(2)] + [(T, 32) for T in range(2)]
    for T in range(2, 7):
        seq += [(T, s) for s in range(33)]
    rseq = [x for x in seq if x[1] < 32]
    g = Asm()
    D = 6
    rpos = {x: k for k, x in enumerate(rseq)}

    def rd(k):
        T, s = rseq[k]
        if (T, s) == (2, 0):
            g.waitvm('wg2', 'wg3', 'wg4')
            g('s_barrier')
        if (T, s) == (5, 0):
            g.waitvm('wg5', 'wg6')
            g('s_barrier')
        dd = AR + 4 * (k & 7)
        off = slot(T) + s * 1024
        base = 'v1' if off < 65536 else ('v8' if off < 131072 else 'v9')
        g(f'ds_read_b128 v[{dd}:{dd+3}], {base} offset:{off & 65535}', tag=f'r{k}')
    for k in range(D):
        rd(k)
    accof = {T: T % 3 for T in range(7)}
    for (T, s) in seq:
        ac = ACC[accof[T]]
        c = f'v[{ac}:{ac+15}]'
        if s == 32:
            mb = MBZ + 4 * ((T >> 1) & 1) + (0 if T & 1 else 2)
            g(f'v_mfma_f32_32x32x16_bf16 {c}, v[{CF[T>>2]}:{CF[T>>2]+3}], v[{mb}:{mb+3}], {c}')
            continue
        k = rpos[(T, s)]
        dd = AR + 4 * (k & 7)
        if k & 1 == 0 and k + 1 < len(rseq):
            g.waitlgkm(f'r{k+1}')
        g(f'v_mfma_f32_32x32x16_bf16 {c}, v[{dd}:{dd+3}], v[{XF+4*s}:{XF+4*s+3}], {c if s else 0}')
        if k + D < len(rseq):
            rd(k + D)

    def epi(T):
        e = Asm()
        ac = ACC[accof[T]]
        steps = [lambda x: f'v_mul_f32 v{TM+x}, v{ac+x}, v{ac+x}',
                 lambda x: f'v_fma_f32 v{TM+x}, v{TM+x}, v{C1}, v{C0}',
                 lambda x: f'v_mul_f32 v{TM+x}, v{TM+x}, v{ac+x}',
                 lambda x: f'v_exp_f32 v{TM+x}, v{TM+x}',
                 lambda x: f'v_mul_f32 v{ac+x}, v{ac+x}, v{ac+8+x}',
                 lambda x: f'v_fma_f32 v{TM+x}, v{TM+x}, v{IA2}, v{IA2}',
                 lambda x: f'v_rcp_f32 v{TM+x}, v{TM+x}',
                 lambda x: f'v_mul_f32 v{ac+x}, v{ac+x}, v{TM+x}']
        ev = sorted(((8 * x + [0, 1, 2, 3, 4, 13, 15, 25][k], x, k) for x in range(8) for k in range(8)))
        for _, x, k in ev:
            e(steps[k](x))
            if k == 7 and x & 1:
                e(f'v_cvt_pk_bf16_f32 v{HP+(x>>1)}, v{ac+x-1}, v{ac+x}')
        if T == 4:
            e('s_add_u32 s33, s33, 4096')
        e(f'buffer_store_dwordx4 v[{HP}:{HP+3}], v1, s[8:11], s33 offen offset:{1024*(T&3)} sc1', tag=f'h{T}')
        return e

    def sig(st):
        e = Asm()
        e(f's_add_u32 s38, s35, {hx(F3(l, st))}')
        e('v_mov_b32 v3, 1')
        e.waitvm(*[f'h{T}' for T in cfg.stages[st]])
        signal(e, 's38', 3, wave0_only=False)
        return e

    parts = split_mfma(g.ins, (66, 99, 132, 165, 198))
    a.merge(parts[0], cat(l2, st_csf(), stt), 0, 60)
    stamp(a, f'p3.{l} T01')
    a('s_barrier')
    epis = [epi(T) for T in range(7)]
    es = cat(*epis[:6])
    ne = len(es)
    cut = [ne * k // 5 for k in range(6)]
    ep = [es[cut[k]:cut[k + 1]] for k in range(5)]
    sig_at = {}
    wd_list = st_wd(range(8) if l else list(range(8)) + list(range(8 + cfg.wdearly, 28))).ins
    nwd = len(wd_list)
    extra = [cat(st_wgu((5, 6))), wd_list[:nwd // 2], wd_list[nwd // 2:], []]
    if l == 0:
        extra = [cat(st_wgu((5, 6))), wd_list[:nwd // 3], wd_list[nwd // 3:2 * nwd // 3],
                 wd_list[2 * nwd // 3:]]
    def with_sig(lst, st, frac):
        k = int(len(lst) * frac)
        return lst[:k] + sig(st).ins + lst[k:]
    nst = len(cfg.stages)
    last_tile = [max(x) for x in cfg.stages]
    for k in range(4):
        lst = ep[k]
        for st in range(nst):
            pos = (last_tile[st] + 1) / 1.2 + 0.72
            if k <= pos < k + 1:
                lst = with_sig(lst, st, pos - k)
                sig_at[st] = k
        a.merge(parts[1 + k], mix(lst, extra[k]), 1 if k == 0 else 0, 33, cap=24)
        stamp(a, f'p3.{l} T{k+2}')

    BR, NB = 128, (cfg.NB if l == 1 else 16)
    ko = p4_korder()
    pseq = [(t, s) for st in range(len(ko) - 2) for t in (1, 0) for s in ko[st]]
    if len(ko[-1]) <= 4:
        pseq += [(t, s) for t in (1, 0) for st in (-2, -1) for s in ko[st]]
    else:
        pseq += [(t, s) for st in (-2, -1) for t in (1, 0) for s in ko[st]]
    stage_of = {s: st for st in range(len(ko)) for s in ko[st]}
    su = Asm()
    su('s_lshl_b32 s39, s22, 1')
    su('s_lshr_b32 s52, s3, 1')
    su('s_add_u32 s39, s39, s52')
    su('s_xor_b32 s52, s39, 1')
    su('s_mul_i32 s53, s3, 28672')
    su(f's_add_u32 s53, s53, {hx(H_[l])}')
    su('s_mul_i32 s54, s39, 114688')
    su('s_mul_i32 s55, s52, 114688')
    su('s_add_u32 s54, s54, s53')
    su('s_add_u32 s55, s55, s53')
    su(f's_add_u32 s56, s36, {hx(F3(l, 0))}')
    seen = set()

    def ldB(e, idx):
        t, s = pseq[idx]
        st = stage_of[s]
        if st not in seen:
            seen.add(st)
            if cfg.spoll and st > 0:
                e(f's_add_u32 s56, s36, {hx(F3(l, st))}')
            poll_check(e, 11, 's56', 8, scalar=(65 + st) if (cfg.spoll and st > 0) else False)
        dd = BR + 4 * (idx % NB)
        e(f's_add_u32 s53, s{55 if t else 54}, {s*1024}')
        e(f'buffer_load_dwordx4 v[{dd}:{dd+3}], v1, s[8:11], s53 offen sc1')
    PF = cfg.PF if l == 1 else 14
    lst = ep[4]
    for st in range(nst):
        pos = (last_tile[st] + 1) / 1.2 + 0.72
        if 4 <= pos < 5:
            lst = with_sig(lst, st, pos - 4)
            sig_at[st] = 4
    h1, h2 = lst[:len(lst) // 2], lst[len(lst) // 2:]
    s4a = Asm()
    s4a.extend(su)
    poll_issue(s4a, 11, 's56')
    p4a, p4b = split_mfma(parts[5], (16,))
    a.merge(p4a, mix(h1, s4a), 0, 16, cap=24)
    first = Asm()
    polled = set([0])

    def maybe_poll(e, j):
        if j < 56:
            st = stage_of[pseq[j][1]]
            if st not in polled:
                polled.add(st)
                e(f's_add_u32 s56, s36, {hx(F3(l, st))}')
                poll_issue(e, 11, 's56', scalar=(65 + st) if cfg.spoll else False)
    for idx in range(14):
        ldB(first, idx)
        maybe_poll(first, idx + cfg.PD)
    a.merge(p4b, mix(h2, first), 0, 17, cap=24)
    stamp(a, f'p3.{l} T6')
    second = Asm()
    for idx in range(14, PF):
        ldB(second, idx)
        maybe_poll(second, idx + cfg.PD)
    a.extend(mix(epis[6], second))
    stamp(a, f'p4.{l} start')
    ACC4 = [32, 48, 64, 80]
    RS, PK = 96, 104
    a('v_lshlrev_b32 v6, 10, v5')
    a('v_lshl_add_u32 v6, v4, 4, v6')
    for u in range(1, 4):
        a(f's_xor_b32 s30, s3, {u}')
        a('s_mul_i32 s30, s30, 12288')
        a(f's_add_u32 s30, s30, {65536 + (u-1)*4096}')
        a(f'v_add_u32 v{6+u}, s30, v1')
    a('s_mul_i32 s30, s3, 12288')
    a('s_add_u32 s30, s30, 65536')
    a('v_add_u32 v10, s30, v1')
    a('s_lshl_b32 s30, s23, 1')
    a('s_and_b32 s31, s3, 1')
    a('s_add_u32 s30, s30, s31')
    a('s_lshl_b32 s31, s39, 15')
    a('s_lshl_b32 s32, s30, 11')
    a('s_add_u32 s31, s31, s32')
    a(f's_add_u32 s32, s31, {hx(X1_[l])}')

    def spill(e, u):
        for i in range(4):
            r = ACC4[u] + 4 * i
            e(f'ds_write_b128 v{6+u}, v[{r}:{r+3}] offset:{1024*i}', tag='sp')
    last1 = max(k for k, (t, s) in enumerate(pseq) if t == 1)
    started = set()
    wq_early = st_wqkv(range(24)).ins if l == 0 else []
    wq_vm = [k for k, i in enumerate(wq_early) if i.kind == 'vmem']
    wk = 0
    for idx, (t, s) in enumerate(pseq):
        dd = BR + 4 * (idx % NB)
        for f in (1, 0):
            u = 2 * t + f
            c = f'v[{ACC4[u]}:{ACC4[u]+15}]'
            a(f'v_mfma_f32_32x32x16_bf16 {c}, {wd_loc(s, f)}, v[{dd}:{dd+3}], {c if u in started else 0}')
            started.add(u)
            if f == 1:
                if idx + PF < 56:
                    ldB(a, idx + PF)
                    maybe_poll(a, idx + PF + cfg.PD)
                for st in range(nst):
                    if st not in sig_at and idx == (cfg.s5 if last_tile[st] == 5 else cfg.s6):
                        a.extend(sig(st))
                if idx == 20:
                    a(f'buffer_load_dwordx4 v[{RS}:{RS+3}], v6, s[8:11], s32 offen sc1')
                    a(f'buffer_load_dwordx4 v[{RS+4}:{RS+7}], v6, s[8:11], s32 offen offset:512 sc1')
            else:
                if l == 1 and idx in (9, 23, 39):
                    stamp(a, f'p4.1 idx{idx}')
                if idx == last1 + 2:
                    spill(a, 2)
                if idx == last1 + 5:
                    spill(a, 3)
                if l == 0 and idx >= 56 - PF - 2 and wk < len(wq_vm):
                    for rep in range(2):
                        if wk < len(wq_vm):
                            lo = wq_vm[wk - 1] + 1 if wk else 0
                            a.extend(wq_early[lo:wq_vm[wk] + 1])
                            wk += 1
    stamp(a, f'p4.{l} gemm')
    spill(a, 1)
    for dd in range(8):
        G.unpack_add(a, ACC4[0] + 2 * dd, ACC4[0] + 2 * dd + 1, RS + dd, 112)
    a('s_waitcnt lgkmcnt(0)')
    a('s_barrier')
    stamp(a, f'p4.{l} bar')
    PR = 128
    for u in range(3):
        for i in range(4):
            r = PR + 16 * u + 4 * i
            a(f'ds_read_b128 v[{r}:{r+3}], v10 offset:{4096*u + 1024*i}')
    for u in range(3):
        for e in range(16):
            a(f'v_add_f32 v{ACC4[0]+e}, v{ACC4[0]+e}, v{PR+16*u+e}')
    for dd in range(8):
        a(f'v_cvt_pk_bf16_f32 v{PK+dd}, v{ACC4[0]+2*dd}, v{ACC4[0]+2*dd+1}')
    if l == 0:
        a(f's_add_u32 s32, s31, {hx(X2)}')
        a(f'buffer_store_dwordx4 v[{PK}:{PK+3}], v6, s[8:11], s32 offen sc1', tag='xst')
        a(f'buffer_store_dwordx4 v[{PK+4}:{PK+7}], v6, s[8:11], s32 offen offset:512 sc1', tag='xst')
        a('v_mov_b32 v112, 0')
        a('v_mov_b32 v113, 0')
        for dd in range(8):
            a(f'v_dot2_f32_bf16 v112, v{PK+dd}, s25, v112')
        for dd in range(8):
            a(f'v_dot2_f32_bf16 v113, v{PK+dd}, v{PK+dd}, v113')
        a('v_lshlrev_b32 v7, 2, v5')
        a('v_lshl_add_u32 v7, v4, 3, v7')
        a('s_lshl_b32 s32, s39, 12')
        a('s_lshl_b32 s33, s30, 8')
        a('s_add_u32 s32, s32, s33')
        a(f's_add_u32 s32, s32, {hx(STA[1])}')
        a('v_permlane32_swap_b32 v112, v113')
        a('v_add_f32 v112, v112, v113')
        a('buffer_store_dword v112, v7, s[8:11], s32 offen sc1', tag='xst')
        stamp(a, f'p4.{l} stored')
        rest = Asm()
        if wk < len(wq_vm):
            rest.extend(wq_early[(wq_vm[wk - 1] + 1 if wk else 0):])
        rest.extend(st_wqkv(range(24, 48)))
        r1, r2 = vm_split(rest, 8)
        a.extend(r1)
        a('s_lshl_b32 s30, s22, 8')
        a(f's_add_u32 s30, s30, {hx(F4())}')
        a('v_mov_b32 v3, 1')
        a.waitvm('xst')
        a('s_barrier')
        signal(a, 's30', 3)
        stamp(a, f'p4.{l} signalled')
        a.extend(r2)
    else:
        a('v_lshlrev_b32 v7, 5, v5')
        a('v_lshl_add_u32 v7, v4, 10, v7')
        a('s_lshl_b32 s32, s39, 15')
        a('s_lshl_b32 s33, s30, 6')
        a('s_add_u32 s32, s32, s33')
        a(f'buffer_store_dwordx4 v[{PK}:{PK+3}], v7, s[12:15], s32 offen')
        a(f'buffer_store_dwordx4 v[{PK+4}:{PK+7}], v7, s[12:15], s32 offen offset:16')
        stamp(a, f'p4.{l} stored')


def gen_main():
    a = Asm()
    name = NAME + '_kernel'
    header(a, name)
    a('s_load_dwordx16 s[72:87], s[0:1], 0')
    a('s_load_dwordx4 s[88:91], s[0:1], 64')
    a('v_lshrrev_b32 v3, 6, v0')
    a('v_and_b32 v0, 63, v0')
    a('v_readfirstlane_b32 s3, v3')
    a('v_lshlrev_b32 v1, 4, v0')
    if cfg.stamp:
        a('v_mov_b32 v2, 0')
        a('s_memrealtime s[70:71]')
    stamp(a, 'entry')
    role(a, 16, 17, cfg.e1, 5, 3)
    a('s_lshl_b32 s17, s17, 2')
    a('s_add_u32 s17, s17, s3')
    front_early(a)
    a(f's_mov_b32 s24, {hx(f2u(1e-5))}')
    a(f's_mov_b32 s25, {hx(ONES)}')
    a(f's_mov_b32 s26, {hx(f2u(0.25 * math.log2(math.e)))}')
    a('s_mov_b32 s28, 0xaaaaaaaa')
    a('s_mov_b32 s29, 0xaaaaaaaa')
    if cfg.tlb:
        a('s_waitcnt lgkmcnt(0)')
        for k, r in enumerate((76, 80, 82, 84)):
            a(f's_load_dword s{(6, 7, 100, 101)[k]}, s[{r}:{r+1}], 0', raw=True)
    srd(a, 60, 72, 2048 * 1024)
    srd(a, 92, 74, 512 * 3072)
    srd(a, 8, 90, WS_BYTES)
    srd(a, 12, 86, 2048 * 1024)
    a('s_mov_b32 s4, s90')
    a('s_mov_b32 s5, s91')
    a(f's_mov_b32 s78, {512 * 1024}')
    a('s_mov_b32 s79, 0x00020000')
    a('s_mov_b32 s90, 256')
    a('s_mov_b32 s91, 0x00020000')
    stamp(a, 'p1.0 start')
    for l in range(2):
        p2(a, l, p1(a, l))
        p34(a, l)
    if cfg.stamp:
        a('s_waitcnt vmcnt(0)')
        stamp(a, 'end')
        a('s_memrealtime s[72:73]')
        a('s_waitcnt lgkmcnt(0)')
        a('v_writelane_b32 v2, s70, 62')
        a('v_writelane_b32 v2, s72, 63')
        a('s_lshl_b32 s30, s2, 2')
        a('s_add_u32 s30, s30, s3')
        a('s_lshl_b32 s30, s30, 8')
        a(f's_add_u32 s30, s30, {hx(STAMPS)}')
        a('v_lshlrev_b32 v3, 2, v0')
        a('buffer_store_dword v2, v3, s[8:11], s30 offen')
    footer(a, name)
    return name, a.finish(), dict(vgpr=256, acc=256, lds=163840)


def assemble(name, body):
    out = []
    for line in open('cdna_kernels/' + NAME + '.s.ref').read().split('\n'):
        if '@launch' in line:
            out.append('; @launch grid=(256,1,1) block=(256,1,1) lds=163840')
        elif line.startswith(';'):
            out.append(line)
        else:
            break
    out += ['.amdgcn_target "amdgcn-amd-amdhsa--gfx950"', '.text', f'.globl {name}', body, '.section .rodata,"a"',
            '.p2align 6', f'.amdhsa_kernel {name}', '  .amdhsa_next_free_vgpr 512', '  .amdhsa_next_free_sgpr 102',
            '  .amdhsa_accum_offset 256', '  .amdhsa_group_segment_fixed_size 0', '  .amdhsa_kernarg_size 80',
            '  .amdhsa_user_sgpr_count 2', '  .amdhsa_user_sgpr_kernarg_segment_ptr 1',
            '  .amdhsa_system_sgpr_workgroup_id_x 1', '  .amdhsa_float_denorm_mode_32 3', '.end_amdhsa_kernel']
    return '\n'.join(out) + '\n'


def main():
    path = sys.argv[1]
    for arg in sys.argv[2:]:
        k, v = arg.split('=')
        assert hasattr(cfg, k), k
        setattr(cfg, k, eval(v))
    name, body, _ = gen_main()
    text = assemble(name, body)
    open(path, 'w').write(text)
    open(path + '.names', 'w').write(repr(stamp_names))
    print('wrote', path, len(text), 'bytes', spin_names)


if __name__ == '__main__':
    main()
```

```python
import sys
import math
sys.path.insert(0, 'dev')
from asmlib import Asm, Ins
import gen1 as G
from gen1 import (WQKV_F, WO_F, WGU_F, WD_F, CS_QKV, X0, O_, X1_, X2, H_, STA, STB, WS_BYTES, ONES, f2u, hx, srd,
                  header, footer, NAME)

CSF = 0x760000
DUMMY = 0x2400000
FLAGS = 0x2300000
STAMPS = 0x3000000
SPIN = 100000


def F1(l): return FLAGS + (l * 32) * 256
def F2(l): return FLAGS + (64 + l * 32) * 256
def F4(): return FLAGS + 128 * 256
def F3(l, st): return FLAGS + (160 + (l * 7 + st) * 128) * 256


G0 = FLAGS + 1952 * 256
GWO, GGU, GWD, GWQ, GDUM = G0, G0 + 8 * 256, G0 + 24 * 256, G0 + 32 * 256, G0 + 40 * 256
LDS_SLAB = 81920
LDS_RING = 114688
LDS_CSR = 81920 + 1024


class Cfg:
    stamp = False
    e1 = 1
    e2 = 1
    e3 = 1
    e4 = 0
    stages = ((0, 1), (2,), (3,), (4,), (5,), (6,))
    spin = False
    skip = ()
    touch = True
    wdearly = 6
    t0 = False
    t1 = False
    t2 = False
    only = None
    PF = 14
    NB = 16
    fine = True
    sw = (-1, -1, -1, -1, 0, 1, 2, 3, 4, 5, 6, 7, 8, 9, 10, 11)
    sx1 = (-1, -1, -1, -1, -1)
    sx2 = (1, 1, 2, 2, 3)
    sx3 = (3, 4, 4, 5, 5)
    sld = (0, 1, 2, 3, 4, 5, 6, 7)
    sst = (4, 5, 6, 7, 8, 9, 10, 11)
    xp = 0
    ssc = ' sc1'
    npf0 = 34
    ntx = ''
    ntw = ''
    nts = ''
    tlb = False
    rt = False
    wtlate = 16
    spin_s = True
    tlb2 = -1
    elate = False
    NA = 8
    lastmix = False
    sigd = 20
    vis = 32
    pd = 16
    gap = 2.4
    la = 60
    fin = 4
    sp2 = 4
    verbose = False
    sg0 = 15
    g0pos = 0
    ssig = 16
    wsc = ' sc1'
    spoll = True
    PD = 8
    s5 = 4
    s6 = 10


cfg = Cfg()
nstamp = [0]
stamp_names = []
spin_names = []


def stamp(a, name):
    if not cfg.stamp or any(name.startswith(x) for x in cfg.skip):
        return
    k = nstamp[0]
    nstamp[0] += 1
    stamp_names.append(name)
    assert k < (50 if cfg.spin else 62)
    a('s_memrealtime s[58:59]' if cfg.rt else 's_memtime s[58:59]')
    a('s_waitcnt lgkmcnt(0)')
    a(f'v_writelane_b32 v2, s58, {k}')


def role(a, dtok, dcol, e, nblk_bits, ncol_bits, t=(30, 31, 32, 33)):
    cb = ncol_bits - e
    T0, T1, T2, T3 = ('s%d' % x for x in t)
    a(f's_and_b32 {T0}, s2, 7')
    a(f's_lshr_b32 {T1}, s2, 3')
    a(f's_lshr_b32 {T2}, {T0}, {e}')
    a(f's_lshl_b32 {T2}, {T2}, {nblk_bits - (3 - e)}')
    a(f's_lshr_b32 {T3}, {T1}, {cb}')
    a(f's_add_u32 s{dtok}, {T2}, {T3}')
    a(f's_and_b32 {T2}, {T0}, {(1 << e) - 1}')
    a(f's_lshl_b32 {T2}, {T2}, {cb}')
    a(f's_and_b32 {T3}, {T1}, {(1 << cb) - 1}')
    a(f's_add_u32 s{dcol}, {T2}, {T3}')


uid = [0]


def poll_wg(a, sflag, nlanes_mask, voff, target, second=None):
    uid[0] += 1
    u = uid[0]
    if cfg.spin_s:
        a('s_cmp_lg_u32 s3, 0')
        a(f's_cbranch_scc1 L_pw_done{u}')
        a(f's_mov_b32 s57, {SPIN}')
        if second:
            a(f's_add_u32 s66, {sflag}, {second}')
        a(f'L_pw{u}:')
        a(f's_load_dword s64, s[4:5], {sflag} glc', raw=True)
        if second:
            a('s_load_dword s65, s[4:5], s66 glc', raw=True)
        a('s_sub_u32 s57, s57, 1')
        a(f's_cbranch_scc1 L_pw_done{u}')
        a('s_waitcnt lgkmcnt(0)', raw=True)
        if second:
            a('s_min_u32 s64, s64, s65', raw=True)
        a(f's_cmp_lg_u32 s64, {target}', raw=True)
        a(f's_cbranch_scc1 L_pw{u}')
        a(f'L_pw_done{u}:')
        a('s_barrier')
        return
    a('s_cmp_lg_u32 s3, 0')
    a(f's_cbranch_scc1 L_pw_done{u}')
    a(f's_mov_b64 exec, {nlanes_mask}')
    a(f's_mov_b32 s57, {SPIN}')
    a(f'L_pw{u}:')
    a(f'buffer_load_dword v3, {voff}, s[8:11], {sflag} {"offen " if voff != "off" else ""}sc1', raw=True)
    a('s_waitcnt vmcnt(0)', raw=True)
    a(f'v_cmp_ne_u32 vcc, {target}, v3', raw=True)
    a('s_sub_u32 s57, s57, 1')
    a(f's_cbranch_scc1 L_pw_out{u}')
    a(f's_cbranch_vccnz L_pw{u}')
    a(f'L_pw_out{u}:')
    a('s_mov_b64 exec, -1')
    a(f'L_pw_done{u}:')
    a('s_barrier')


def poll_issue(a, vreg, sflag, scalar=False):
    if scalar:
        a(f's_load_dword s{scalar}, s[4:5], {sflag} glc')
    else:
        a(f'buffer_load_dword v{vreg}, off, s[8:11], {sflag} sc1')


def poll_check(a, vreg, sflag, target, scalar=False):
    uid[0] += 1
    u = uid[0]
    outer, a = a, Asm()
    a(f's_mov_b32 s57, {SPIN}')
    if scalar:
        a(f's_cmp_eq_u32 s{scalar}, {target}')
        a(f's_cbranch_scc1 L_pc_ok{u}')
    else:
        a(f'v_cmp_ne_u32 vcc, {target}, v{vreg}')
        a(f's_cbranch_vccz L_pc_ok{u}')
    a(f'L_pc{u}:')
    if scalar:
        a(f's_load_dword s{scalar}, s[4:5], {sflag} glc', raw=True)
        a('s_sub_u32 s57, s57, 1')
        a(f's_cbranch_scc1 L_pc_ok{u}')
        a('s_waitcnt lgkmcnt(0)', raw=True)
        a(f's_cmp_lg_u32 s{scalar}, {target}', raw=True)
        a(f's_cbranch_scc1 L_pc{u}')
    else:
        a(f'buffer_load_dword v{vreg}, off, s[8:11], {sflag} sc1', raw=True)
        a('s_waitcnt vmcnt(0)', raw=True)
        a(f'v_cmp_ne_u32 vcc, {target}, v{vreg}', raw=True)
        a('s_sub_u32 s57, s57, 1')
        a(f's_cbranch_scc1 L_pc_ok{u}')
        a(f's_cbranch_vccnz L_pc{u}')
    a(f'L_pc_ok{u}:')
    if cfg.stamp and cfg.spin:
        k = 63 - 2 - len(spin_names)
        spin_names.append(f'spin pc{u}')
        a(f's_sub_u32 s57, {SPIN}, s57')
        a(f'v_writelane_b32 v2, s57, {50 + len(spin_names) - 1}')
    outer.group(a)


def signal(a, sflag, vone, wave0_only=True):
    uid[0] += 1
    u = uid[0]
    outer, a = a, Asm()
    if wave0_only:
        a('s_cmp_lg_u32 s3, 0')
        a(f's_cbranch_scc1 L_sg{u}')
    a('s_mov_b64 exec, 1')
    a(f'buffer_atomic_add v{vone}, off, s[8:11], {sflag} sc1', raw=wave0_only)
    a('s_mov_b64 exec, -1')
    if wave0_only:
        a(f'L_sg{u}:')
    outer.group(a)


def wq_loc(f):
    if f < 16:
        return f'v[{192+4*f}:{195+4*f}]'
    if f < 24:
        return f'a[{224+4*(f-16)}:{227+4*(f-16)}]'
    if f < 40:
        return f'a[{160+4*(f-24)}:{163+4*(f-24)}]'
    return f'v[{160+4*(f-40)}:{163+4*(f-40)}]'


def p4_korder():
    return [[7 * c + T for T in st for c in range(4)] for st in cfg.stages]


def wd_loc(s, f):
    order = [k for g in p4_korder() for k in g]
    p = order.index(s)
    r = 160 + (2 * p + f) * 4 if p < 8 else (2 * (p - 8) + f) * 4
    return f'a[{r}:{r+3}]'


LDS_WO = 98304
LDS_TAB = 81920


def slot(T):
    return (T % 5) * 32768


def st_wqkv(fs):
    a = Asm()
    a('s_mul_i32 s40, s17, 49152')
    cur = None
    for f in fs:
        g = f >> 2
        if g != cur:
            a(f's_add_u32 s41, s40, {hx(WQKV_F + g * 4096)}')
            cur = g
        a(f'buffer_load_dwordx4 {wq_loc(f)}, v1, s[8:11], s41 offen offset:{1024*(f&3)}{cfg.wsc}', tag='wq')
    return a


VWO = 5


def st_wo_f():
    a = Asm()
    a('s_lshl_b32 s42, s19, 16')
    a('s_lshl_b32 s43, s3, 14')
    a('s_add_u32 s42, s42, s43')
    a(f's_add_u32 s42, s42, {hx(WO_F)}')
    a(f's_add_u32 s43, s43, {LDS_WO}')
    for g in range(4):
        a('s_mov_b32 m0, s43')
        for j in range(4):
            a(f'buffer_load_dwordx4 v1, s[8:11], s42 offen offset:{1024*j}{cfg.wsc} lds', tag='wo')
        if g < 3:
            a('s_add_u32 s42, s42, 4096')
            a('s_add_u32 s43, s43, 4096')
    return a


def st_wo():
    a = Asm()
    a('s_lshl_b32 s42, s19, 7')
    a('s_lshl_b32 s43, s3, 17')
    a('s_add_u32 s42, s42, s43')
    a('s_lshl_b32 s43, s3, 14')
    a(f's_add_u32 s43, s43, {LDS_WO}')
    for g in range(4):
        a('s_mov_b32 m0, s43')
        for j in range(4):
            a(f'buffer_load_dwordx4 v{VWO}, s[76:79], s42 offen offset:{1024*j} lds', tag='wo')
            if j < 3:
                a('s_add_u32 s42, s42, 7168')
        if g < 3:
            a(f's_add_u32 s42, s42, {8192 + 3072}')
            a('s_add_u32 s43, s43, 4096')
    return a


def wo_tr(BF):
    a = Asm()
    A0, A1, AW = 12, 13, 14
    a('s_lshl_b32 s38, s3, 14')
    a(f's_add_u32 s38, s38, {LDS_WO}')
    a('v_lshrrev_b32 v11, 5, v0')
    a('v_bfe_u32 v15, v0, 2, 2')
    a(f'v_lshl_add_u32 v{A0}, v11, 3, v15')
    a(f'v_lshlrev_b32 v{A0}, 7, v{A0}')
    a('v_bfe_u32 v15, v0, 3, 1')
    a(f'v_lshl_add_u32 v{A0}, v15, 6, v{A0}')
    a('v_and_b32 v15, 3, v0')
    a(f'v_lshl_add_u32 v{A0}, v15, 4, v{A0}')
    a('v_bfe_u32 v15, v0, 4, 1')
    a(f'v_lshl_add_u32 v{A0}, v15, 3, v{A0}')
    a(f'v_add_u32 v{A0}, s38, v{A0}')
    a(f'v_xor_b32 v{A1}, 64, v{A0}')
    a(f'v_lshlrev_b32 v{AW}, 10, v15')
    a(f'v_lshl_add_u32 v{AW}, v11, 8, v{AW}')
    a('v_and_b32 v15, 15, v0')
    a(f'v_lshl_add_u32 v{AW}, v15, 4, v{AW}')
    a(f'v_add_u32 v{AW}, s38, v{AW}')
    a.waitvm('wo')
    for u in range(8):
        for p in range(2):
            r = BF + 4 * (2 * u + p)
            for h in range(2):
                a(f'ds_read_b64_tr_b16 v[{r+2*h}:{r+2*h+1}], v{A0+p} offset:{u * 2048 + h * 512}')
    a('s_waitcnt lgkmcnt(0)')
    for u in range(8):
        for p in range(2):
            r = BF + 4 * (2 * u + p)
            a(f'ds_write_b128 v{AW}, v[{r}:{r+3}] offset:{(u >> 1) * 4096 + p * 2048 + (u & 1) * 512}')
    return a


def st_wgu(Ts):
    a = Asm()
    a('s_mul_i32 s44, s21, 229376')
    a('s_lshl_b32 s45, s3, 13')
    a('s_add_u32 s44, s44, s45')
    for T in Ts:
        for g in range(2):
            a(f's_add_u32 s46, s45, {slot(T) + g * 4096}')
            a(f's_add_u32 s47, s44, {hx(WGU_F + T * 32768 + g * 4096)}')
            a('s_mov_b32 m0, s46')
            for j in range(4):
                a(f'buffer_load_dwordx4 v1, s[8:11], s47 offen offset:{1024*j}{cfg.wsc} lds', tag=f'wg{T}')
    return a


CF = (124, 76)
MBZ = 64


def st_csf():
    a = Asm()
    a('s_lshl_b32 s48, s21, 11')
    a(f's_add_u32 s48, s48, {hx(CSF)}')
    for j in range(2):
        a(f'buffer_load_dwordx4 v[{CF[j]}:{CF[j]+3}], v1, s[8:11], s48 offen offset:{1024*j} sc1', tag='csf')
    return a


def st_wd(positions):
    a = Asm()
    order = [k for g in p4_korder() for k in g]
    a('s_lshl_b32 s49, s23, 1')
    a('s_and_b32 s50, s3, 1')
    a('s_add_u32 s49, s49, s50')
    a('s_xor_b32 s50, s49, 1')
    a('s_mul_i32 s51, s3, 28672')
    a('s_mul_i32 s49, s49, 114688')
    a('s_mul_i32 s50, s50, 114688')
    a('s_add_u32 s49, s49, s51')
    a('s_add_u32 s50, s50, s51')
    for p in positions:
        s = order[p]
        for f in range(2):
            a(f's_add_u32 s51, s{49+f}, {hx(WD_F + s * 1024)}')
            a(f'buffer_load_dwordx4 {wd_loc(s, f)}, v1, s[8:11], s51 offen{cfg.wsc}', tag='wd')
    return a


def mix(x, y):
    x = x.ins if isinstance(x, Asm) else x
    y = y.ins if isinstance(y, Asm) else y
    out = []
    i = j = 0
    while i < len(x) or j < len(y):
        if j >= len(y) or (i < len(x) and i * len(y) <= j * len(x)):
            out.append(x[i]); i += 1
        else:
            out.append(y[j]); j += 1
    return out


def cat(*xs):
    out = []
    for x in xs:
        out.extend(x.ins if isinstance(x, Asm) else x)
    return out


def split_mfma(lst, bounds):
    parts = [[] for _ in range(len(bounds) + 1)]
    m = 0
    for i in lst:
        parts[sum(1 for b in bounds if m >= b)].append(i)
        if i.kind == 'mfma':
            m += 1
    return parts


def vm_split(st, n):
    k = 0
    L = st.ins if isinstance(st, Asm) else st
    for idx, i in enumerate(L):
        if i.kind == 'vmem':
            k += 1
            if k == n:
                return L[:idx + 1], L[idx + 1:]
    return L, []


VX, VW, VT = 248, 249, 250


def grp(a, *lines, tag=None, raw=False):
    g = Asm()
    for x in lines:
        g(x, tag=tag if x.startswith('buffer_') or x.startswith('ds_') else None, raw=raw)
    a.group(g)


def front_early(a):
    a('s_lshl_b32 s35, s3, 2')
    a('v_lshrrev_b32 v3, 4, v0')
    a('v_add_u32 v3, s35, v3')
    a('v_and_b32 v4, 15, v0')
    a('v_xor_b32 v4, v4, v3')
    a(f'v_lshlrev_b32 v{VX}, 10, v3')
    a(f'v_lshl_add_u32 v{VX}, v4, 4, v{VX}')
    a('v_lshrrev_b32 v3, 3, v0')
    a('s_and_b32 s36, s3, 1')
    a('s_lshl_b32 s36, s36, 1')
    a('v_bfe_u32 v4, v0, 4, 1')
    a('v_or_b32 v4, s36, v4')
    a('v_bfe_u32 v5, v0, 1, 2')
    a('v_xor_b32 v4, v4, v5')
    a('s_lshl_b32 s36, s3, 3')
    a('v_add_u32 v3, s36, v3')
    a(f'v_mul_u32_u24 v{VW}, 3072, v3')
    a(f'v_lshl_add_u32 v{VW}, v4, 5, v{VW}')
    a('v_and_b32 v4, 1, v0')
    a(f'v_lshl_add_u32 v{VW}, v4, 4, v{VW}')
    a('s_lshl_b32 s35, s3, 10')
    a('s_mul_i32 s34, s3, 3072')
    a('s_lshl_b32 s30, s16, 16')
    a('s_sub_u32 s31, s30, 16384')
    a('s_max_i32 s31, s31, 0')
    a('s_add_u32 s68, s30, 16384')
    a('s_add_u32 s69, s30, 32768')
    a('s_add_u32 s27, s30, 49152')
    a('s_lshr_b32 s32, s17, 2')
    a('s_lshl_b32 s32, s32, 7')
    a('s_and_b32 s52, s2, 7')
    a('s_lshr_b32 s53, s2, 4')
    a('s_lshl_b32 s53, s53, 3')
    a('s_add_u32 s52, s52, s53')
    a('s_lshl_b32 s52, s52, 1')
    a('s_bfe_u32 s53, s2, 0x10003')
    a('s_add_u32 s52, s52, s53')


def slab_role():
    a = Asm()
    a('s_mov_b32 s99, 0x00020000')
    a('s_mov_b32 s51, 0')
    a('s_mov_b32 s53, 0')
    a('s_mov_b32 s54, 0')
    a('s_cmp_lt_u32 s52, 48')
    a('s_cbranch_scc1 L_sl_qkv')
    a('s_cmp_lt_u32 s52, 64')
    a('s_cbranch_scc1 L_sl_wo')
    a('s_cmp_lt_u32 s52, 176')
    a('s_cbranch_scc1 L_sl_gu')
    a('s_mov_b32 s96, s84')
    a('s_mov_b32 s97, s85')
    a(f's_mov_b32 s98, {1792 * 1024}')
    a('s_cmp_ge_u32 s52, 240')
    a('s_cselect_b32 s36, 16, 0')
    a('s_sub_u32 s36, s52, s36')
    a('s_sub_u32 s36, s36, 176')
    a('s_lshr_b32 s37, s36, 4')
    a('s_and_b32 s36, s36, 15')
    a('s_mov_b32 s40, 1024')
    a(f's_mul_i32 s41, s37, {448 * 1024}')
    a(f's_mul_i32 s38, s3, {112 * 1024}')
    a('s_add_u32 s41, s41, s38')
    a('s_lshl_b32 s38, s36, 6')
    a('s_add_u32 s41, s41, s38')
    a('s_mul_i32 s43, s36, 114688')
    a('s_mul_i32 s38, s37, 28672')
    a('s_add_u32 s43, s43, s38')
    a('s_mul_i32 s38, s3, 7168')
    a('s_add_u32 s43, s43, s38')
    a(f's_add_u32 s43, s43, {hx(WD_F)}')
    a('s_mov_b32 s44, 1024')
    a('s_mov_b32 s45, 2048')
    a('s_mov_b32 s46, 256')
    a('s_mov_b32 s47, 512')
    a('s_mov_b32 s48, 16')
    a('s_mov_b32 s49, 32')
    a('s_mov_b32 s50, 8')
    a('s_mov_b32 s51, 16384')
    a('s_mov_b32 s53, 1024')
    a('s_lshr_b32 s36, s36, 1')
    a('s_lshl_b32 s36, s36, 8')
    a(f's_add_u32 s64, s36, {hx(GWD)}')
    a('s_cmp_ge_u32 s52, 240')
    a(f's_cselect_b32 s64, {hx(GDUM)}, s64')
    a('s_mov_b32 s65, s64')
    a('s_branch L_sl_go')
    a('L_sl_gu:')
    a('s_cmp_lt_u32 s52, 120')
    a('s_cselect_b32 s96, s80, s82')
    a('s_cselect_b32 s97, s81, s83')
    a('s_cselect_b32 s36, 64, 120')
    a('s_cselect_b32 s37, 0, 256')
    a(f's_mov_b32 s98, {512 * 3584}')
    a('s_sub_u32 s36, s52, s36')
    a('s_mov_b32 s40, 3584')
    a(f's_mul_i32 s41, s3, {128 * 3584}')
    a('s_lshl_b32 s38, s36, 6')
    a('s_add_u32 s41, s41, s38')
    a('s_lshl_b32 s43, s36, 16')
    a('s_add_u32 s43, s43, s37')
    a('s_lshl_b32 s38, s3, 13')
    a('s_add_u32 s43, s43, s38')
    a(f's_add_u32 s43, s43, {hx(WGU_F)}')
    a('s_mov_b32 s44, 1024')
    a('s_mov_b32 s45, 2048')
    a('s_mov_b32 s46, 32768')
    a('s_mov_b32 s47, 512')
    a('s_mov_b32 s48, 32')
    a('s_mov_b32 s49, 16')
    a('s_mov_b32 s50, 8')
    a('s_mov_b32 s54, 2')
    for e in range(2):
        a('s_lshl_b32 s38, s36, 1')
        a(f's_add_u32 s38, s38, {e}')
        a('s_mul_i32 s39, s38, 9363')
        a('s_lshr_b32 s39, s39, 16')
        a(f's_lshl_b32 s{64+e}, s39, 8')
        a(f's_add_u32 s{64+e}, s{64+e}, {hx(GGU)}')
        a(f's_lshl_b32 s{55+e}, s39, 11')
        a('s_mul_i32 s39, s39, 7')
        a('s_sub_u32 s38, s38, s39')
        a('s_lshr_b32 s39, s38, 1')
        a('s_lshl_b32 s39, s39, 9')
        a(f's_add_u32 s{55+e}, s{55+e}, s39')
        a('s_and_b32 s38, s38, 1')
        a('s_lshl_b32 s38, s38, 3')
        a(f's_add_u32 s{55+e}, s{55+e}, s38')
        a(f's_add_u32 s{55+e}, s{55+e}, s37')
        a(f's_add_u32 s{55+e}, s{55+e}, {hx(CSF)}')
    a('s_branch L_sl_go')
    a('L_sl_wo:')
    a('s_mov_b32 s96, s76')
    a('s_mov_b32 s97, s77')
    a(f's_mov_b32 s98, {512 * 1024}')
    a('s_sub_u32 s36, s52, 48')
    a('s_mov_b32 s40, 1024')
    a('s_lshl_b32 s41, s3, 17')
    a('s_lshl_b32 s38, s36, 6')
    a('s_add_u32 s41, s41, s38')
    a('s_lshr_b32 s37, s36, 1')
    a('s_lshl_b32 s43, s37, 16')
    a('s_and_b32 s38, s36, 1')
    a('s_lshl_b32 s38, s38, 11')
    a('s_add_u32 s43, s43, s38')
    a('s_lshl_b32 s38, s3, 14')
    a('s_add_u32 s43, s43, s38')
    a(f's_add_u32 s43, s43, {hx(WO_F)}')
    a('s_mov_b32 s44, 512')
    a('s_mov_b32 s45, 4096')
    a('s_mov_b32 s46, 1024')
    a('s_mov_b32 s47, 256')
    a('s_mov_b32 s48, 8')
    a('s_mov_b32 s49, 16')
    a('s_mov_b32 s50, 32')
    a('s_lshl_b32 s37, s37, 8')
    a(f's_add_u32 s64, s37, {hx(GWO)}')
    a('s_mov_b32 s65, s64')
    a('s_branch L_sl_go')
    a('L_sl_qkv:')
    a('s_mov_b32 s96, s74')
    a('s_mov_b32 s97, s75')
    a(f's_mov_b32 s98, {512 * 3072}')
    a('s_mov_b32 s40, 3072')
    a(f's_mul_i32 s41, s3, {128 * 3072}')
    a('s_lshl_b32 s38, s52, 6')
    a('s_add_u32 s41, s41, s38')
    a('s_and_b32 s36, s52, 15')
    a('s_mul_i32 s43, s36, 98304')
    a('s_lshr_b32 s38, s52, 4')
    a('s_lshl_b32 s38, s38, 10')
    a('s_add_u32 s43, s43, s38')
    a('s_mul_i32 s38, s3, 12288')
    a('s_add_u32 s43, s43, s38')
    assert WQKV_F == 0
    a('s_mov_b32 s44, 512')
    a('s_mov_b32 s45, 3072')
    a('s_mov_b32 s46, 49152')
    a('s_mov_b32 s47, 256')
    a('s_mov_b32 s48, 32')
    a('s_mov_b32 s49, 8')
    a('s_mov_b32 s50, 16')
    a('s_mov_b32 s54, 1')
    a('s_lshl_b32 s55, s52, 7')
    a(f's_add_u32 s55, s55, {hx(CS_QKV)}')
    a('s_add_u32 s56, s55, 64')
    a('s_lshr_b32 s36, s36, 1')
    a('s_lshl_b32 s36, s36, 8')
    a(f's_add_u32 s64, s36, {hx(GWQ)}')
    a('s_mov_b32 s65, s64')
    a('L_sl_go:')
    a('s_lshl_b32 s36, s2, 2')
    a('s_add_u32 s36, s36, s3')
    a('s_lshl_b32 s36, s36, 9')
    a(f's_add_u32 s36, s36, {hx(DUMMY)}')
    a('s_add_u32 s37, s36, 256')
    a('s_cmp_eq_u32 s3, 0')
    a('s_cselect_b32 s38, s54, 0')
    a('s_cmp_lg_u32 s38, 0')
    a('s_cselect_b32 s55, s55, s36')
    a('s_cselect_b32 s56, s56, s37')
    a('s_lshl_b32 s42, s40, 4')
    a('s_sub_u32 s51, s42, s51')
    a('s_lshl_b32 s66, s3, 13')
    a(f's_add_u32 s66, s66, {LDS_SLAB}')
    return a


def spin(a, name, load, cmp_):
    a(f's_mov_b32 s57, {SPIN}')
    a(cmp_, raw=True)
    a(f's_cbranch_vccz L_{name}_ok')
    a(f'L_{name}:')
    a(load, raw=True)
    a('s_waitcnt vmcnt(0)', raw=True)
    a(cmp_, raw=True)
    a('s_sub_u32 s57, s57, 1')
    a(f's_cbranch_scc1 L_{name}_ok')
    a(f's_cbranch_vccnz L_{name}')
    a(f'L_{name}_ok:')
    if cfg.stamp and cfg.spin:
        spin_names.append(name)
        a(f's_sub_u32 s57, {SPIN}, s57')
        a(f'v_writelane_b32 v2, s57, {50 + len(spin_names) - 1}')


VG, VGT, VZ = 254, 255, 216


def g0_check():
    a = Asm()
    a.waitvm('g0')
    g = Asm()
    g('s_cmp_lg_u32 s3, 0')
    g('s_cbranch_scc1 L_g0_skip')
    g('s_mov_b64 exec, 15')
    spin(g, 'g0', f'buffer_load_dword v{VZ}, v{VG}, s[8:11], 0 offen sc1', f'v_cmp_ne_u32 vcc, v{VGT}, v{VZ}')
    g('s_mov_b64 exec, -1')
    g('L_g0_skip:')
    a.group(g)
    return a


def fix_m0(a, start):
    from asmlib import flatten
    body = flatten(a.ins[start:])
    out = []
    cur = None
    for i in body:
        if i.kind == 'salu' and ('s', 'm0') in i.defs:
            cur = i.text
        if i.kind == 'vmem' and isinstance(i.note, str) and i.note.startswith('s_add_u32 m0'):
            if cur != i.note:
                out.append(Ins(i.note))
                cur = i.note
            i.note = None
        out.append(i)
    a.ins[start:] = out


def front0(a, consts, AK, AV, AQ, CSQ, CSK, CSV, VC):
    VXR, VXR2, VXS = 140, 144, 148
    VSL, VST, VSS = 251, 252, 253
    VCA, VCS, VCW, VCR = 153, 154, 155, 156
    WS = lambda s, P: 160 + 12 * (s & 1) + 4 * P
    CSV4, ONE, SO, GO, SH, GH = 184, 188, 192, 196, 200, 204
    RX = [84, 88, 92, 96, 208, 212]
    SF = [224, 228, 232, 236]
    CSA, SEL = 240, 244
    q4 = lambda r: f'v[{r}:{r+3}]'

    def xd(d, kq, i):
        grp(d, f's_add_u32 m0, s35, {kq * 20224 + i * 4096}',
            f'buffer_load_dwordx4 v{VX}, s[60:63], s{(31, 30, 68, 69, 27)[i]} offen offset:{kq * 256}{cfg.ntx} lds', tag=f'x{kq}')

    def wd_(d, s):
        ld = [f'buffer_load_dwordx4 v{VW}, s[92:95], s33 offen offset:{P * 1024}{cfg.ntw} lds' for P in (1, 2, 0)]
        m0 = f's_add_u32 m0, s34, {LDS_RING + (s & 3) * 12288}'
        grp(d, m0, f's_add_u32 s33, s32, {s * 98304}', ld[0], tag=f'w{s}')
        for x in ld[1:]:
            i = d(x, tag=f'w{s}')
            i.note = m0

    def tr(d, s):
        for P in (1, 2, 0):
            for u in range(2):
                r = WS(s, P) + 2 * u
                d(f'ds_read_b64_tr_b16 v[{r}:{r+1}], v{VT} offset:{(s & 3) * 12288 + P * 1024 + u * 512}', tag=f't{s}')

    def sld(d, u):
        if cfg.xp & 1:
            return
        grp(d, f's_add_u32 m0, s66, {u * 1024}',
            f'buffer_load_dwordx4 v{VSL}, s[96:99], s41 offen{cfg.nts} lds',
            f's_add_u32 s41, s41, s{51 if u == 6 else 42}', tag=f'sl{u}')

    def sst(d, u):
        r = SF[u & 3]
        d.waitvm(f'sl{u}')
        for h in range(2):
            d(f'ds_read_b64_tr_b16 v[{r+2*h}:{r+2*h+1}], v{VST} offset:{u * 1024 + h * 256}')
        e = Asm()
        if u & 1:
            e('s_add_u32 s67, s43, s44')
            if u == 7:
                e('s_sub_u32 s67, s67, s53')
            if not cfg.xp & 2:
                e(f'buffer_store_dwordx4 {q4(r)}, v{VSS}, s[8:11], s67 offen{cfg.ssc}', tag='slab')
            e('s_add_u32 s43, s43, s45')
        elif not cfg.xp & 2:
            e(f'buffer_store_dwordx4 {q4(r)}, v{VSS}, s[8:11], s43 offen{cfg.ssc}', tag='slab')
        e(f'v_mfma_f32_16x16x32_bf16 {q4(CSA)}, {q4(r)}, {q4(SEL)}, {q4(CSA) if u else 0}')
        return e

    start0 = len(a.ins)
    z = Asm()
    z('s_cmp_lt_u32 s52, 240')
    z('s_cbranch_scc1 L_z_skip')
    z('s_cmp_gt_u32 s3, 1')
    z('s_cbranch_scc1 L_z_skip')
    z('s_sub_u32 s36, s52, 240')
    z('s_lshl_b32 s36, s36, 1')
    z('s_add_u32 s36, s36, s3')
    z('s_lshl_b32 s36, s36, 14')
    z(f's_add_u32 s36, s36, {hx(FLAGS)}')
    z('v_lshlrev_b32 v3, 8, v0')
    z('v_mov_b32 v4, 0')
    z('buffer_store_dword v4, v3, s[8:11], s36 offen sc1', raw=True)
    z('L_z_skip:')
    a.group(z)
    L = Asm()
    for i in range(5):
        xd(L, 0, i)
    for s in range(4):
        if cfg.sw[s] < 0:
            wd_(L, s)
    L2 = Asm()
    for u in range(8):
        if cfg.sld[u] < 0:
            sld(L2, u)
    for i in range(5):
        if cfg.sx1[i] < 0:
            xd(L2, 1, i)
    S = Asm()
    S('v_and_b32 v132, 15, v0')
    S('v_lshrrev_b32 v133, 4, v0')
    S('v_lshrrev_b32 v134, 2, v132')
    S(f'v_mul_u32_u24 v{VT}, 3072, v133')
    S(f'v_lshl_add_u32 v{VT}, v134, 7, v{VT}')
    S('v_bfe_u32 v135, v0, 3, 2')
    S('v_xor_b32 v135, s3, v135')
    S(f'v_lshl_add_u32 v{VT}, v135, 5, v{VT}')
    S('v_and_b32 v135, 3, v0')
    S(f'v_lshl_add_u32 v{VT}, v135, 3, v{VT}')
    S(f'v_add_u32 v{VT}, {LDS_RING}, v{VT}')
    S('s_lshl_b32 s38, s3, 12')
    S('s_add_u32 s38, s38, 4096')
    for j in range(4):
        S(f'v_add_u32 v135, {4 * j}, v133')
        S('v_xor_b32 v135, v135, v132')
        S(f'v_lshlrev_b32 v{VXR+j}, 8, v132')
        S(f'v_lshl_add_u32 v{VXR+j}, v135, 4, v{VXR+j}')
        S(f'v_add_u32 v{VXR2+j}, 61440, v{VXR+j}')
        S(f'v_add_u32 v{VXS+j}, s38, v{VXR+j}')
    for r in range(4):
        S(f'v_mov_b32 v{ONE+r}, s25')
    for (dt, dc, e, nb, nc) in ((18, 19, cfg.e2, 5, 3), (20, 21, cfg.e3, 4, 4), (22, 23, cfg.e4, 5, 3)):
        role(S, dt, dc, e, nb, nc, (36, 37, 38, 57))
    S.group(slab_role())
    S('v_lshrrev_b32 v135, 2, v0')
    S(f'v_mul_u32_u24 v{VSL}, s40, v135')
    S('v_and_b32 v135, 3, v0')
    S(f'v_lshl_add_u32 v{VSL}, v135, 4, v{VSL}')
    S('v_lshrrev_b32 v136, 5, v0')
    S('v_and_b32 v137, 1, v133')
    S('v_lshl_add_u32 v135, v136, 3, v134')
    S(f'v_lshlrev_b32 v{VST}, 6, v135')
    S(f'v_mad_u32_u24 v{VST}, v137, s48, v{VST}')
    S('v_and_b32 v135, 1, v0')
    S(f'v_mad_u32_u24 v{VST}, v135, s49, v{VST}')
    S('v_bfe_u32 v135, v0, 1, 1')
    S(f'v_mad_u32_u24 v{VST}, v135, s50, v{VST}')
    S(f'v_add_u32 v{VST}, s66, v{VST}')
    S(f'v_lshlrev_b32 v{VSS}, 4, v132')
    S(f'v_mad_u32_u24 v{VSS}, v137, s46, v{VSS}')
    S(f'v_mad_u32_u24 v{VSS}, v136, s47, v{VSS}')
    g = Asm()
    g('v_xor_b32 v135, v0, v133')
    g('v_and_b32 v135, 1, v135')
    g('v_cmp_eq_u32 vcc, 0, v135')
    g(f'v_cndmask_b32 v{SEL}, 0, v{ONE}, vcc')
    S.group(g)
    for r in range(1, 4):
        S(f'v_mov_b32 v{SEL+r}, v{SEL}')
    S(f'v_mov_b32 v{VCA}, s64')
    S(f'v_writelane_b32 v{VCA}, s65, 1')
    g = Asm()
    g('s_cmp_eq_u32 s54, 2')
    g('s_cselect_b32 s38, 16, 4')
    g(f'v_mul_u32_u24 v{VCS}, s38, v132')
    g('v_mov_b32 v135, s55')
    g('v_mov_b32 v136, s56')
    g('v_cmp_eq_u32 vcc, 0, v137')
    g('v_cndmask_b32 v135, v136, v135, vcc')
    g(f'v_add_u32 v{VCS}, v{VCS}, v135')
    S.group(g)
    S('v_and_b32 v135, 1, v0')
    S(f'v_lshlrev_b32 v{VCW}, 6, v135')
    S(f'v_lshl_add_u32 v{VCW}, v133, 4, v{VCW}')
    S('s_lshl_b32 s38, s3, 7')
    S(f's_add_u32 s38, s38, {LDS_CSR}')
    S(f'v_add_u32 v{VCW}, s38, v{VCW}')
    S('v_and_b32 v135, 31, v0')
    S(f'v_lshlrev_b32 v{VCR}, 2, v135')
    S(f'v_add_u32 v{VCR}, {LDS_CSR}, v{VCR}')
    for k, (sr_, base, tgt, sh) in enumerate(((19, GWO, 4, 0), (21, GGU, 14, 0), (23, GWD, 16, 0), (17, GWQ, 12, 2))):
        S(f's_lshr_b32 s38, s{sr_}, {sh}')
        S('s_lshl_b32 s38, s38, 8')
        S(f's_add_u32 s38, s38, {hx(base)}')
        if k == 0:
            S(f'v_mov_b32 v{VG}, s38')
            S(f'v_mov_b32 v{VGT}, {tgt}')
        else:
            S(f'v_writelane_b32 v{VG}, s38, {k}')
            S(f'v_writelane_b32 v{VGT}, {tgt}, {k}')
    for i in consts.ins:
        S.ins.append(i)
    a.extend(L.ins[:3])
    ncon = len(consts.ins)
    a.extend(mix(L.ins[3:], S.ins[:-ncon]))
    a.extend(mix(L2, S.ins[-ncon:]))
    stamp(a, 'p1.0 issued')
    a.waitvm('w0')
    a('s_barrier')
    g = Asm()
    g('s_cmp_lt_u32 s52, 240')
    g('s_cbranch_scc1 L_zf_skip')
    g('s_cmp_lg_u32 s3, 0')
    g('s_cbranch_scc1 L_zf_skip')
    g('s_sub_u32 s36, s52, 240')
    g('s_lshl_b32 s36, s36, 2')
    g('v_mov_b32 v135, 1')
    g('s_mov_b64 exec, 1')
    g('buffer_store_dword v135, off, s[88:91], s36 sc1', raw=True)
    g('s_mov_b64 exec, -1')
    g('L_zf_skip:')
    a.group(g)
    tr(a, 0)
    stamp(a, 'p1.0 first')

    groups = []
    mf = lambda d, x, y, first: f'v_mfma_f32_16x16x32_bf16 {q4(d)}, {x}, {y}, {0 if first else q4(d)}'
    for s in range(16):
        kq, j = s >> 2, s & 3
        for i in range(5):
            off = kq * 20480 + i * 4096
            ad = (VXR + j, off) if off < 65536 else (VXR2 + j, off - 61440)

            def f(B, s=s, i=i):
                r = [mf(AK(i), q4(WS(s, 1)), B, s == 0), mf(AV(i), B, q4(WS(s, 2)), s == 0)]
                if i:
                    r.append(mf(AQ(i), q4(WS(s, 0)), B, s == 0))
                return r
            groups.append((s, ad, f))
        groups.append((s, None, lambda B, s=s: [mf(CSK, q4(WS(s, 1)), q4(ONE), s == 0), mf(CSV4, q4(ONE), q4(WS(s, 2)), s == 0),
                                                mf(CSQ, q4(WS(s, 0)), q4(ONE), s == 0)]))
        if 2 <= s < 10:
            for sg in (2 * s - 4, 2 * s - 3):
                for (base, sm, gr) in ((VXS, SO, GO), (VXR, SH, GH)):
                    groups.append((s, (base + (sg & 3), (sg >> 2) * 20480),
                                   lambda B, sg=sg, sm=sm, gr=gr: [mf(sm, q4(ONE), B, sg == 0), mf(gr, B, B, sg == 0)]))
    rd_groups = [k for k, x in enumerate(groups) if x[1]]
    ring = {k: RX[n % len(RX)] for n, k in enumerate(rd_groups)}
    D = 4
    nxt = [0]

    def rd(g):
        if nxt[0] < len(rd_groups):
            k = rd_groups[nxt[0]]
            g(f'ds_read_b128 {q4(ring[k])}, v{groups[k][1][0]} offset:{groups[k][1][1]}')
            nxt[0] += 1
    for _ in range(D):
        rd(a)
    prim = [Asm() for _ in range(16)]
    trs = []
    for s in range(16):
        t_ = Asm()
        if s < 15:
            tr(t_, s + 1)
        trs.append(t_.ins)
    for k, (s, ad, f) in enumerate(groups):
        ms = f(q4(ring[k]) if ad else None)
        for n, m in enumerate(ms):
            prim[s](m)
            if ad and n == 1:
                rd(prim[s])
            elif trs[s]:
                prim[s].ins.append(trs[s].pop(0))

    fin = Asm()
    fin('s_mov_b32 s58, 0xcccccccc')
    fin('s_mov_b32 s59, 0xcccccccc')
    for gr in (GO, GH):
        fin(f'v_cndmask_b32 v{gr}, v{gr}, v{gr+1}, s[28:29]')
        fin(f'v_cndmask_b32 v{gr+2}, v{gr+2}, v{gr+3}, s[28:29]')
        fin(f'v_cndmask_b32 v{gr}, v{gr}, v{gr+2}, s[58:59]')
    fin(f'v_mov_b32 v{SO+1}, v{GO}')
    fin(f'v_mov_b32 v{SH+1}, v{GH}')
    for base in (SO, SH):
        G.stat_finalize(fin, base, base + 1, base + 2, 24)
    fin('s_lshl_b32 s38, s3, 7')
    fin(f'v_add_u32 v{GO}, s38, v{VC}')
    grp(fin, 's_mov_b32 exec_lo, 0x00f0000f', 's_mov_b32 exec_hi, 0xf0000f00',
        f'ds_write_b64 v{GO}, v[{SO}:{SO+1}] offset:128', f'ds_write_b64 v{VC}, v[{SH}:{SH+1}]',
        's_mov_b64 exec, -1', tag='tab')
    cw = Asm()
    grp(cw, 's_mov_b32 exec_lo, 0x00030003', 's_mov_b32 exec_hi, 0x00030003',
        f'ds_write_b128 v{VCW}, {q4(CSA)}', 's_mov_b64 exec, -1', tag='csw')
    cr = Asm()
    for w in range(4):
        cr(f'ds_read_b32 v{CSA+w}, v{VCR} offset:{128 * w}')
    cr(f'v_add_f32 v{CSA}, v{CSA}, v{CSA+1}')
    cr(f'v_add_f32 v{CSA+2}, v{CSA+2}, v{CSA+3}')
    cr(f'v_add_f32 v{CSA}, v{CSA}, v{CSA+2}')
    cr(f'v_cvt_pk_bf16_f32 v{CSA+3}, v{CSA}, v{CSA}')
    cr(f'v_and_b32 v{CSA+1}, 0xffff0000, v{CSA+3}')
    cr(f'v_sub_f32 v{CSA+2}, v{CSA}, v{CSA+1}')
    cr(f'v_and_b32 v{CSA+3}, 0xffff, v{CSA+3}')
    cr(f'v_cvt_pk_bf16_f32 v{CSA+2}, v{CSA+1}, v{CSA+2}')
    g = Asm()
    g('s_cmp_eq_u32 s54, 2')
    g('s_cbranch_scc1 L_cs_gu')
    g(f'buffer_store_dword v{CSA}, v{VCS}, s[8:11], 0 offen sc1', raw=True)
    g('s_branch L_cs_done')
    g('L_cs_gu:')
    g(f'buffer_store_dwordx2 v[{CSA+2}:{CSA+3}], v{VCS}, s[8:11], 0 offen sc1', tag='slab')
    g('L_cs_done:')
    if not cfg.xp & 1:
        cr.group(g)
    zl = Asm()
    grp(zl, 's_mov_b64 exec, 0xffff', f'v_lshlrev_b32 v{VZ+5}, 2, v0',
        f'buffer_load_dword v{VZ}, v{VZ+5}, s[88:91], 0 offen sc1', 's_mov_b64 exec, -1', tag='z')
    sg_ = Asm()
    sg_('s_cmp_lg_u32 s3, 0')
    sg_('s_cbranch_scc1 L_sig0_skip')
    sg_('s_mov_b64 exec, 0xffff')
    spin(sg_, 'zchk', f'buffer_load_dword v{VZ}, v{VZ+5}, s[88:91], 0 offen sc1', f'v_cmp_ne_u32 vcc, 1, v{VZ}')
    sg_('s_mov_b64 exec, 3')
    sg_(f'v_mov_b32 v{VZ}, 1')
    sg_(f'buffer_atomic_add v{VZ}, v{VCA}, s[8:11], 0 offen sc1', raw=True)
    sg_('s_mov_b64 exec, -1')
    sg_('L_sig0_skip:')
    gl = Asm()
    grp(gl, 's_mov_b64 exec, 15', f'buffer_load_dword v{VZ}, v{VG}, s[8:11], 0 offen sc1', 's_mov_b64 exec, -1', tag='g0')

    last_st = max(cfg.sst)
    for s in range(16):
        tags = [f'w{s+1}'] + {3: ['x1'], 6: ['x2'], 8: ['x3']}.get(s, [])
        if s == cfg.ssig:
            tags += ['slab', 'z']
        a.waitvm(*tags)
        a.waitlgkm(f't{s}', 'tab', 'csw')
        a('s_barrier')
        if s == cfg.ssig:
            a.group(sg_)
        sec = Asm()
        late = Asm()
        for u in range(8):
            if cfg.sst[u] == s:
                late.extend(sst(sec, u))
        ld = Asm()
        for k in range(16):
            if cfg.sw[k] == s:
                assert k < 4 or s >= k - 4
                wd_(ld, k)
        for i in range(5):
            if cfg.sx1[i] == s:
                xd(ld, 1, i)
            if cfg.sx2[i] == s:
                xd(ld, 2, i)
            if cfg.sx3[i] == s:
                xd(ld, 3, i)
        for u in range(8):
            if cfg.sld[u] == s:
                sld(ld, u)
        oth = Asm()
        if s == last_st + 1:
            oth.extend(cw)
        if s == last_st + 2:
            oth.extend(cr)
            oth.extend(zl)
        if s == 11:
            oth.extend(fin)
        if s == cfg.tlb2:
            oth('v_min_u32 v222, 12, v0')
            oth('v_lshlrev_b32 v222, 21, v222')
            oth('s_lshl_b32 s38, s2, 7')
            oth(f's_add_u32 s39, s38, {hx(0xA00000)}')
            oth('buffer_load_dword v223, v222, s[8:11], s39 offen')
            oth('buffer_load_dword v222, off, s[12:15], s38')
        nm = sum(1 for i in prim[s].ins if i.kind == 'mfma')
        a.merge(prim[s], cat(mix(sec, ld), mix(oth, late)), 0, nm - 1)
        if s in (3, 7, 11):
            stamp(a, f'p1.0 s{s}')
    fix_m0(a, start0)
    stamp(a, 'p1.0 gemm')
    a(f'v_mov_b32 v{CSV}, v{CSV4}')
    return sg_, gl


def p1(a, l):
    X = X0 if l == 0 else X2
    ST = STA[l]
    VH, VM_, VD, VC, VR = 5, 6, 7, 8, 9
    BI, SELA, SELB = 10, 16, 17
    CSQ, CSK, CSV = 18, 22, 26
    AK = lambda i: 28 + 12 * i - (4 if i else 0)
    AV = lambda i: AK(i) + 4
    AQ = lambda i: AK(i) + 8
    BR = 84
    KP, VP, QP = 100, 110, 118
    SC, CT = 127, 132
    SS, TT, PP = 28, 44, 52
    MM, OO, OS = 142, 146, 154
    NEG = f2u(-1e30)
    outer = a
    a = Asm()
    a('v_and_b32 v3, 15, v0')
    a('v_lshrrev_b32 v4, 4, v0')
    a(f'v_lshlrev_b32 v{VD}, 9, v4')
    a(f'v_lshl_add_u32 v{VD}, v3, 4, v{VD}')
    a(f'v_add_u32 v{VM_}, 65536, v1')
    a(f'v_lshlrev_b32 v{VC}, 3, v3')
    a(f'v_add_u32 v{VC}, {LDS_TAB}, v{VC}')
    a(f'v_lshlrev_b32 v{VR}, 5, v4')
    a(f'v_add_u32 v{VR}, {LDS_TAB}, v{VR}')
    if l == 0:
        a('v_lshrrev_b32 v134, 3, v0')
        a(f'v_lshlrev_b32 v{VWO}, 10, v134')
        a('v_bfe_u32 v134, v0, 4, 1')
        a('v_lshlrev_b32 v134, 2, v134')
        a('v_and_b32 v135, 7, v0')
        a('v_xor_b32 v134, v134, v135')
        a(f'v_lshl_add_u32 v{VWO}, v134, 4, v{VWO}')
    if l:
        a('s_lshl_b32 s30, s17, 6')
        a(f's_add_u32 s30, s30, {hx(CS_QKV)}')
        a('v_lshlrev_b32 v132, 4, v4')
        a('v_lshlrev_b32 v133, 2, v3')
        a(f'buffer_load_dwordx4 v[{CSQ}:{CSQ+3}], v132, s[8:11], s30 offen sc1')
        a(f'buffer_load_dwordx4 v[{CSK}:{CSK+3}], v132, s[8:11], s30 offen offset:2048 sc1')
        a('s_add_u32 s30, s30, 4096')
        a(f'buffer_load_dword v{CSV}, v133, s[8:11], s30 offen sc1')
    a('v_and_b32 v134, 1, v3')
    a('v_lshl_add_u32 v135, v4, 2, v134')
    a('v_add_u32 v136, 2, v135')
    a('v_add_u32 v137, 2, v3')
    a(f'v_mov_b32 v138, {hx(NEG)}')
    a('v_mov_b32 v139, 0')
    a('v_cmp_ge_u32 vcc, v135, v137')
    a(f'v_cndmask_b32 v{BI}, v138, v139, vcc')
    a('v_cmp_ge_u32 vcc, v136, v137')
    a(f'v_cndmask_b32 v{BI+1}, v138, v139, vcc')
    a('v_cmp_le_u32 vcc, v135, v3')
    a(f'v_cndmask_b32 v{BI+2}, v138, v139, vcc')
    a('v_cmp_le_u32 vcc, v136, v3')
    a(f'v_cndmask_b32 v{BI+3}, v138, v139, vcc')
    grp(a, 's_cmp_eq_u32 s16, 0', 's_cselect_b64 s[58:59], -1, 0')
    a(f'v_cndmask_b32 v{BI+4}, v{BI}, v138, s[58:59]')
    a(f'v_cndmask_b32 v{BI+5}, v{BI+1}, v138, s[58:59]')
    a('v_mov_b32 v135, 0x0c0c0100')
    a('v_mov_b32 v136, 0x01000c0c')
    a(f'v_cndmask_b32 v{SELA}, v135, v136, s[28:29]')
    a('v_mov_b32 v135, 0x0c0c0302')
    a('v_mov_b32 v136, 0x03020c0c')
    a(f'v_cndmask_b32 v{SELB}, v135, v136, s[28:29]')
    consts = a
    a = outer
    S0 = 142
    if l:
        a.extend(consts)
        a('v_lshlrev_b32 v140, 10, v4')
        a('v_lshl_add_u32 v140, v3, 3, v140')
        a('s_lshl_b32 s30, s16, 16')
        a('s_sub_u32 s31, s30, 32512')
        a('s_cmp_eq_u32 s16, 0')
        a('s_cselect_b32 s31, 0, s31')
        a('s_lshl_b32 s32, s3, 13')
        a('s_add_u32 s31, s31, s32')
        a(f's_add_u32 s31, s31, {hx(X)}')
        a('s_add_u32 s30, s30, s32')
        a(f's_add_u32 s30, s30, {hx(X)}')
        a('s_lshl_b32 s33, s16, 13')
        a('s_sub_u32 s34, s33, 3968')
        a('s_cmp_eq_u32 s16, 0')
        a('s_cselect_b32 s34, 0, s34')
        a(f's_add_u32 s34, s34, {hx(ST)}')
        a('s_lshr_b32 s35, s3, 1')
        a('s_lshl_b32 s35, s35, 12')
        a('s_and_b32 s36, s3, 1')
        a('s_lshl_b32 s36, s36, 7')
        a('s_add_u32 s33, s33, s35')
        a('s_add_u32 s33, s33, s36')
        a(f's_add_u32 s33, s33, {hx(ST)}')
        a('s_lshl_b32 s35, s3, 12')
        sc = ' sc1'
        a('s_sub_u32 s36, s16, 1')
        a('s_max_i32 s36, s36, 0')
        a('s_lshl_b32 s36, s36, 8')
        a(f's_add_u32 s36, s36, {hx(F4())}')
        a('s_cmp_eq_u32 s16, 0')
        a('s_cselect_b32 s37, 0, 256')
        a('v_mul_u32_u24 v141, s37, v0')
        stamp(a, f'p1.{l} prepoll')
        poll_wg(a, 's36', 3, 'v141', 8, second='s37')
        stamp(a, f'p1.{l} start')

        def xdma(d, i):
            d(f's_add_u32 s37, s35, {16384 * i}')
            d('s_mov_b32 m0, s37')
            for j in range(4):
                if i == 0:
                    so = 's31'
                else:
                    so = 's39'
                    d(f's_add_u32 s39, s30, {((i - 1) >> 1) * 32768 + ((i - 1) & 1) * 256 + 1024 * j}')
                d(f'buffer_load_dwordx4 v{VD}, s[8:11], {so} offen offset:{1024*j}{sc} lds', tag=f'x{i}')
                if i == 0 and j < 3:
                    d('s_add_u32 s31, s31, 1024')
        d = Asm()
        xdma(d, 0)
        xdma(d, 1)
        for j in range(4):
            d(f'buffer_load_dwordx2 v[{S0+2*j}:{S0+1+2*j}], v140, s[8:11], s33 offen offset:{256*j}{sc}')
        for j in range(4):
            d(f'buffer_load_dwordx2 v[{S0+8+2*j}:{S0+9+2*j}], v140, s[8:11], s34 offen offset:{256*j}{sc}')
        for i in range(2, 5):
            xdma(d, i)
        st = Asm()
        for base in (S0, S0 + 8):
            for j in range(1, 4):
                st(f'v_add_f32 v{base}, v{base}, v{base+2*j}')
                st(f'v_add_f32 v{base+1}, v{base+1}, v{base+2*j+1}')
        for step in range(7):
            for base in (S0, S0 + 8):
                st([f'v_permlane16_swap_b32 v{base}, v{base+1}', f'v_add_f32 v{base}, v{base}, v{base+1}',
                    f'v_mov_b32 v{base+1}, v{base}', f'v_permlane32_swap_b32 v{base}, v{base+1}',
                    f'v_add_f32 v{base}, v{base}, v{base+1}', f'v_mov_b32 v{base+1}, v{base}',
                    f'v_permlane16_swap_b32 v{base}, v{base+1}'][step])
        for base in (S0, S0 + 8):
            G.stat_finalize(st, base, base + 1, base + 2, 24)
        st('s_lshl_b32 s38, s3, 7')
        st(f'v_add_u32 v{S0+4}, s38, v{VC}')
        st(f'ds_write_b64 v{S0+4}, v[{S0}:{S0+1}] offset:128', tag='tab')
        st(f'ds_write_b64 v{VC}, v[{S0+8}:{S0+9}]', tag='tab')

    def gemm(seq, pre):
        g = Asm()
        D = 3

        def rd(idx):
            if idx in pre:
                g.extend(pre[idx])
            i, s = seq[idx]
            dst = BR + 4 * (idx & 3)
            off = i * 16384 + s * 1024
            g(f'ds_read_b128 v[{dst}:{dst+3}], v{1 if off < 65536 else VM_} offset:{off & 65535}')
        for idx in range(D):
            rd(idx)
        for idx, (i, s) in enumerate(seq):
            b = BR + 4 * (idx & 3)
            B = f'v[{b}:{b+3}]'
            acc = lambda r: f'v[{r}:{r+3}]'
            c = lambda r: acc(r) if s else '0'
            g(f'v_mfma_f32_16x16x32_bf16 {acc(AK(i))}, {wq_loc(3*s+1)}, {B}, {c(AK(i))}')
            last_b = idx + D < len(seq)
            if i == 0:
                g(f'v_mfma_f32_16x16x32_bf16 {acc(AV(i))}, {B}, {wq_loc(3*s+2)}, {c(AV(i))}')
                if last_b:
                    rd(idx + D)
            else:
                g(f'v_mfma_f32_16x16x32_bf16 {acc(AV(i))}, {B}, {wq_loc(3*s+2)}, {c(AV(i))}')
                if last_b:
                    rd(idx + D)
                g(f'v_mfma_f32_16x16x32_bf16 {acc(AQ(i))}, {wq_loc(3*s)}, {B}, {c(AQ(i))}')
        return g

    def epi(i):
        e = Asm()
        e(f'ds_read_b64 v[{CT}:{CT+1}], v{VC} offset:{128*i}')
        e(f'ds_read_b128 v[{CT+2}:{CT+5}], v{VR} offset:{128*i}')
        e(f'ds_read_b128 v[{CT+6}:{CT+9}], v{VR} offset:{128*i+16}')
        for v in range(4):
            e(f'v_fmac_f32 v{AK(i)+v}, v{CT+1}, v{CSK+v}')
        if i:
            for v in range(4):
                e(f'v_fmac_f32 v{AQ(i)+v}, v{CT+1}, v{CSQ+v}')
        for v in range(4):
            e(f'v_mul_f32 v{AK(i)+v}, v{CT}, v{AK(i)+v}')
        if i:
            e(f'v_mul_f32 v{SC+i}, s26, v{CT}')
            for dd in range(2):
                e(f'v_cvt_pk_bf16_f32 v{QP+2*i+dd}, v{AQ(i)+2*dd}, v{AQ(i)+2*dd+1}')
        for dd in range(2):
            e(f'v_cvt_pk_bf16_f32 v{KP+2*i+dd}, v{AK(i)+2*dd}, v{AK(i)+2*dd+1}')
        for v in range(4):
            e(f'v_fmac_f32 v{AV(i)+v}, v{CT+2+2*v+1}, v{CSV}')
        for v in range(4):
            e(f'v_mul_f32 v{AV(i)+v}, v{CT+2+2*v}, v{AV(i)+v}')
        for dd in range(2):
            e(f'v_cvt_pk_bf16_f32 v{VP+2*i+dd}, v{AV(i)+2*dd}, v{AV(i)+2*dd+1}')
        return e

    def attn(pr):
        e = Asm()
        tl = (1 + 2 * pr, 2 + 2 * pr)
        for u, i in enumerate(tl):
            e(f'v_mfma_f32_16x16x16_bf16 v[{SS+8*u}:{SS+8*u+3}], v[{KP+2*i-2}:{KP+2*i-1}], v[{QP+2*i}:{QP+2*i+1}], 0')
            e(f'v_mfma_f32_16x16x16_bf16 v[{SS+8*u+4}:{SS+8*u+7}], v[{KP+2*i}:{KP+2*i+1}], v[{QP+2*i}:{QP+2*i+1}], 0')
        if pr == 0:
            e('s_lshl_b32 s38, s16, 16')
            e('s_lshl_b32 s39, s17, 10')
            e('s_add_u32 s38, s38, s39')
            e(f's_add_u32 s38, s38, {hx(O_[l])}')
        else:
            e('s_add_u32 s38, s38, 32768')
        for u, i in enumerate(tl):
            for c in range(4):
                r = SS + 8 * u + 2 * c
                e(f'v_cndmask_b32 v{TT+4*u+c}, v{r}, v{r+1}, s[28:29]')
        for u, i in enumerate(tl):
            for c in range(4):
                bias = BI + c if not (i == 1 and c < 2) else BI + 4 + c
                e(f'v_fma_f32 v{TT+4*u+c}, v{TT+4*u+c}, v{SC+i}, v{bias}')
        for u in range(2):
            e(f'v_max3_f32 v{MM+u}, v{TT+4*u}, v{TT+4*u+1}, v{TT+4*u+2}')
        for u in range(2):
            e(f'v_max_f32 v{MM+u}, v{MM+u}, v{TT+4*u+3}')
        e(f'v_permlane16_swap_b32 v{MM}, v{MM+1}')
        e(f'v_max_f32 v{MM}, v{MM}, v{MM+1}')
        e(f'v_mov_b32 v{MM+1}, v{MM}')
        e(f'v_permlane32_swap_b32 v{MM}, v{MM+1}')
        e(f'v_max_f32 v{MM}, v{MM}, v{MM+1}')
        e(f'v_mov_b32 v{MM+1}, v{MM}')
        e(f'v_permlane16_swap_b32 v{MM}, v{MM+1}')
        for u in range(2):
            for c in range(4):
                e(f'v_sub_f32 v{TT+4*u+c}, v{TT+4*u+c}, v{MM+u}')
        for u in range(2):
            for c in range(4):
                e(f'v_exp_f32 v{TT+4*u+c}, v{TT+4*u+c}')
        for u, i in enumerate(tl):
            e(f'v_cvt_pk_bf16_f32 v{SS+8*u}, v{TT+4*u}, v{TT+4*u+1}')
            e(f'v_cvt_pk_bf16_f32 v{SS+8*u+1}, v{TT+4*u+2}, v{TT+4*u+3}')
            e(f'v_perm_b32 v{PP+4*u}, v{SS+8*u}, v{SS+8*u}, v{SELA}')
            e(f'v_perm_b32 v{PP+4*u+1}, v{SS+8*u}, v{SS+8*u}, v{SELB}')
            e(f'v_perm_b32 v{PP+4*u+2}, v{SS+8*u+1}, v{SS+8*u+1}, v{SELA}')
            e(f'v_perm_b32 v{PP+4*u+3}, v{SS+8*u+1}, v{SS+8*u+1}, v{SELB}')
            e(f'v_add_f32 v{MM+2+u}, v{TT+4*u}, v{TT+4*u+1}')
            e(f'v_add_f32 v{TT+4*u+2}, v{TT+4*u+2}, v{TT+4*u+3}')
            e(f'v_mfma_f32_16x16x32_bf16 v[{OO+4*u}:{OO+4*u+3}], v[{VP+2*i-2}:{VP+2*i+1}], v[{PP+4*u}:{PP+4*u+3}], 0')
            e(f'v_add_f32 v{MM+2+u}, v{MM+2+u}, v{TT+4*u+2}')
        S0_, S1_ = MM + 2, MM + 3
        e(f'v_permlane16_swap_b32 v{S0_}, v{S1_}')
        e(f'v_add_f32 v{S0_}, v{S0_}, v{S1_}')
        e(f'v_mov_b32 v{S1_}, v{S0_}')
        e(f'v_permlane32_swap_b32 v{S0_}, v{S1_}')
        e(f'v_add_f32 v{S0_}, v{S0_}, v{S1_}')
        e(f'v_rcp_f32 v{S0_}, v{S0_}')
        e(f'v_mov_b32 v{S1_}, v{S0_}')
        e(f'v_permlane16_swap_b32 v{S0_}, v{S1_}')
        for u in range(2):
            for v in range(4):
                e(f'v_mul_f32 v{OO+4*u+v}, v{OO+4*u+v}, v{S0_+u}')
        for u in range(2):
            for dd in range(2):
                e(f'v_cvt_pk_bf16_f32 v{OS+2*u+dd}, v{OO+4*u+2*dd}, v{OO+4*u+2*dd+1}')
        e(f'v_permlane16_swap_b32 v{OS}, v{OS+2}')
        e(f'v_permlane16_swap_b32 v{OS+1}, v{OS+3}')
        e(f'buffer_store_dwordx4 v[{OS}:{OS+3}], v1, s[8:11], s38 offen sc1', tag='ost')
        return e

    def bar(*tags, lg=()):
        b = Asm()
        b.waitvm(*tags)
        if lg:
            b.waitlgkm(*lg)
        b('s_barrier')
        return b

    pf = cat(st_wo_f(), st_wgu((0, 1)))
    if l == 0:
        sg_, gl = front0(a, consts, AK, AV, AQ, CSQ, CSK, CSV, VC)
        tail = cat(epi(0), epi(1), epi(2), attn(0), epi(3), epi(4), attn(1))
        a('s_waitcnt lgkmcnt(0)')
        if cfg.ssig == 16:
            a.waitvm('slab', 'z')
        a('s_barrier')
        if cfg.ssig == 16:
            a.group(sg_)
        pf1, rest = st_wo().ins, []
    else:
        d1, d2 = vm_split(d, 14)
        a.extend(d1)
        seq = [(i, s) for i in range(5) for s in range(16)]
        g = gemm(seq, {0: bar('x0'), 16: bar('x1'), 32: bar('x2', lg=('tab',)), 48: bar('x3'), 64: bar('x4')})
        parts = split_mfma(g.ins, (32, 80, 128, 176))
        d2a, d2b = vm_split(d2, 6)
        a.merge(parts[0], d2a, 0, 24)
        stamp(a, 'p1.1 st0')
        a.merge(parts[1], mix(d2b, st), 0, 36)
        stamp(a, 'p1.1 st1')
        a.merge(parts[2], cat(epi(0), epi(1)), 0, 48)
        stamp(a, 'p1.1 st2')
        at = attn(0).ins
        na = len(at) // 3
        a.merge(parts[3], cat(epi(2), at[:na]), 3, 48)
        stamp(a, 'p1.1 st3')
        a.merge(parts[4], cat(at[na:], epi(3)), 0, 48)
        stamp(a, 'p1.1 gemm')
        a('s_waitcnt lgkmcnt(0)')
        a('s_barrier')
        tail = cat(epi(4), attn(1))
        pf1, rest = vm_split(pf, 9)
    a.extend(mix(tail[:-6], pf1))
    a.extend(tail[-6:])
    stamp(a, f'p1.{l} stored')
    r1, r2 = vm_split(rest, 8)
    a.extend(r1)
    if l == 0:
        wt = wo_tr(28).ins
        k = len(wt) - cfg.wtlate
        a.extend(wt[:k])
        a.extend(gl)
    a('s_lshl_b32 s30, s16, 8')
    a(f's_add_u32 s30, s30, {hx(F1(l))}')
    a('v_mov_b32 v3, 1')
    a.waitvm('ost')
    a('s_barrier')
    signal(a, 's30', 3)
    stamp(a, f'p1.{l} signalled')
    if l == 0:
        a.extend(wt[k:])
        a.extend(g0_check())
        a('s_barrier')
        stamp(a, 'p1.0 g0')
        r2 = cat(st_wgu((0, 1)), st_wd(range(8, 8 + cfg.wdearly)))
    return r2


def p2(a, l, r2):
    X = X0 if l == 0 else X2
    VD = 7
    BF, RS, AC, AR, PK = 28, 92, 100, 116, 148
    a(f'v_add_u32 v8, {LDS_WO}, v1')
    a('s_lshr_b32 s30, s3, 1')
    a('s_lshl_b32 s31, s18, 1')
    a('s_add_u32 s30, s30, s31')
    a('s_lshl_b32 s30, s30, 15')
    a('s_and_b32 s31, s3, 1')
    a('s_lshl_b32 s31, s31, 8')
    a('s_add_u32 s30, s30, s31')
    a(f's_add_u32 s31, s30, {hx(O_[l])}')
    a('s_lshl_b32 s32, s19, 12')
    a('s_add_u32 s30, s30, s32')
    a(f's_add_u32 s32, s30, {hx(X)}')
    a(f's_add_u32 s33, s30, {hx(X1_[l])}')
    a('s_lshl_b32 s34, s18, 8')
    a(f's_add_u32 s35, s34, {hx(F2(l))}')
    a(f's_add_u32 s34, s34, {hx(F1(l))}')
    a('s_lshl_b32 s36, s18, 2')
    a('s_add_u32 s36, s36, s3')
    a('s_lshl_b32 s36, s36, 10')
    a('s_lshl_b32 s37, s19, 7')
    a('s_add_u32 s36, s36, s37')
    a(f's_add_u32 s36, s36, {hx(STB[l])}')
    a('v_bfe_u32 v9, v0, 4, 1')
    a('v_lshlrev_b32 v9, 2, v9')
    a('v_and_b32 v10, 15, v0')
    a('v_lshl_add_u32 v9, v10, 3, v9')
    if l == 0:
        a('v_lshlrev_b32 v10, 10, v10')
        a('v_lshrrev_b32 v11, 4, v0')
        a('v_lshl_add_u32 v10, v11, 4, v10')
        a('s_lshl_b32 s32, s18, 2')
        a('s_add_u32 s32, s32, s3')
        a('s_lshl_b32 s32, s32, 14')
        a('s_lshl_b32 s37, s19, 7')
        a('s_add_u32 s32, s32, s37')
        a(f'buffer_load_dwordx4 v[{RS}:{RS+3}], v10, s[60:63], s32 offen')
        a(f'buffer_load_dwordx4 v[{RS+4}:{RS+7}], v10, s[60:63], s32 offen offset:64')
    if not (cfg.xp & 32 and l):
        a.extend(r2)
    a.waitvm('wo')
    a('s_waitcnt lgkmcnt(0)')
    stamp(a, f'p2.{l} prepoll')
    poll_wg(a, 's34', 1, 'off', 8)
    stamp(a, f'p2.{l} start')
    sc = ' sc1'
    ld = Asm()
    for s in range(16):
        ld(f'buffer_load_dwordx4 v[{BF+4*s}:{BF+4*s+3}], v{VD}, s[8:11], s31 offen offset:{2048*(s&1)}{sc}')
        if s & 1 and s < 15:
            ld('s_add_u32 s31, s31, 4096')
    if l:
        ld(f'buffer_load_dwordx4 v[{RS}:{RS+3}], v{VD}, s[8:11], s32 offen{sc}')
        ld(f'buffer_load_dwordx4 v[{RS+4}:{RS+7}], v{VD}, s[8:11], s32 offen offset:2048{sc}')
    l1, l2 = vm_split(ld, 10)
    a.extend(l1)
    g = Asm()

    def rd(idx):
        dd = AR + 4 * (idx & 7)
        g(f'ds_read_b128 v[{dd}:{dd+3}], v8 offset:{idx*1024}', tag=f'r{idx}')
    for idx in range(6):
        rd(idx)
    for idx in range(64):
        s, t = idx >> 2, idx & 3
        dd = AR + 4 * (idx & 7)
        c = f'v[{AC+4*t}:{AC+4*t+3}]'
        if idx & 1 == 0:
            g.waitlgkm(f'r{idx+1}')
        g(f'v_mfma_f32_16x16x32_bf16 {c}, v[{dd}:{dd+3}], v[{BF+4*s}:{BF+4*s+3}], {c if s else 0}')
        if idx + 6 < 64:
            rd(idx + 6)
    a.merge(g, l2, 0, 24)
    stamp(a, f'p2.{l} gemm')
    for p in range(2):
        for dd in range(4):
            r = AC + 8 * p + 2 * dd
            G.unpack_add(a, r, r + 1, RS + 4 * p + dd, 156)
            a(f'v_cvt_pk_bf16_f32 v{PK+4*p+dd}, v{r}, v{r+1}')
        a(f'buffer_store_dwordx4 v[{PK+4*p}:{PK+4*p+3}], v{VD}, s[8:11], s33 offen offset:{2048*p} sc1', tag='xst')
    a('v_mov_b32 v156, 0')
    a('v_mov_b32 v157, 0')
    for dd in range(8):
        a(f'v_dot2_f32_bf16 v156, v{PK+dd}, s25, v156')
    for dd in range(8):
        a(f'v_dot2_f32_bf16 v157, v{PK+dd}, v{PK+dd}, v157')
    a('v_permlane16_swap_b32 v156, v157')
    a('v_add_f32 v156, v156, v157')
    a('v_mov_b32 v157, v156')
    a('v_permlane32_swap_b32 v156, v157')
    a('v_add_f32 v156, v156, v157')
    a('buffer_store_dword v156, v9, s[8:11], s36 offen sc1', tag='xst')
    stamp(a, f'p2.{l} stored')
    a('s_barrier')
    w1, w2 = vm_split(st_wgu((2, 3, 4)), 8)
    a.extend(w1)
    a('v_mov_b32 v3, 1')
    a.waitvm('xst')
    a('s_barrier')
    signal(a, 's35', 3)
    stamp(a, f'p2.{l} signalled')
    if not cfg.xp & 32:
        a.extend(w2)


def p34(a, l):
    XF = 128
    ACC = [16, 32, 48]
    AR = 80
    TM = 112
    HP = 120
    C0, C1, IA2 = 12, 13, 14
    a('v_and_b32 v4, 31, v0')
    a('v_lshrrev_b32 v5, 5, v0')
    a('v_lshrrev_b32 v6, 4, v4')
    a('v_lshlrev_b32 v6, 10, v6')
    a('v_lshl_add_u32 v6, v5, 9, v6')
    a('v_and_b32 v7, 15, v4')
    a('v_lshl_add_u32 v6, v7, 3, v6')
    a('v_add_u32 v8, 65536, v1')
    a('v_add_u32 v9, 0x20000, v1')
    a('v_lshlrev_b32 v10, 8, v0')
    a('s_lshl_b32 s30, s20, 2')
    a('s_add_u32 s30, s30, s3')
    a('s_lshl_b32 s31, s30, 15')
    a(f's_add_u32 s31, s31, {hx(X1_[l])}')
    a('s_lshl_b32 s32, s30, 11')
    a(f's_add_u32 s32, s32, {hx(STB[l])}')
    a('s_mul_i32 s33, s30, 114688')
    a('s_mul_i32 s34, s21, 7168')
    a('s_add_u32 s33, s33, s34')
    a(f's_add_u32 s33, s33, {hx(H_[l])}')
    a('s_lshl_b32 s34, s20, 9')
    a(f's_add_u32 s34, s34, {hx(F2(l))}')
    a('s_lshl_b32 s35, s20, 3')
    a('s_lshr_b32 s36, s3, 1')
    a('s_lshl_b32 s36, s36, 2')
    a('s_add_u32 s35, s35, s36')
    a('s_lshr_b32 s36, s21, 2')
    a('s_add_u32 s35, s35, s36')
    a('s_lshl_b32 s35, s35, 8')
    a('s_lshl_b32 s36, s22, 2')
    a('s_add_u32 s36, s36, s3')
    a('s_lshl_b32 s36, s36, 8')
    a.waitvm('wg0', 'wg1')
    stamp(a, f'p3.{l} prepoll')
    poll_wg(a, 's34', 3, 'v10', 8, second='256')
    stamp(a, f'p3.{l} start')
    ld = Asm()
    for j in range(4):
        ld(f'buffer_load_dwordx2 v[{TM+2*j}:{TM+1+2*j}], v6, s[8:11], s32 offen offset:{128*j} sc1')
    for s in range(32):
        ld(f'buffer_load_dwordx4 v[{XF+4*s}:{XF+4*s+3}], v1, s[8:11], s31 offen offset:{1024*(s&3)} sc1')
        if (s & 3) == 3 and s < 31:
            ld('s_add_u32 s31, s31, 4096')
    l1, l2 = vm_split(ld, 13)
    a.extend(l1)
    stt = Asm()
    for j in range(1, 4):
        stt(f'v_add_f32 v{TM}, v{TM}, v{TM+2*j}')
        stt(f'v_add_f32 v{TM+1}, v{TM+1}, v{TM+1+2*j}')
    stt(f'v_permlane32_swap_b32 v{TM}, v{TM+1}')
    stt(f'v_add_f32 v{TM}, v{TM}, v{TM+1}')
    stt(f'v_mov_b32 v{TM+1}, v{TM}')
    stt(f'v_permlane32_swap_b32 v{TM}, v{TM+1}')
    G.stat_finalize(stt, TM, TM + 1, TM + 2, 24)
    k0 = -2.0 * math.sqrt(2.0 / math.pi) * math.log2(math.e)
    k1 = k0 * 0.044715
    stt(f'v_cvt_pk_bf16_f32 v{TM+4}, v{TM+1}, v{TM+1}')
    stt(f'v_mul_f32 v{TM+2}, v{TM}, v{TM}')
    stt(f'v_and_b32 v{TM+5}, 0xffff0000, v{TM+4}')
    stt(f'v_mul_f32 v{C0}, {hx(f2u(k0))}, v{TM}')
    stt(f'v_sub_f32 v{TM+1}, v{TM+1}, v{TM+5}')
    stt(f'v_mul_f32 v{TM+3}, v{TM+2}, v{TM}')
    stt(f'v_mov_b32 v{MBZ}, 0')
    stt(f'v_cvt_pk_bf16_f32 v{TM+5}, v{TM+1}, v{MBZ}')
    stt(f'v_mul_f32 v{C1}, {hx(f2u(k1))}, v{TM+3}')
    stt(f'v_rcp_f32 v{IA2}, v{TM+2}')
    for r in (1, 4, 5, 8, 9):
        stt(f'v_mov_b32 v{MBZ+r}, 0')
    stt('v_cmp_gt_u32 vcc, 32, v0')
    for dd in range(2):
        stt(f'v_cndmask_b32 v{MBZ+2+dd}, v{MBZ}, v{TM+4+dd}, vcc')
        stt(f'v_cndmask_b32 v{MBZ+6+dd}, v{TM+4+dd}, v{MBZ}, vcc')
        stt(f'v_cndmask_b32 v{CF[1]+2+dd}, v{MBZ}, v{CF[1]+2+dd}, vcc')

    seq = [(T, s) for s in range(32) for T in range(2)] + [(T, 32) for T in range(2)]
    for T in range(2, 7):
        seq += [(T, s) for s in range(33)]
    rseq = [x for x in seq if x[1] < 32]
    g = Asm()
    D = 6
    rpos = {x: k for k, x in enumerate(rseq)}

    def rd(k):
        T, s = rseq[k]
        if (T, s) == (2, 0):
            g.waitvm('wg2', 'wg3', 'wg4')
            g('s_barrier')
        if (T, s) == (5, 0):
            g.waitvm('wg5', 'wg6')
            g('s_barrier')
        dd = AR + 4 * (k & 7)
        off = slot(T) + s * 1024
        base = 'v1' if off < 65536 else ('v8' if off < 131072 else 'v9')
        g(f'ds_read_b128 v[{dd}:{dd+3}], {base} offset:{off & 65535}', tag=f'r{k}')
    for k in range(D):
        rd(k)
    accof = {T: T % 3 for T in range(7)}
    for (T, s) in seq:
        ac = ACC[accof[T]]
        c = f'v[{ac}:{ac+15}]'
        if s == 32:
            mb = MBZ + 4 * ((T >> 1) & 1) + (0 if T & 1 else 2)
            g(f'v_mfma_f32_32x32x16_bf16 {c}, v[{CF[T>>2]}:{CF[T>>2]+3}], v[{mb}:{mb+3}], {c}')
            continue
        k = rpos[(T, s)]
        dd = AR + 4 * (k & 7)
        if k & 1 == 0 and k + 1 < len(rseq):
            g.waitlgkm(f'r{k+1}')
        g(f'v_mfma_f32_32x32x16_bf16 {c}, v[{dd}:{dd+3}], v[{XF+4*s}:{XF+4*s+3}], {c if s else 0}')
        if k + D < len(rseq):
            rd(k + D)

    def epi(T):
        e = Asm()
        ac = ACC[accof[T]]
        steps = [lambda x: f'v_mul_f32 v{TM+x}, v{ac+x}, v{ac+x}',
                 lambda x: f'v_fma_f32 v{TM+x}, v{TM+x}, v{C1}, v{C0}',
                 lambda x: f'v_mul_f32 v{TM+x}, v{TM+x}, v{ac+x}',
                 lambda x: f'v_exp_f32 v{TM+x}, v{TM+x}',
                 lambda x: f'v_mul_f32 v{ac+x}, v{ac+x}, v{ac+8+x}',
                 lambda x: f'v_fma_f32 v{TM+x}, v{TM+x}, v{IA2}, v{IA2}',
                 lambda x: f'v_rcp_f32 v{TM+x}, v{TM+x}',
                 lambda x: f'v_mul_f32 v{ac+x}, v{ac+x}, v{TM+x}']
        ev = sorted(((8 * x + [0, 1, 2, 3, 4, 13, 15, 25][k], x, k) for x in range(8) for k in range(8)))
        for _, x, k in ev:
            e(steps[k](x))
            if k == 7 and x & 1:
                e(f'v_cvt_pk_bf16_f32 v{HP+(x>>1)}, v{ac+x-1}, v{ac+x}')
        if T == 4:
            e('s_add_u32 s33, s33, 4096')
        e(f'buffer_store_dwordx4 v[{HP}:{HP+3}], v1, s[8:11], s33 offen offset:{1024*(T&3)} sc1', tag=f'h{T}')
        return e

    def sig(st):
        e = Asm()
        e(f's_add_u32 s38, s35, {hx(F3(l, st))}')
        e('v_mov_b32 v3, 1')
        if not cfg.xp & 8:
            e.waitvm(*[f'h{T}' for T in cfg.stages[st]])
        if not cfg.xp & 4:
            signal(e, 's38', 3, wave0_only=False)
        return e

    parts = split_mfma(g.ins, (66, 99, 132, 165, 198))
    a.merge(parts[0], cat(l2, st_csf(), stt), 0, 60)
    stamp(a, f'p3.{l} T01')
    a('s_barrier')
    epis = [epi(T) for T in range(7)]
    es = cat(*epis[:6])
    ne = len(es)
    cut = [ne * k // 5 for k in range(6)]
    ep = [es[cut[k]:cut[k + 1]] for k in range(5)]
    wd_list = st_wd(range(8) if l else list(range(8)) + list(range(8 + cfg.wdearly, 28))).ins
    nwd = len(wd_list)
    extra = [cat(st_wgu((5, 6))), wd_list[:nwd // 2], wd_list[nwd // 2:], [], []]
    if l == 0:
        extra = [cat(st_wgu((5, 6))), wd_list[:nwd // 3], wd_list[nwd // 3:2 * nwd // 3],
                 wd_list[2 * nwd // 3:], []]
    nst = len(cfg.stages)
    last_tile = [max(x) for x in cfg.stages]
    E0, P0 = 165, 178
    NA, NB = cfg.NA, (cfg.NB if l == 1 else 16)
    ko = p4_korder()
    pseq = [(t, s) for st in range(len(ko) - 2) for t in (1, 0) for s in ko[st]]
    if cfg.lastmix:
        pseq += [(t, s) for t in (1, 0) for st in (-2, -1) for s in ko[st]]
    else:
        pseq += [(t, s) for st in (-2, -1) for t in (1, 0) for s in ko[st]]
    stage_of = {s: st for st in range(len(ko)) for s in ko[st]}

    def bloc(j):
        if j < NA:
            return f'a[{224+4*j}:{227+4*j}]'
        r = 128 + 4 * ((j - NA) % NB)
        return f'v[{r}:{r+3}]'

    def free(j):
        if j < NA:
            return 0
        if j - NA < NB:
            return 132 + (j - NA) + 1
        return P0 + 2 * (j - NB) + 2
    store_t = lambda T: (T + 1) * 27.5 if T < 6 else P0
    sig_t = [store_t(T) + cfg.sigd for T in last_tile]
    chk_t = [x + cfg.vis + cfg.pd for x in sig_t]
    items = []

    def at(t, lst):
        items.append((int(t), len(items), lst.ins if isinstance(lst, Asm) else lst))
    su = Asm()
    su('s_lshl_b32 s39, s22, 1')
    su('s_lshr_b32 s52, s3, 1')
    su('s_add_u32 s39, s39, s52')
    su('s_xor_b32 s52, s39, 1')
    su('s_mul_i32 s53, s3, 28672')
    su(f's_add_u32 s53, s53, {hx(H_[l])}')
    su('s_mul_i32 s54, s39, 114688')
    su('s_mul_i32 s55, s52, 114688')
    su('s_add_u32 s54, s54, s53')
    su('s_add_u32 s55, s55, s53')
    if cfg.xp & 16:
        su('s_mul_i32 s53, s3, 28672')
        su(f's_add_u32 s54, s53, {hx(WD_F)}')
        su(f's_add_u32 s55, s53, {hx(WD_F + 114688)}')
        su('s_nop 0')
    su('s_lshl_b32 s30, s23, 1')
    su('s_and_b32 s31, s3, 1')
    su('s_add_u32 s30, s30, s31')
    su('s_lshl_b32 s31, s39, 15')
    su('s_lshl_b32 s32, s30, 11')
    su('s_add_u32 s31, s31, s32')
    su(f's_add_u32 s32, s31, {hx(X1_[l])}')
    su('v_lshlrev_b32 v6, 10, v5')
    su('v_lshl_add_u32 v6, v4, 4, v6')
    for k in range(0, len(su.ins), 2):
        at(70 + k, su.ins[k:k + 2])
    RS, PK = 96, 104
    wq = st_wqkv(range(24)).ins if l == 0 else []
    wq_vm = [k for k, i in enumerate(wq) if i.kind == 'vmem']
    wq_parts = [wq[(wq_vm[k - 1] + 1 if k else 0):wq_vm[k] + 1] for k in range(len(wq_vm))]
    wq_free = lambda f: E0 if f < 16 else P0 + 2 * NA + 2
    t = chk_t[0]
    j = wk = 0
    rs_done = False
    checked = set()
    while j < 56 or (wk < len(wq_parts) and t < P0 + 110):
        use = P0 + (2 * j if j < 56 - cfg.fin else 56 - cfg.fin + j)
        if j < 56:
            st = stage_of[pseq[j][1]]
            ok = t >= free(j) and t >= chk_t[st] and use - t <= cfg.la
            forced = t + cfg.gap > use - 1
            if ok or forced:
                tt = min(max(t, free(j)), use - 1)
                if st not in checked:
                    checked.add(st)
                    e = Asm()
                    e(f's_add_u32 s56, s36, {hx(F3(l, st))}')
                    e(f's_load_dword s{92+st}, s[4:5], s56 glc', raw=True)
                    at(tt - cfg.pd, e)
                    e = Asm()
                    e(f's_add_u32 s56, s36, {hx(F3(l, st))}')
                    e('s_waitcnt lgkmcnt(0)')
                    if not cfg.xp & 4:
                        poll_check(e, 11, 's56', 8, scalar=92 + st)
                    at(tt, e)
                tk, s_ = pseq[j]
                e = Asm()
                e(f's_add_u32 s53, s{55 if tk else 54}, {s_*1024}')
                e(f'buffer_load_dwordx4 {bloc(j)}, v1, s[8:11], s53 offen sc1')
                at(tt, e)
                j += 1
                t += cfg.gap
                continue
        if not rs_done and t >= P0 + 4:
            rs_done = True
            e = Asm()
            e(f'buffer_load_dwordx4 v[{RS}:{RS+3}], v6, s[8:11], s32 offen sc1')
            e(f'buffer_load_dwordx4 v[{RS+4}:{RS+7}], v6, s[8:11], s32 offen offset:512 sc1')
            at(t, e)
            t += 2 * cfg.gap
            continue
        if wk < len(wq_parts) and t >= wq_free(wk):
            at(t, wq_parts[wk])
            wk += 1
        t += cfg.gap
    if not rs_done:
        e = Asm()
        e(f'buffer_load_dwordx4 v[{RS}:{RS+3}], v6, s[8:11], s32 offen sc1')
        e(f'buffer_load_dwordx4 v[{RS+4}:{RS+7}], v6, s[8:11], s32 offen offset:512 sc1')
        at(min(t, P0 + 100), e)
    for st in range(nst):
        at(sig_t[st], sig(st))
    items.sort()
    if cfg.verbose:
        print('plan', l, [(x[0], (x[2][-1].text.split(',')[0].replace('buffer_load_dwordx4 ', '') if hasattr(x[2][-1], 'text') else 'G' + x[2][0].text[-6:])) for x in items if x[0] > 90])

    def timed(lst, lo, hi):
        out = []
        m = lo - 1
        for i in lst:
            out.append(i)
            if i.kind == 'mfma':
                m += 1
                for x in items:
                    if x[0] == m:
                        out.extend(x[2])
        assert m == hi - 1, (m, hi)
        return out
    for k in range(5):
        a.merge(timed(parts[1 + k], 33 * k, 33 * k + 33), mix(ep[k], extra[k]), 1 if k == 0 else 0, 33, cap=24)
        stamp(a, f'p3.{l} T{k+2}')
    ACC4 = [32, 48, 64, 80]
    su2 = Asm()
    for u in range(1, 4):
        su2(f's_xor_b32 s37, s3, {u}')
        su2('s_mul_i32 s37, s37, 12288')
        su2(f's_add_u32 s37, s37, {65536 + (u-1)*4096}')
        su2(f'v_add_u32 v{6+u}, s37, v1')
    su2('s_mul_i32 s37, s3, 12288')
    su2('s_add_u32 s37, s37, 65536')
    su2('v_add_u32 v10, s37, v1')
    e6 = epis[6].ins
    n6 = len(e6) - 1
    for k in range(13):
        a.extend(e6[n6 * k // 13:n6 * (k + 1) // 13])
        if k == 12:
            a.extend(e6[n6:])
        for x in items:
            if (E0 <= x[0] < P0 and k == 12) if cfg.elate else x[0] == E0 + k:
                a.extend(x[2])
    stamp(a, f'p4.{l} start')

    def spill(e, u):
        for i in range(4):
            r = ACC4[u] + 4 * i
            e(f'ds_write_b128 v{6+u}, v[{r}:{r+3}] offset:{1024*i}', tag='sp')
    last1 = max(k for k, (t, s) in enumerate(pseq) if t == 1)
    started = set()
    spq = []
    for u in (3, 2, 1):
        e = Asm()
        spill(e, u)
        for i in e.ins:
            i.note = u
        spq += e.ins
    order = [(idx, f) for idx in range(56 - cfg.fin) for f in (1, 0)]
    order += [(idx, f) for f in (1, 0) for idx in range(56 - cfg.fin, 56)]
    for m, (idx, f) in enumerate(order):
        t, s = pseq[idx]
        u = 2 * t + f
        c = f'v[{ACC4[u]}:{ACC4[u]+15}]'
        a(f'v_mfma_f32_32x32x16_bf16 {c}, {wd_loc(s, f)}, {bloc(idx)}, {c if u in started else 0}')
        started.add(u)
        for x in items:
            if x[0] == P0 + m:
                a.extend(x[2])
        if m < 6:
            a.extend(su2.ins[3 * m:3 * m + 3])
        if l == 1 and m in (19, 47, 79):
            stamp(a, f'p4.1 idx{m//2}')
        if m >= 2 * last1 + 2 and spq and (spq[0].note != 1 or m >= 113 - cfg.fin):
            i = spq.pop(0)
            i.note = None
            a.ins.append(i)
    for i in spq:
        i.note = None
        a.ins.append(i)
    wq_early = wq
    stamp(a, f'p4.{l} gemm')
    for dd in range(8):
        G.unpack_add(a, ACC4[0] + 2 * dd, ACC4[0] + 2 * dd + 1, RS + dd, 112)
    a('s_waitcnt lgkmcnt(0)')
    a('s_barrier')
    stamp(a, f'p4.{l} bar')
    PR = 128
    for u in range(3):
        for i in range(4):
            r = PR + 16 * u + 4 * i
            a(f'ds_read_b128 v[{r}:{r+3}], v10 offset:{4096*u + 1024*i}')
    for u in range(3):
        for e in range(16):
            a(f'v_add_f32 v{ACC4[0]+e}, v{ACC4[0]+e}, v{PR+16*u+e}')
    for dd in range(8):
        a(f'v_cvt_pk_bf16_f32 v{PK+dd}, v{ACC4[0]+2*dd}, v{ACC4[0]+2*dd+1}')
    if l == 0:
        a(f's_add_u32 s32, s31, {hx(X2)}')
        a(f'buffer_store_dwordx4 v[{PK}:{PK+3}], v6, s[8:11], s32 offen sc1', tag='xst')
        a(f'buffer_store_dwordx4 v[{PK+4}:{PK+7}], v6, s[8:11], s32 offen offset:512 sc1', tag='xst')
        a('v_mov_b32 v112, 0')
        a('v_mov_b32 v113, 0')
        for dd in range(8):
            a(f'v_dot2_f32_bf16 v112, v{PK+dd}, s25, v112')
        for dd in range(8):
            a(f'v_dot2_f32_bf16 v113, v{PK+dd}, v{PK+dd}, v113')
        a('v_lshlrev_b32 v7, 2, v5')
        a('v_lshl_add_u32 v7, v4, 3, v7')
        a('s_lshl_b32 s32, s39, 12')
        a('s_lshl_b32 s33, s30, 8')
        a('s_add_u32 s32, s32, s33')
        a(f's_add_u32 s32, s32, {hx(STA[1])}')
        a('v_permlane32_swap_b32 v112, v113')
        a('v_add_f32 v112, v112, v113')
        a('buffer_store_dword v112, v7, s[8:11], s32 offen sc1', tag='xst')
        stamp(a, f'p4.{l} stored')
        rest = Asm()
        if wk < len(wq_vm):
            rest.extend(wq_early[(wq_vm[wk - 1] + 1 if wk else 0):])
        rest.extend(st_wqkv(range(24, 48)))
        r1, r2 = vm_split(rest, 8)
        a.extend(r1)
        a('s_lshl_b32 s30, s22, 8')
        a(f's_add_u32 s30, s30, {hx(F4())}')
        a('v_mov_b32 v3, 1')
        a.waitvm('xst')
        a('s_barrier')
        signal(a, 's30', 3)
        stamp(a, f'p4.{l} signalled')
        if not cfg.xp & 32:
            a.extend(r2)
    else:
        a('v_lshlrev_b32 v7, 5, v5')
        a('v_lshl_add_u32 v7, v4, 10, v7')
        a('s_lshl_b32 s32, s39, 15')
        a('s_lshl_b32 s33, s30, 6')
        a('s_add_u32 s32, s32, s33')
        a(f'buffer_store_dwordx4 v[{PK}:{PK+3}], v7, s[12:15], s32 offen')
        a(f'buffer_store_dwordx4 v[{PK+4}:{PK+7}], v7, s[12:15], s32 offen offset:16')
        stamp(a, f'p4.{l} stored')


def gen_main():
    a = Asm()
    name = NAME + '_kernel'
    header(a, name)
    a('s_load_dwordx16 s[72:87], s[0:1], 0')
    a('s_load_dwordx4 s[88:91], s[0:1], 64')
    a('v_lshrrev_b32 v3, 6, v0')
    a('v_and_b32 v0, 63, v0')
    a('v_readfirstlane_b32 s3, v3')
    a('v_lshlrev_b32 v1, 4, v0')
    if cfg.stamp:
        a('v_mov_b32 v2, 0')
        a('s_memrealtime s[70:71]')
    stamp(a, 'entry')
    role(a, 16, 17, cfg.e1, 5, 3)
    a('s_lshl_b32 s17, s17, 2')
    a('s_add_u32 s17, s17, s3')
    front_early(a)
    a(f's_mov_b32 s24, {hx(f2u(1e-5))}')
    a(f's_mov_b32 s25, {hx(ONES)}')
    a(f's_mov_b32 s26, {hx(f2u(0.25 * math.log2(math.e)))}')
    a('s_mov_b32 s28, 0xaaaaaaaa')
    a('s_mov_b32 s29, 0xaaaaaaaa')
    if cfg.tlb:
        a('s_waitcnt lgkmcnt(0)')
        for k, r in enumerate((76, 80, 82, 84)):
            a(f's_load_dword s{(6, 7, 100, 101)[k]}, s[{r}:{r+1}], 0', raw=True)
    srd(a, 60, 72, 2048 * 1024)
    srd(a, 92, 74, 512 * 3072)
    srd(a, 8, 90, WS_BYTES)
    srd(a, 12, 86, 2048 * 1024)
    a('s_mov_b32 s4, s90')
    a('s_mov_b32 s5, s91')
    a(f's_mov_b32 s78, {512 * 1024}')
    a('s_mov_b32 s79, 0x00020000')
    a('s_mov_b32 s90, 256')
    a('s_mov_b32 s91, 0x00020000')
    stamp(a, 'p1.0 start')
    for l in range(2):
        p2(a, l, p1(a, l))
        p34(a, l)
    if cfg.stamp:
        a('s_waitcnt vmcnt(0)')
        stamp(a, 'end')
        a('s_memrealtime s[72:73]')
        a('s_waitcnt lgkmcnt(0)')
        a('v_writelane_b32 v2, s70, 62')
        a('v_writelane_b32 v2, s72, 63')
        a('s_lshl_b32 s30, s2, 2')
        a('s_add_u32 s30, s30, s3')
        a('s_lshl_b32 s30, s30, 8')
        a(f's_add_u32 s30, s30, {hx(STAMPS)}')
        a('v_lshlrev_b32 v3, 2, v0')
        a('buffer_store_dword v2, v3, s[8:11], s30 offen')
    footer(a, name)
    return name, a.finish(), dict(vgpr=256, acc=256, lds=163840)


def assemble(name, body):
    out = []
    for line in open('cdna_kernels/' + NAME + '.s.ref').read().split('\n'):
        if '@launch' in line:
            out.append('; @launch grid=(256,1,1) block=(256,1,1) lds=163840')
        elif line.startswith(';'):
            out.append(line)
        else:
            break
    out += ['.amdgcn_target "amdgcn-amd-amdhsa--gfx950"', '.text', f'.globl {name}', body, '.section .rodata,"a"',
            '.p2align 6', f'.amdhsa_kernel {name}', '  .amdhsa_next_free_vgpr 512', '  .amdhsa_next_free_sgpr 102',
            '  .amdhsa_accum_offset 256', '  .amdhsa_group_segment_fixed_size 0', '  .amdhsa_kernarg_size 80',
            '  .amdhsa_user_sgpr_count 2', '  .amdhsa_user_sgpr_kernarg_segment_ptr 1',
            '  .amdhsa_system_sgpr_workgroup_id_x 1', '  .amdhsa_float_denorm_mode_32 3', '.end_amdhsa_kernel']
    return '\n'.join(out) + '\n'


def main():
    path = sys.argv[1]
    for arg in sys.argv[2:]:
        k, v = arg.split('=')
        assert hasattr(cfg, k), k
        setattr(cfg, k, eval(v))
    name, body, _ = gen_main()
    text = assemble(name, body)
    open(path, 'w').write(text)
    open(path + '.names', 'w').write(repr(stamp_names))
    print('wrote', path, len(text), 'bytes', spin_names)


if __name__ == '__main__':
    main()
```

```python
import sys
import math
sys.path.insert(0, 'dev')
from asmlib import Asm, Ins
import gen1 as G
from gen1 import (WQKV_F, WO_F, WGU_F, WD_F, CS_QKV, X0, O_, X1_, X2, H_, STA, STB, WS_BYTES, ONES, f2u, hx, srd,
                  header, footer, NAME)

CSF = 0x760000
DUMMY = 0x2400000
FLAGS = 0x2300000
STAMPS = 0x3000000
SPIN = 100000


def F1(l): return FLAGS + (l * 32) * 256
def F2(l): return FLAGS + (64 + l * 32) * 256
def F4(): return FLAGS + 128 * 256
def F3(l, st): return FLAGS + (160 + (l * 7 + st) * 128) * 256


G0 = FLAGS + 1952 * 256
GWO, GGU, GWD, GWQ, GDUM = G0, G0 + 8 * 256, G0 + 24 * 256, G0 + 32 * 256, G0 + 40 * 256
LDS_SLAB = 81920
LDS_RING = 114688
LDS_CSR = 81920 + 1024


class Cfg:
    stamp = False
    e1 = 1
    e2 = 1
    e3 = 1
    e4 = 0
    stages = ((0, 1), (2,), (3,), (4,), (5,), (6,))
    spin = False
    skip = ()
    touch = True
    wdearly = 6
    t0 = False
    t1 = False
    t2 = False
    only = None
    PF = 14
    NB = 16
    fine = True
    sw = (-1, -1, -1, -1, 0, 1, 2, 3, 4, 5, 6, 7, 8, 9, 10, 11)
    sx1 = (-1, -1, -1, -1, -1)
    sx2 = (1, 1, 2, 2, 3)
    sx3 = (3, 4, 4, 5, 5)
    sld = (0, 1, 2, 3, 4, 5, 6, 7)
    sst = (4, 5, 6, 7, 8, 9, 10, 11)
    xp = 0
    ssc = ' sc1'
    npf0 = 34
    ntx = ''
    ntw = ''
    nts = ''
    tlb = False
    rt = False
    wtlate = 16
    spin_s = True
    tlb2 = -1
    elate = False
    NA = 8
    lastmix = False
    sigd = 20
    vis = 32
    pd = 16
    gap = 2.4
    la = 60
    fin = 4
    sp2 = 4
    verbose = False
    sg0 = 15
    g0pos = 0
    ssig = 16
    wsc = ' sc1'
    spoll = True
    PD = 8
    s5 = 4
    s6 = 10
    dbg = None
    ks = True
    segs = ((0, 0), (1, 0), (2, 0), (0, 1), (1, 1), (2, 1), (3, 0), (3, 1), (4, 0), (4, 1))
    bars = {0: '00', 1: '10', 2: '20', 3: '01', 4: '11 21', 6: '30 31', 8: '40 41'}
    tabp = 4
    lord = '00 10 20 st 01 wq 11 21 30 31 40 41 wo'
    nwin = 20
    npre = 10
    lgap = 4.5
    lead = 24
    lmin = 2
    vt = ((40, 68), (80, 104), (104, 128), (128, 144), (144, 196), (196, 224))
    w1set = (0, 1, 2)
    npf1 = 9
    apoll = 6
    nod = 0
    nodm = 'a'
    pw = 0


cfg = Cfg()
nstamp = [0]
stamp_names = []
spin_names = []


def stamp(a, name):
    if not cfg.stamp or any(name.startswith(x) for x in cfg.skip):
        return
    k = nstamp[0]
    nstamp[0] += 1
    stamp_names.append(name)
    assert k < (50 if cfg.spin else 62)
    a('s_memrealtime s[58:59]' if cfg.rt else 's_memtime s[58:59]')
    a('s_waitcnt lgkmcnt(0)')
    a(f'v_writelane_b32 v2, s58, {k}')


def role(a, dtok, dcol, e, nblk_bits, ncol_bits, t=(30, 31, 32, 33)):
    cb = ncol_bits - e
    T0, T1, T2, T3 = ('s%d' % x for x in t)
    a(f's_and_b32 {T0}, s2, 7')
    a(f's_lshr_b32 {T1}, s2, 3')
    a(f's_lshr_b32 {T2}, {T0}, {e}')
    a(f's_lshl_b32 {T2}, {T2}, {nblk_bits - (3 - e)}')
    a(f's_lshr_b32 {T3}, {T1}, {cb}')
    a(f's_add_u32 s{dtok}, {T2}, {T3}')
    a(f's_and_b32 {T2}, {T0}, {(1 << e) - 1}')
    a(f's_lshl_b32 {T2}, {T2}, {cb}')
    a(f's_and_b32 {T3}, {T1}, {(1 << cb) - 1}')
    a(f's_add_u32 s{dcol}, {T2}, {T3}')


uid = [0]


def tgt(bit):
    return 32 if (cfg.nod & bit and cfg.nodm == 'a') else 8


def window(a, stream, sflag, second=None):
    u = units(stream) if len(stream.ins if isinstance(stream, Asm) else stream) else []
    k = max(len(u) - cfg.apoll, 0)
    for x in u[:k]:
        a.extend(x)
    uid[0] += 1
    g = Asm()
    g('s_cmp_lg_u32 s3, 0')
    g(f's_cbranch_scc1 L_ap{uid[0]}')
    if second:
        g(f's_add_u32 s66, {sflag}, {second}')
    g(f's_load_dword s64, s[4:5], {sflag} glc', raw=True)
    if second:
        g('s_load_dword s65, s[4:5], s66 glc', raw=True)
    g(f'L_ap{uid[0]}:')
    if cfg.apoll >= 0:
        a.group(g)
    for x in u[k:]:
        a.extend(x)


def poll_wg(a, sflag, nlanes_mask, voff, target, second=None, each=False):
    uid[0] += 1
    u = uid[0]
    if cfg.spin_s:
        if each:
            a('s_barrier')
        else:
            a('s_cmp_lg_u32 s3, 0')
            a(f's_cbranch_scc1 L_pw_done{u}')
        a(f's_mov_b32 s57, {SPIN}')
        if second:
            a(f's_add_u32 s66, {sflag}, {second}')
        if cfg.apoll >= 0:
            a('s_waitcnt lgkmcnt(0)', raw=True)
            if second:
                a('s_min_u32 s64, s64, s65', raw=True)
            a(f's_cmp_eq_u32 s64, {target}', raw=True)
            a(f's_cbranch_scc1 L_pw_done{u}')
        a(f'L_pw{u}:')
        a(f's_load_dword s64, s[4:5], {sflag} glc', raw=True)
        if second:
            a('s_load_dword s65, s[4:5], s66 glc', raw=True)
        a('s_sub_u32 s57, s57, 1')
        a(f's_cbranch_scc1 L_pw_done{u}')
        a('s_waitcnt lgkmcnt(0)', raw=True)
        if second:
            a('s_min_u32 s64, s64, s65', raw=True)
        a(f's_cmp_lg_u32 s64, {target}', raw=True)
        a(f's_cbranch_scc1 L_pw{u}')
        a(f'L_pw_done{u}:')
        if not each:
            a('s_barrier')
        return
    a('s_cmp_lg_u32 s3, 0')
    a(f's_cbranch_scc1 L_pw_done{u}')
    a(f's_mov_b64 exec, {nlanes_mask}')
    a(f's_mov_b32 s57, {SPIN}')
    a(f'L_pw{u}:')
    a(f'buffer_load_dword v3, {voff}, s[8:11], {sflag} {"offen " if voff != "off" else ""}sc1', raw=True)
    a('s_waitcnt vmcnt(0)', raw=True)
    a(f'v_cmp_ne_u32 vcc, {target}, v3', raw=True)
    a('s_sub_u32 s57, s57, 1')
    a(f's_cbranch_scc1 L_pw_out{u}')
    a(f's_cbranch_vccnz L_pw{u}')
    a(f'L_pw_out{u}:')
    a('s_mov_b64 exec, -1')
    a(f'L_pw_done{u}:')
    a('s_barrier')


def poll_issue(a, vreg, sflag, scalar=False):
    if scalar:
        a(f's_load_dword s{scalar}, s[4:5], {sflag} glc')
    else:
        a(f'buffer_load_dword v{vreg}, off, s[8:11], {sflag} sc1')


def poll_check(a, vreg, sflag, target, scalar=False):
    uid[0] += 1
    u = uid[0]
    outer, a = a, Asm()
    a(f's_mov_b32 s57, {SPIN}')
    if scalar:
        a(f's_cmp_eq_u32 s{scalar}, {target}')
        a(f's_cbranch_scc1 L_pc_ok{u}')
    else:
        a(f'v_cmp_ne_u32 vcc, {target}, v{vreg}')
        a(f's_cbranch_vccz L_pc_ok{u}')
    a(f'L_pc{u}:')
    if scalar:
        a(f's_load_dword s{scalar}, s[4:5], {sflag} glc', raw=True)
        a('s_sub_u32 s57, s57, 1')
        a(f's_cbranch_scc1 L_pc_ok{u}')
        a('s_waitcnt lgkmcnt(0)', raw=True)
        a(f's_cmp_lg_u32 s{scalar}, {target}', raw=True)
        a(f's_cbranch_scc1 L_pc{u}')
    else:
        a(f'buffer_load_dword v{vreg}, off, s[8:11], {sflag} sc1', raw=True)
        a('s_waitcnt vmcnt(0)', raw=True)
        a(f'v_cmp_ne_u32 vcc, {target}, v{vreg}', raw=True)
        a('s_sub_u32 s57, s57, 1')
        a(f's_cbranch_scc1 L_pc_ok{u}')
        a(f's_cbranch_vccnz L_pc{u}')
    a(f'L_pc_ok{u}:')
    if cfg.stamp and cfg.spin:
        k = 63 - 2 - len(spin_names)
        spin_names.append(f'spin pc{u}')
        a(f's_sub_u32 s57, {SPIN}, s57')
        a(f'v_writelane_b32 v2, s57, {50 + len(spin_names) - 1}')
    outer.group(a)


def signal(a, sflag, vone, wave0_only=True):
    uid[0] += 1
    u = uid[0]
    outer, a = a, Asm()
    if wave0_only:
        a('s_cmp_lg_u32 s3, 0')
        a(f's_cbranch_scc1 L_sg{u}')
    a('s_mov_b64 exec, 1')
    a(f'buffer_atomic_add v{vone}, off, s[8:11], {sflag} sc1', raw=wave0_only)
    a('s_mov_b64 exec, -1')
    if wave0_only:
        a(f'L_sg{u}:')
    outer.group(a)


def wq_loc(f):
    if f < 16:
        return f'v[{192+4*f}:{195+4*f}]'
    if f < 24:
        return f'a[{224+4*(f-16)}:{227+4*(f-16)}]'
    if f < 40:
        return f'a[{160+4*(f-24)}:{163+4*(f-24)}]'
    return f'v[{160+4*(f-40)}:{163+4*(f-40)}]'


def p4_korder():
    return [[7 * c + T for T in st for c in range(4)] for st in cfg.stages]


def wd_loc(s, f):
    order = [k for g in p4_korder() for k in g]
    p = order.index(s)
    r = 160 + (2 * p + f) * 4 if p < 8 else (2 * (p - 8) + f) * 4
    return f'a[{r}:{r+3}]'


LDS_WO = 98304
LDS_TAB = 81920


def slot(T):
    return (T % 5) * 32768


def st_wqkv(fs):
    a = Asm()
    a('s_mul_i32 s40, s17, 49152')
    cur = None
    for f in fs:
        g = f >> 2
        if g != cur:
            a(f's_add_u32 s41, s40, {hx(WQKV_F + g * 4096)}')
            cur = g
        a(f'buffer_load_dwordx4 {wq_loc(f)}, v1, s[8:11], s41 offen offset:{1024*(f&3)}{cfg.wsc}', tag='wq')
    return a


VWO = 5


def st_wo_f():
    a = Asm()
    a('s_lshl_b32 s42, s19, 16')
    a('s_lshl_b32 s43, s3, 14')
    a('s_add_u32 s42, s42, s43')
    a(f's_add_u32 s42, s42, {hx(WO_F)}')
    a(f's_add_u32 s43, s43, {LDS_WO}')
    for g in range(4):
        a('s_mov_b32 m0, s43')
        for j in range(4):
            a(f'buffer_load_dwordx4 v1, s[8:11], s42 offen offset:{1024*j}{cfg.wsc} lds', tag='wo')
        if g < 3:
            a('s_add_u32 s42, s42, 4096')
            a('s_add_u32 s43, s43, 4096')
    return a


def st_wo():
    a = Asm()
    a('s_lshl_b32 s42, s19, 7')
    a('s_lshl_b32 s43, s3, 17')
    a('s_add_u32 s42, s42, s43')
    a('s_lshl_b32 s43, s3, 14')
    a(f's_add_u32 s43, s43, {LDS_WO}')
    for g in range(4):
        a('s_mov_b32 m0, s43')
        for j in range(4):
            a(f'buffer_load_dwordx4 v{VWO}, s[76:79], s42 offen offset:{1024*j} lds', tag='wo')
            if j < 3:
                a('s_add_u32 s42, s42, 7168')
        if g < 3:
            a(f's_add_u32 s42, s42, {8192 + 3072}')
            a('s_add_u32 s43, s43, 4096')
    return a


def wo_tr(BF):
    a = Asm()
    A0, A1, AW = 12, 13, 14
    a('s_lshl_b32 s38, s3, 14')
    a(f's_add_u32 s38, s38, {LDS_WO}')
    a('v_lshrrev_b32 v11, 5, v0')
    a('v_bfe_u32 v15, v0, 2, 2')
    a(f'v_lshl_add_u32 v{A0}, v11, 3, v15')
    a(f'v_lshlrev_b32 v{A0}, 7, v{A0}')
    a('v_bfe_u32 v15, v0, 3, 1')
    a(f'v_lshl_add_u32 v{A0}, v15, 6, v{A0}')
    a('v_and_b32 v15, 3, v0')
    a(f'v_lshl_add_u32 v{A0}, v15, 4, v{A0}')
    a('v_bfe_u32 v15, v0, 4, 1')
    a(f'v_lshl_add_u32 v{A0}, v15, 3, v{A0}')
    a(f'v_add_u32 v{A0}, s38, v{A0}')
    a(f'v_xor_b32 v{A1}, 64, v{A0}')
    a(f'v_lshlrev_b32 v{AW}, 10, v15')
    a(f'v_lshl_add_u32 v{AW}, v11, 8, v{AW}')
    a('v_and_b32 v15, 15, v0')
    a(f'v_lshl_add_u32 v{AW}, v15, 4, v{AW}')
    a(f'v_add_u32 v{AW}, s38, v{AW}')
    a.waitvm('wo')
    for u in range(8):
        for p in range(2):
            r = BF + 4 * (2 * u + p)
            for h in range(2):
                a(f'ds_read_b64_tr_b16 v[{r+2*h}:{r+2*h+1}], v{A0+p} offset:{u * 2048 + h * 512}')
    a('s_waitcnt lgkmcnt(0)')
    for u in range(8):
        for p in range(2):
            r = BF + 4 * (2 * u + p)
            a(f'ds_write_b128 v{AW}, v[{r}:{r+3}] offset:{(u >> 1) * 4096 + p * 2048 + (u & 1) * 512}')
    return a


def st_wgu(Ts):
    a = Asm()
    a('s_mul_i32 s44, s21, 229376')
    a('s_lshl_b32 s45, s3, 13')
    a('s_add_u32 s44, s44, s45')
    for T in Ts:
        for g in range(2):
            a(f's_add_u32 s46, s45, {slot(T) + g * 4096}')
            a(f's_add_u32 s47, s44, {hx(WGU_F + T * 32768 + g * 4096)}')
            a('s_mov_b32 m0, s46')
            for j in range(4):
                a(f'buffer_load_dwordx4 v1, s[8:11], s47 offen offset:{1024*j}{cfg.wsc} lds', tag=f'wg{T}')
    return a


CF = (124, 76)
MBZ = 64


def st_csf():
    a = Asm()
    a('s_lshl_b32 s48, s21, 11')
    a(f's_add_u32 s48, s48, {hx(CSF)}')
    for j in range(2):
        a(f'buffer_load_dwordx4 v[{CF[j]}:{CF[j]+3}], v1, s[8:11], s48 offen offset:{1024*j} sc1', tag='csf')
    return a


def st_wd(positions):
    a = Asm()
    order = [k for g in p4_korder() for k in g]
    a('s_lshl_b32 s49, s23, 1')
    a('s_and_b32 s50, s3, 1')
    a('s_add_u32 s49, s49, s50')
    a('s_xor_b32 s50, s49, 1')
    a('s_mul_i32 s51, s3, 28672')
    a('s_mul_i32 s49, s49, 114688')
    a('s_mul_i32 s50, s50, 114688')
    a('s_add_u32 s49, s49, s51')
    a('s_add_u32 s50, s50, s51')
    for p in positions:
        s = order[p]
        for f in range(2):
            a(f's_add_u32 s51, s{49+f}, {hx(WD_F + s * 1024)}')
            a(f'buffer_load_dwordx4 {wd_loc(s, f)}, v1, s[8:11], s51 offen{cfg.wsc}', tag='wd')
    return a


def mix(x, y):
    x = x.ins if isinstance(x, Asm) else x
    y = y.ins if isinstance(y, Asm) else y
    out = []
    i = j = 0
    while i < len(x) or j < len(y):
        if j >= len(y) or (i < len(x) and i * len(y) <= j * len(x)):
            out.append(x[i]); i += 1
        else:
            out.append(y[j]); j += 1
    return out


def cat(*xs):
    out = []
    for x in xs:
        out.extend(x.ins if isinstance(x, Asm) else x)
    return out


def split_mfma(lst, bounds):
    parts = [[] for _ in range(len(bounds) + 1)]
    m = 0
    for i in lst:
        parts[sum(1 for b in bounds if m >= b)].append(i)
        if i.kind == 'mfma':
            m += 1
    return parts


def units(st):
    L = st.ins if isinstance(st, Asm) else st
    out, cur = [], []
    for i in L:
        cur.append(i)
        if i.kind == 'vmem':
            out.append(cur)
            cur = []
    if cur and out:
        out[-1].extend(cur)
    return out


def tmerge(a, prim, items):
    P = prim.ins if isinstance(prim, Asm) else prim
    items = sorted(((t, k, x) for k, (t, x) in enumerate(items)), key=lambda y: y[:2])
    k = 0
    m = -1
    idx = 0
    while idx < len(P):
        i = P[idx]
        a.ins.append(i)
        idx += 1
        if i.kind == 'mfma':
            m += 1
            while idx < len(P) and P[idx].kind not in ('mfma', 'wait', 'sop', 'label', 'branch'):
                a.ins.append(P[idx])
                idx += 1
            while k < len(items) and items[k][0] < m + 1:
                a.ins.extend(items[k][2])
                k += 1
    while k < len(items):
        a.ins.extend(items[k][2])
        k += 1


def spread(lst, lo, hi):
    from asmlib import cost
    L = lst.ins if isinstance(lst, Asm) else lst
    tot = sum(cost(i) for i in L)
    c = 0
    out = []
    for i in L:
        out.append((lo + (hi - lo) * c / tot, [i]))
        c += cost(i)
    return out


def vm_split(st, n):
    k = 0
    L = st.ins if isinstance(st, Asm) else st
    for idx, i in enumerate(L):
        if i.kind == 'vmem':
            k += 1
            if k == n:
                return L[:idx + 1], L[idx + 1:]
    return L, []


VX, VW, VT = 248, 249, 250


def grp(a, *lines, tag=None, raw=False):
    g = Asm()
    for x in lines:
        g(x, tag=tag if x.startswith('buffer_') or x.startswith('ds_') else None, raw=raw)
    a.group(g)


def front_early(a):
    a('s_lshl_b32 s35, s3, 2')
    a('v_lshrrev_b32 v3, 4, v0')
    a('v_add_u32 v3, s35, v3')
    a('v_and_b32 v4, 15, v0')
    a('v_xor_b32 v4, v4, v3')
    a(f'v_lshlrev_b32 v{VX}, 10, v3')
    a(f'v_lshl_add_u32 v{VX}, v4, 4, v{VX}')
    a('v_lshrrev_b32 v3, 3, v0')
    a('s_and_b32 s36, s3, 1')
    a('s_lshl_b32 s36, s36, 1')
    a('v_bfe_u32 v4, v0, 4, 1')
    a('v_or_b32 v4, s36, v4')
    a('v_bfe_u32 v5, v0, 1, 2')
    a('v_xor_b32 v4, v4, v5')
    a('s_lshl_b32 s36, s3, 3')
    a('v_add_u32 v3, s36, v3')
    a(f'v_mul_u32_u24 v{VW}, 3072, v3')
    a(f'v_lshl_add_u32 v{VW}, v4, 5, v{VW}')
    a('v_and_b32 v4, 1, v0')
    a(f'v_lshl_add_u32 v{VW}, v4, 4, v{VW}')
    a('s_lshl_b32 s35, s3, 10')
    a('s_mul_i32 s34, s3, 3072')
    a('s_lshl_b32 s30, s16, 16')
    a('s_sub_u32 s31, s30, 16384')
    a('s_max_i32 s31, s31, 0')
    a('s_add_u32 s68, s30, 16384')
    a('s_add_u32 s69, s30, 32768')
    a('s_add_u32 s27, s30, 49152')
    a('s_lshr_b32 s32, s17, 2')
    a('s_lshl_b32 s32, s32, 7')
    a('s_and_b32 s52, s2, 7')
    a('s_lshr_b32 s53, s2, 4')
    a('s_lshl_b32 s53, s53, 3')
    a('s_add_u32 s52, s52, s53')
    a('s_lshl_b32 s52, s52, 1')
    a('s_bfe_u32 s53, s2, 0x10003')
    a('s_add_u32 s52, s52, s53')


def slab_role():
    a = Asm()
    a('s_mov_b32 s99, 0x00020000')
    a('s_mov_b32 s51, 0')
    a('s_mov_b32 s53, 0')
    a('s_mov_b32 s54, 0')
    a('s_cmp_lt_u32 s52, 48')
    a('s_cbranch_scc1 L_sl_qkv')
    a('s_cmp_lt_u32 s52, 64')
    a('s_cbranch_scc1 L_sl_wo')
    a('s_cmp_lt_u32 s52, 176')
    a('s_cbranch_scc1 L_sl_gu')
    a('s_mov_b32 s96, s84')
    a('s_mov_b32 s97, s85')
    a(f's_mov_b32 s98, {1792 * 1024}')
    a('s_cmp_ge_u32 s52, 240')
    a('s_cselect_b32 s36, 16, 0')
    a('s_sub_u32 s36, s52, s36')
    a('s_sub_u32 s36, s36, 176')
    a('s_lshr_b32 s37, s36, 4')
    a('s_and_b32 s36, s36, 15')
    a('s_mov_b32 s40, 1024')
    a(f's_mul_i32 s41, s37, {448 * 1024}')
    a(f's_mul_i32 s38, s3, {112 * 1024}')
    a('s_add_u32 s41, s41, s38')
    a('s_lshl_b32 s38, s36, 6')
    a('s_add_u32 s41, s41, s38')
    a('s_mul_i32 s43, s36, 114688')
    a('s_mul_i32 s38, s37, 28672')
    a('s_add_u32 s43, s43, s38')
    a('s_mul_i32 s38, s3, 7168')
    a('s_add_u32 s43, s43, s38')
    a(f's_add_u32 s43, s43, {hx(WD_F)}')
    a('s_mov_b32 s44, 1024')
    a('s_mov_b32 s45, 2048')
    a('s_mov_b32 s46, 256')
    a('s_mov_b32 s47, 512')
    a('s_mov_b32 s48, 16')
    a('s_mov_b32 s49, 32')
    a('s_mov_b32 s50, 8')
    a('s_mov_b32 s51, 16384')
    a('s_mov_b32 s53, 1024')
    a('s_lshr_b32 s36, s36, 1')
    a('s_lshl_b32 s36, s36, 8')
    a(f's_add_u32 s64, s36, {hx(GWD)}')
    a('s_cmp_ge_u32 s52, 240')
    a(f's_cselect_b32 s64, {hx(GDUM)}, s64')
    a('s_mov_b32 s65, s64')
    a('s_branch L_sl_go')
    a('L_sl_gu:')
    a('s_cmp_lt_u32 s52, 120')
    a('s_cselect_b32 s96, s80, s82')
    a('s_cselect_b32 s97, s81, s83')
    a('s_cselect_b32 s36, 64, 120')
    a('s_cselect_b32 s37, 0, 256')
    a(f's_mov_b32 s98, {512 * 3584}')
    a('s_sub_u32 s36, s52, s36')
    a('s_mov_b32 s40, 3584')
    a(f's_mul_i32 s41, s3, {128 * 3584}')
    a('s_lshl_b32 s38, s36, 6')
    a('s_add_u32 s41, s41, s38')
    a('s_lshl_b32 s43, s36, 16')
    a('s_add_u32 s43, s43, s37')
    a('s_lshl_b32 s38, s3, 13')
    a('s_add_u32 s43, s43, s38')
    a(f's_add_u32 s43, s43, {hx(WGU_F)}')
    a('s_mov_b32 s44, 1024')
    a('s_mov_b32 s45, 2048')
    a('s_mov_b32 s46, 32768')
    a('s_mov_b32 s47, 512')
    a('s_mov_b32 s48, 32')
    a('s_mov_b32 s49, 16')
    a('s_mov_b32 s50, 8')
    a('s_mov_b32 s54, 2')
    for e in range(2):
        a('s_lshl_b32 s38, s36, 1')
        a(f's_add_u32 s38, s38, {e}')
        a('s_mul_i32 s39, s38, 9363')
        a('s_lshr_b32 s39, s39, 16')
        a(f's_lshl_b32 s{64+e}, s39, 8')
        a(f's_add_u32 s{64+e}, s{64+e}, {hx(GGU)}')
        a(f's_lshl_b32 s{55+e}, s39, 11')
        a('s_mul_i32 s39, s39, 7')
        a('s_sub_u32 s38, s38, s39')
        a('s_lshr_b32 s39, s38, 1')
        a('s_lshl_b32 s39, s39, 9')
        a(f's_add_u32 s{55+e}, s{55+e}, s39')
        a('s_and_b32 s38, s38, 1')
        a('s_lshl_b32 s38, s38, 3')
        a(f's_add_u32 s{55+e}, s{55+e}, s38')
        a(f's_add_u32 s{55+e}, s{55+e}, s37')
        a(f's_add_u32 s{55+e}, s{55+e}, {hx(CSF)}')
    a('s_branch L_sl_go')
    a('L_sl_wo:')
    a('s_mov_b32 s96, s76')
    a('s_mov_b32 s97, s77')
    a(f's_mov_b32 s98, {512 * 1024}')
    a('s_sub_u32 s36, s52, 48')
    a('s_mov_b32 s40, 1024')
    a('s_lshl_b32 s41, s3, 17')
    a('s_lshl_b32 s38, s36, 6')
    a('s_add_u32 s41, s41, s38')
    a('s_lshr_b32 s37, s36, 1')
    a('s_lshl_b32 s43, s37, 16')
    a('s_and_b32 s38, s36, 1')
    a('s_lshl_b32 s38, s38, 11')
    a('s_add_u32 s43, s43, s38')
    a('s_lshl_b32 s38, s3, 14')
    a('s_add_u32 s43, s43, s38')
    a(f's_add_u32 s43, s43, {hx(WO_F)}')
    a('s_mov_b32 s44, 512')
    a('s_mov_b32 s45, 4096')
    a('s_mov_b32 s46, 1024')
    a('s_mov_b32 s47, 256')
    a('s_mov_b32 s48, 8')
    a('s_mov_b32 s49, 16')
    a('s_mov_b32 s50, 32')
    a('s_lshl_b32 s37, s37, 8')
    a(f's_add_u32 s64, s37, {hx(GWO)}')
    a('s_mov_b32 s65, s64')
    a('s_branch L_sl_go')
    a('L_sl_qkv:')
    a('s_mov_b32 s96, s74')
    a('s_mov_b32 s97, s75')
    a(f's_mov_b32 s98, {512 * 3072}')
    a('s_mov_b32 s40, 3072')
    a(f's_mul_i32 s41, s3, {128 * 3072}')
    a('s_lshl_b32 s38, s52, 6')
    a('s_add_u32 s41, s41, s38')
    a('s_and_b32 s36, s52, 15')
    a('s_mul_i32 s43, s36, 98304')
    a('s_lshr_b32 s38, s52, 4')
    a('s_lshl_b32 s38, s38, 10')
    a('s_add_u32 s43, s43, s38')
    a('s_mul_i32 s38, s3, 12288')
    a('s_add_u32 s43, s43, s38')
    assert WQKV_F == 0
    a('s_mov_b32 s44, 512')
    a('s_mov_b32 s45, 3072')
    a('s_mov_b32 s46, 49152')
    a('s_mov_b32 s47, 256')
    a('s_mov_b32 s48, 32')
    a('s_mov_b32 s49, 8')
    a('s_mov_b32 s50, 16')
    a('s_mov_b32 s54, 1')
    a('s_lshl_b32 s55, s52, 7')
    a(f's_add_u32 s55, s55, {hx(CS_QKV)}')
    a('s_add_u32 s56, s55, 64')
    a('s_lshr_b32 s36, s36, 1')
    a('s_lshl_b32 s36, s36, 8')
    a(f's_add_u32 s64, s36, {hx(GWQ)}')
    a('s_mov_b32 s65, s64')
    a('L_sl_go:')
    a('s_lshl_b32 s36, s2, 2')
    a('s_add_u32 s36, s36, s3')
    a('s_lshl_b32 s36, s36, 9')
    a(f's_add_u32 s36, s36, {hx(DUMMY)}')
    a('s_add_u32 s37, s36, 256')
    a('s_cmp_eq_u32 s3, 0')
    a('s_cselect_b32 s38, s54, 0')
    a('s_cmp_lg_u32 s38, 0')
    a('s_cselect_b32 s55, s55, s36')
    a('s_cselect_b32 s56, s56, s37')
    a('s_lshl_b32 s42, s40, 4')
    a('s_sub_u32 s51, s42, s51')
    a('s_lshl_b32 s66, s3, 13')
    a(f's_add_u32 s66, s66, {LDS_SLAB}')
    return a


def spin(a, name, load, cmp_):
    a(f's_mov_b32 s57, {SPIN}')
    a(cmp_, raw=True)
    a(f's_cbranch_vccz L_{name}_ok')
    a(f'L_{name}:')
    a(load, raw=True)
    a('s_waitcnt vmcnt(0)', raw=True)
    a(cmp_, raw=True)
    a('s_sub_u32 s57, s57, 1')
    a(f's_cbranch_scc1 L_{name}_ok')
    a(f's_cbranch_vccnz L_{name}')
    a(f'L_{name}_ok:')
    if cfg.stamp and cfg.spin:
        spin_names.append(name)
        a(f's_sub_u32 s57, {SPIN}, s57')
        a(f'v_writelane_b32 v2, s57, {50 + len(spin_names) - 1}')


VG, VGT, VZ = 254, 255, 216


def g0_check():
    a = Asm()
    a.waitvm('g0')
    g = Asm()
    g('s_cmp_lg_u32 s3, 0')
    g('s_cbranch_scc1 L_g0_skip')
    g('s_mov_b64 exec, 15')
    spin(g, 'g0', f'buffer_load_dword v{VZ}, v{VG}, s[8:11], 0 offen sc1', f'v_cmp_ne_u32 vcc, v{VGT}, v{VZ}')
    g('s_mov_b64 exec, -1')
    g('L_g0_skip:')
    a.group(g)
    return a


def fix_m0(a, start):
    from asmlib import flatten
    body = flatten(a.ins[start:])
    out = []
    cur = None
    for i in body:
        if i.kind == 'salu' and ('s', 'm0') in i.defs:
            cur = i.text
        if i.kind == 'vmem' and isinstance(i.note, str) and i.note.startswith('s_add_u32 m0'):
            if cur != i.note:
                out.append(Ins(i.note))
                cur = i.note
            i.note = None
        out.append(i)
    a.ins[start:] = out


def front0(a, consts, AK, AV, AQ, CSQ, CSK, CSV, VC):
    VXR, VXR2, VXS = 140, 144, 148
    VSL, VST, VSS = 251, 252, 253
    VCA, VCS, VCW, VCR = 153, 154, 155, 156
    WS = lambda s, P: 160 + 12 * (s & 1) + 4 * P
    CSV4, ONE, SO, GO, SH, GH = 184, 188, 192, 196, 200, 204
    RX = [84, 88, 92, 96, 208, 212]
    SF = [224, 228, 232, 236]
    CSA, SEL = 240, 244
    q4 = lambda r: f'v[{r}:{r+3}]'

    def xd(d, kq, i):
        grp(d, f's_add_u32 m0, s35, {kq * 20224 + i * 4096}',
            f'buffer_load_dwordx4 v{VX}, s[60:63], s{(31, 30, 68, 69, 27)[i]} offen offset:{kq * 256}{cfg.ntx} lds', tag=f'x{kq}')

    def wd_(d, s):
        ld = [f'buffer_load_dwordx4 v{VW}, s[92:95], s33 offen offset:{P * 1024}{cfg.ntw} lds' for P in (1, 2, 0)]
        m0 = f's_add_u32 m0, s34, {LDS_RING + (s & 3) * 12288}'
        grp(d, m0, f's_add_u32 s33, s32, {s * 98304}', ld[0], tag=f'w{s}')
        for x in ld[1:]:
            i = d(x, tag=f'w{s}')
            i.note = m0

    def tr(d, s):
        for P in (1, 2, 0):
            for u in range(2):
                r = WS(s, P) + 2 * u
                d(f'ds_read_b64_tr_b16 v[{r}:{r+1}], v{VT} offset:{(s & 3) * 12288 + P * 1024 + u * 512}', tag=f't{s}')

    def sld(d, u):
        if cfg.xp & 1:
            return
        grp(d, f's_add_u32 m0, s66, {u * 1024}',
            f'buffer_load_dwordx4 v{VSL}, s[96:99], s41 offen{cfg.nts} lds',
            f's_add_u32 s41, s41, s{51 if u == 6 else 42}', tag=f'sl{u}')

    def sst(d, u):
        r = SF[u & 3]
        d.waitvm(f'sl{u}')
        for h in range(2):
            d(f'ds_read_b64_tr_b16 v[{r+2*h}:{r+2*h+1}], v{VST} offset:{u * 1024 + h * 256}')
        e = Asm()
        if u & 1:
            e('s_add_u32 s67, s43, s44')
            if u == 7:
                e('s_sub_u32 s67, s67, s53')
            if not cfg.xp & 2:
                e(f'buffer_store_dwordx4 {q4(r)}, v{VSS}, s[8:11], s67 offen{cfg.ssc}', tag='slab')
            e('s_add_u32 s43, s43, s45')
        elif not cfg.xp & 2:
            e(f'buffer_store_dwordx4 {q4(r)}, v{VSS}, s[8:11], s43 offen{cfg.ssc}', tag='slab')
        e(f'v_mfma_f32_16x16x32_bf16 {q4(CSA)}, {q4(r)}, {q4(SEL)}, {q4(CSA) if u else 0}')
        return e

    start0 = len(a.ins)
    z = Asm()
    z('s_cmp_lt_u32 s52, 240')
    z('s_cbranch_scc1 L_z_skip')
    z('s_cmp_gt_u32 s3, 1')
    z('s_cbranch_scc1 L_z_skip')
    z('s_sub_u32 s36, s52, 240')
    z('s_lshl_b32 s36, s36, 1')
    z('s_add_u32 s36, s36, s3')
    z('s_lshl_b32 s36, s36, 14')
    z(f's_add_u32 s36, s36, {hx(FLAGS)}')
    z('v_lshlrev_b32 v3, 8, v0')
    z('v_mov_b32 v4, 0')
    z('buffer_store_dword v4, v3, s[8:11], s36 offen sc1', raw=True)
    z('L_z_skip:')
    a.group(z)
    L = Asm()
    for i in range(5):
        xd(L, 0, i)
    for s in range(4):
        if cfg.sw[s] < 0:
            wd_(L, s)
    L2 = Asm()
    for u in range(8):
        if cfg.sld[u] < 0:
            sld(L2, u)
    for i in range(5):
        if cfg.sx1[i] < 0:
            xd(L2, 1, i)
    S = Asm()
    S('v_and_b32 v132, 15, v0')
    S('v_lshrrev_b32 v133, 4, v0')
    S('v_lshrrev_b32 v134, 2, v132')
    S(f'v_mul_u32_u24 v{VT}, 3072, v133')
    S(f'v_lshl_add_u32 v{VT}, v134, 7, v{VT}')
    S('v_bfe_u32 v135, v0, 3, 2')
    S('v_xor_b32 v135, s3, v135')
    S(f'v_lshl_add_u32 v{VT}, v135, 5, v{VT}')
    S('v_and_b32 v135, 3, v0')
    S(f'v_lshl_add_u32 v{VT}, v135, 3, v{VT}')
    S(f'v_add_u32 v{VT}, {LDS_RING}, v{VT}')
    S('s_lshl_b32 s38, s3, 12')
    S('s_add_u32 s38, s38, 4096')
    for j in range(4):
        S(f'v_add_u32 v135, {4 * j}, v133')
        S('v_xor_b32 v135, v135, v132')
        S(f'v_lshlrev_b32 v{VXR+j}, 8, v132')
        S(f'v_lshl_add_u32 v{VXR+j}, v135, 4, v{VXR+j}')
        S(f'v_add_u32 v{VXR2+j}, 61440, v{VXR+j}')
        S(f'v_add_u32 v{VXS+j}, s38, v{VXR+j}')
    for r in range(4):
        S(f'v_mov_b32 v{ONE+r}, s25')
    for (dt, dc, e, nb, nc) in ((18, 19, cfg.e2, 5, 3), (20, 21, cfg.e3, 4, 4), (22, 23, cfg.e4, 5, 3)):
        role(S, dt, dc, e, nb, nc, (36, 37, 38, 57))
    S.group(slab_role())
    S('v_lshrrev_b32 v135, 2, v0')
    S(f'v_mul_u32_u24 v{VSL}, s40, v135')
    S('v_and_b32 v135, 3, v0')
    S(f'v_lshl_add_u32 v{VSL}, v135, 4, v{VSL}')
    S('v_lshrrev_b32 v136, 5, v0')
    S('v_and_b32 v137, 1, v133')
    S('v_lshl_add_u32 v135, v136, 3, v134')
    S(f'v_lshlrev_b32 v{VST}, 6, v135')
    S(f'v_mad_u32_u24 v{VST}, v137, s48, v{VST}')
    S('v_and_b32 v135, 1, v0')
    S(f'v_mad_u32_u24 v{VST}, v135, s49, v{VST}')
    S('v_bfe_u32 v135, v0, 1, 1')
    S(f'v_mad_u32_u24 v{VST}, v135, s50, v{VST}')
    S(f'v_add_u32 v{VST}, s66, v{VST}')
    S(f'v_lshlrev_b32 v{VSS}, 4, v132')
    S(f'v_mad_u32_u24 v{VSS}, v137, s46, v{VSS}')
    S(f'v_mad_u32_u24 v{VSS}, v136, s47, v{VSS}')
    g = Asm()
    g('v_xor_b32 v135, v0, v133')
    g('v_and_b32 v135, 1, v135')
    g('v_cmp_eq_u32 vcc, 0, v135')
    g(f'v_cndmask_b32 v{SEL}, 0, v{ONE}, vcc')
    S.group(g)
    for r in range(1, 4):
        S(f'v_mov_b32 v{SEL+r}, v{SEL}')
    S(f'v_mov_b32 v{VCA}, s64')
    S(f'v_writelane_b32 v{VCA}, s65, 1')
    g = Asm()
    g('s_cmp_eq_u32 s54, 2')
    g('s_cselect_b32 s38, 16, 4')
    g(f'v_mul_u32_u24 v{VCS}, s38, v132')
    g('v_mov_b32 v135, s55')
    g('v_mov_b32 v136, s56')
    g('v_cmp_eq_u32 vcc, 0, v137')
    g('v_cndmask_b32 v135, v136, v135, vcc')
    g(f'v_add_u32 v{VCS}, v{VCS}, v135')
    S.group(g)
    S('v_and_b32 v135, 1, v0')
    S(f'v_lshlrev_b32 v{VCW}, 6, v135')
    S(f'v_lshl_add_u32 v{VCW}, v133, 4, v{VCW}')
    S('s_lshl_b32 s38, s3, 7')
    S(f's_add_u32 s38, s38, {LDS_CSR}')
    S(f'v_add_u32 v{VCW}, s38, v{VCW}')
    S('v_and_b32 v135, 31, v0')
    S(f'v_lshlrev_b32 v{VCR}, 2, v135')
    S(f'v_add_u32 v{VCR}, {LDS_CSR}, v{VCR}')
    for k, (sr_, base, tgt, sh) in enumerate(((19, GWO, 4, 0), (21, GGU, 14, 0), (23, GWD, 16, 0), (17, GWQ, 12, 2))):
        S(f's_lshr_b32 s38, s{sr_}, {sh}')
        S('s_lshl_b32 s38, s38, 8')
        S(f's_add_u32 s38, s38, {hx(base)}')
        if k == 0:
            S(f'v_mov_b32 v{VG}, s38')
            S(f'v_mov_b32 v{VGT}, {tgt}')
        else:
            S(f'v_writelane_b32 v{VG}, s38, {k}')
            S(f'v_writelane_b32 v{VGT}, {tgt}, {k}')
    for i in consts.ins:
        S.ins.append(i)
    a.extend(L.ins[:3])
    ncon = len(consts.ins)
    a.extend(mix(L.ins[3:], S.ins[:-ncon]))
    a.extend(mix(L2, S.ins[-ncon:]))
    stamp(a, 'p1.0 issued')
    a.waitvm('w0')
    a('s_barrier')
    g = Asm()
    g('s_cmp_lt_u32 s52, 240')
    g('s_cbranch_scc1 L_zf_skip')
    g('s_cmp_lg_u32 s3, 0')
    g('s_cbranch_scc1 L_zf_skip')
    g('s_sub_u32 s36, s52, 240')
    g('s_lshl_b32 s36, s36, 2')
    g('v_mov_b32 v135, 1')
    g('s_mov_b64 exec, 1')
    g(f'buffer_store_dword v135, off, s[88:91], s36 offset:{64 if cfg.dbg else 0} sc1', raw=True)
    g('s_mov_b64 exec, -1')
    g('L_zf_skip:')
    a.group(g)
    tr(a, 0)
    stamp(a, 'p1.0 first')

    groups = []
    mf = lambda d, x, y, first: f'v_mfma_f32_16x16x32_bf16 {q4(d)}, {x}, {y}, {0 if first else q4(d)}'
    for s in range(16):
        kq, j = s >> 2, s & 3
        for i in range(5):
            off = kq * 20480 + i * 4096
            ad = (VXR + j, off) if off < 65536 else (VXR2 + j, off - 61440)

            def f(B, s=s, i=i):
                r = [mf(AK(i), q4(WS(s, 1)), B, s == 0), mf(AV(i), B, q4(WS(s, 2)), s == 0)]
                if i:
                    r.append(mf(AQ(i), q4(WS(s, 0)), B, s == 0))
                return r
            groups.append((s, ad, f))
        groups.append((s, None, lambda B, s=s: [mf(CSK, q4(WS(s, 1)), q4(ONE), s == 0), mf(CSV4, q4(ONE), q4(WS(s, 2)), s == 0),
                                                mf(CSQ, q4(WS(s, 0)), q4(ONE), s == 0)]))
        if 2 <= s < 10:
            for sg in (2 * s - 4, 2 * s - 3):
                for (base, sm, gr) in ((VXS, SO, GO), (VXR, SH, GH)):
                    groups.append((s, (base + (sg & 3), (sg >> 2) * 20480),
                                   lambda B, sg=sg, sm=sm, gr=gr: [mf(sm, q4(ONE), B, sg == 0), mf(gr, B, B, sg == 0)]))
    rd_groups = [k for k, x in enumerate(groups) if x[1]]
    ring = {k: RX[n % len(RX)] for n, k in enumerate(rd_groups)}
    D = 4
    nxt = [0]

    def rd(g):
        if nxt[0] < len(rd_groups):
            k = rd_groups[nxt[0]]
            g(f'ds_read_b128 {q4(ring[k])}, v{groups[k][1][0]} offset:{groups[k][1][1]}')
            nxt[0] += 1
    for _ in range(D):
        rd(a)
    prim = [Asm() for _ in range(16)]
    trs = []
    for s in range(16):
        t_ = Asm()
        if s < 15:
            tr(t_, s + 1)
        trs.append(t_.ins)
    for k, (s, ad, f) in enumerate(groups):
        ms = f(q4(ring[k]) if ad else None)
        for n, m in enumerate(ms):
            prim[s](m)
            if ad and n == 1:
                rd(prim[s])
            elif trs[s]:
                prim[s].ins.append(trs[s].pop(0))

    fin = Asm()
    fin('s_mov_b32 s58, 0xcccccccc')
    fin('s_mov_b32 s59, 0xcccccccc')
    for gr in (GO, GH):
        fin(f'v_cndmask_b32 v{gr}, v{gr}, v{gr+1}, s[28:29]')
        fin(f'v_cndmask_b32 v{gr+2}, v{gr+2}, v{gr+3}, s[28:29]')
        fin(f'v_cndmask_b32 v{gr}, v{gr}, v{gr+2}, s[58:59]')
    fin(f'v_mov_b32 v{SO+1}, v{GO}')
    fin(f'v_mov_b32 v{SH+1}, v{GH}')
    for base in (SO, SH):
        G.stat_finalize(fin, base, base + 1, base + 2, 24)
    fin('s_lshl_b32 s38, s3, 7')
    fin(f'v_add_u32 v{GO}, s38, v{VC}')
    grp(fin, 's_mov_b32 exec_lo, 0x00f0000f', 's_mov_b32 exec_hi, 0xf0000f00',
        f'ds_write_b64 v{GO}, v[{SO}:{SO+1}] offset:128', f'ds_write_b64 v{VC}, v[{SH}:{SH+1}]',
        's_mov_b64 exec, -1', tag='tab')
    cw = Asm()
    grp(cw, 's_mov_b32 exec_lo, 0x00030003', 's_mov_b32 exec_hi, 0x00030003',
        f'ds_write_b128 v{VCW}, {q4(CSA)}', 's_mov_b64 exec, -1', tag='csw')
    cr = Asm()
    for w in range(4):
        cr(f'ds_read_b32 v{CSA+w}, v{VCR} offset:{128 * w}')
    cr(f'v_add_f32 v{CSA}, v{CSA}, v{CSA+1}')
    cr(f'v_add_f32 v{CSA+2}, v{CSA+2}, v{CSA+3}')
    cr(f'v_add_f32 v{CSA}, v{CSA}, v{CSA+2}')
    cr(f'v_cvt_pk_bf16_f32 v{CSA+3}, v{CSA}, v{CSA}')
    cr(f'v_and_b32 v{CSA+1}, 0xffff0000, v{CSA+3}')
    cr(f'v_sub_f32 v{CSA+2}, v{CSA}, v{CSA+1}')
    cr(f'v_and_b32 v{CSA+3}, 0xffff, v{CSA+3}')
    cr(f'v_cvt_pk_bf16_f32 v{CSA+2}, v{CSA+1}, v{CSA+2}')
    g = Asm()
    g('s_cmp_eq_u32 s54, 2')
    g('s_cbranch_scc1 L_cs_gu')
    g(f'buffer_store_dword v{CSA}, v{VCS}, s[8:11], 0 offen sc1', raw=True)
    g('s_branch L_cs_done')
    g('L_cs_gu:')
    g(f'buffer_store_dwordx2 v[{CSA+2}:{CSA+3}], v{VCS}, s[8:11], 0 offen sc1', tag='slab')
    g('L_cs_done:')
    if not cfg.xp & 1:
        cr.group(g)
    zl = Asm()
    grp(zl, 's_mov_b64 exec, 0xffff', f'v_lshlrev_b32 v{VZ+5}, 2, v0',
        f'buffer_load_dword v{VZ}, v{VZ+5}, s[88:91], 0 offen offset:{64 if cfg.dbg else 0} sc1', 's_mov_b64 exec, -1', tag='z')
    sg_ = Asm()
    sg_('s_cmp_lg_u32 s3, 0')
    sg_('s_cbranch_scc1 L_sig0_skip')
    sg_('s_mov_b64 exec, 0xffff')
    spin(sg_, 'zchk', f'buffer_load_dword v{VZ}, v{VZ+5}, s[88:91], 0 offen offset:{64 if cfg.dbg else 0} sc1', f'v_cmp_ne_u32 vcc, 1, v{VZ}')
    sg_('s_mov_b64 exec, 3')
    sg_(f'v_mov_b32 v{VZ}, 1')
    sg_(f'buffer_atomic_add v{VZ}, v{VCA}, s[8:11], 0 offen sc1', raw=True)
    sg_('s_mov_b64 exec, -1')
    sg_('L_sig0_skip:')
    gl = Asm()
    grp(gl, 's_mov_b64 exec, 15', f'buffer_load_dword v{VZ}, v{VG}, s[8:11], 0 offen sc1', 's_mov_b64 exec, -1', tag='g0')

    last_st = max(cfg.sst)
    for s in range(16):
        tags = [f'w{s+1}'] + {3: ['x1'], 6: ['x2'], 8: ['x3']}.get(s, [])
        if s == cfg.ssig:
            tags += ['slab', 'z']
        a.waitvm(*tags)
        a.waitlgkm(f't{s}', 'tab', 'csw')
        a('s_barrier')
        if s == cfg.ssig:
            a.group(sg_)
        sec = Asm()
        late = Asm()
        for u in range(8):
            if cfg.sst[u] == s:
                late.extend(sst(sec, u))
        ld = Asm()
        for k in range(16):
            if cfg.sw[k] == s:
                assert k < 4 or s >= k - 4
                wd_(ld, k)
        for i in range(5):
            if cfg.sx1[i] == s:
                xd(ld, 1, i)
            if cfg.sx2[i] == s:
                xd(ld, 2, i)
            if cfg.sx3[i] == s:
                xd(ld, 3, i)
        for u in range(8):
            if cfg.sld[u] == s:
                sld(ld, u)
        oth = Asm()
        if s == last_st + 1:
            oth.extend(cw)
        if s == last_st + 2:
            oth.extend(cr)
            oth.extend(zl)
        if s == 11:
            oth.extend(fin)
        if s == cfg.tlb2:
            oth('v_min_u32 v222, 12, v0')
            oth('v_lshlrev_b32 v222, 21, v222')
            oth('s_lshl_b32 s38, s2, 7')
            oth(f's_add_u32 s39, s38, {hx(0xA00000)}')
            oth('buffer_load_dword v223, v222, s[8:11], s39 offen')
            oth('buffer_load_dword v222, off, s[12:15], s38')
        nm = sum(1 for i in prim[s].ins if i.kind == 'mfma')
        a.merge(prim[s], cat(mix(sec, ld), mix(oth, late)), 0, nm - 1)
        if s in (3, 7, 11):
            stamp(a, f'p1.0 s{s}')
    fix_m0(a, start0)
    stamp(a, 'p1.0 gemm')
    a(f'v_mov_b32 v{CSV}, v{CSV4}')
    return sg_, gl


def p1(a, l, win=None, wq_late=None):
    X = X0 if l == 0 else X2
    ST = STA[l]
    VH, VM_, VD, VC, VR = 5, 6, 7, 8, 9
    BI, SELA, SELB = 10, 16, 17
    CSQ, CSK, CSV = 18, 22, 26
    AK = lambda i: 28 + 12 * i - (4 if i else 0)
    AV = lambda i: AK(i) + 4
    AQ = lambda i: AK(i) + 8
    BR = 84
    KP, VP, QP = 100, 110, 118
    SC, CT = 127, 132
    SS, TT, PP = 28, 44, 52
    MM, OO, OS = 142, 146, 154
    NEG = f2u(-1e30)
    outer = a
    a = Asm()
    a('v_and_b32 v3, 15, v0')
    a('v_lshrrev_b32 v4, 4, v0')
    a(f'v_lshlrev_b32 v{VD}, 9, v4')
    a(f'v_lshl_add_u32 v{VD}, v3, 4, v{VD}')
    a(f'v_add_u32 v{VM_}, 65536, v1')
    a(f'v_lshlrev_b32 v{VC}, 3, v3')
    a(f'v_add_u32 v{VC}, {LDS_TAB}, v{VC}')
    a(f'v_lshlrev_b32 v{VR}, 5, v4')
    a(f'v_add_u32 v{VR}, {LDS_TAB}, v{VR}')
    if l == 0:
        a('v_lshrrev_b32 v134, 3, v0')
        a(f'v_lshlrev_b32 v{VWO}, 10, v134')
        a('v_bfe_u32 v134, v0, 4, 1')
        a('v_lshlrev_b32 v134, 2, v134')
        a('v_and_b32 v135, 7, v0')
        a('v_xor_b32 v134, v134, v135')
        a(f'v_lshl_add_u32 v{VWO}, v134, 4, v{VWO}')
    if l:
        a('s_lshl_b32 s30, s17, 6')
        a(f's_add_u32 s30, s30, {hx(CS_QKV)}')
        a('v_lshlrev_b32 v132, 4, v4')
        a('v_lshlrev_b32 v133, 2, v3')
        a(f'buffer_load_dwordx4 v[{CSQ}:{CSQ+3}], v132, s[8:11], s30 offen sc1')
        a(f'buffer_load_dwordx4 v[{CSK}:{CSK+3}], v132, s[8:11], s30 offen offset:2048 sc1')
        a('s_add_u32 s30, s30, 4096')
        a(f'buffer_load_dword v{CSV}, v133, s[8:11], s30 offen sc1')
    a('v_and_b32 v134, 1, v3')
    a('v_lshl_add_u32 v135, v4, 2, v134')
    a('v_add_u32 v136, 2, v135')
    a('v_add_u32 v137, 2, v3')
    a(f'v_mov_b32 v138, {hx(NEG)}')
    a('v_mov_b32 v139, 0')
    a('v_cmp_ge_u32 vcc, v135, v137')
    a(f'v_cndmask_b32 v{BI}, v138, v139, vcc')
    a('v_cmp_ge_u32 vcc, v136, v137')
    a(f'v_cndmask_b32 v{BI+1}, v138, v139, vcc')
    a('v_cmp_le_u32 vcc, v135, v3')
    a(f'v_cndmask_b32 v{BI+2}, v138, v139, vcc')
    a('v_cmp_le_u32 vcc, v136, v3')
    a(f'v_cndmask_b32 v{BI+3}, v138, v139, vcc')
    grp(a, 's_cmp_eq_u32 s16, 0', 's_cselect_b64 s[58:59], -1, 0')
    a(f'v_cndmask_b32 v{BI+4}, v{BI}, v138, s[58:59]')
    a(f'v_cndmask_b32 v{BI+5}, v{BI+1}, v138, s[58:59]')
    a('v_mov_b32 v135, 0x0c0c0100')
    a('v_mov_b32 v136, 0x01000c0c')
    a(f'v_cndmask_b32 v{SELA}, v135, v136, s[28:29]')
    a('v_mov_b32 v135, 0x0c0c0302')
    a('v_mov_b32 v136, 0x03020c0c')
    a(f'v_cndmask_b32 v{SELB}, v135, v136, s[28:29]')
    consts = a
    a = outer
    S0 = 142
    if l:
        a('s_sub_u32 s36, s16, 1')
        a('s_max_i32 s36, s36, 0')
        a('s_lshl_b32 s36, s36, 8')
        a(f's_add_u32 s36, s36, {hx(F4())}')
        a('s_cmp_eq_u32 s16, 0')
        a('s_cselect_b32 s37, 0, 256')
        window(a, mix(win, consts), 's36', 's37')
        a('v_lshlrev_b32 v140, 10, v4')
        a('v_lshl_add_u32 v140, v3, 3, v140')
        a('s_lshl_b32 s30, s16, 16')
        a('s_sub_u32 s31, s30, 32512')
        a('s_cmp_eq_u32 s16, 0')
        a('s_cselect_b32 s31, 0, s31')
        a(f's_lshl_b32 s32, s3, {12 if cfg.ks else 13}')
        a('s_add_u32 s31, s31, s32')
        a(f's_add_u32 s31, s31, {hx(X)}')
        a('s_add_u32 s30, s30, s32')
        a(f's_add_u32 s30, s30, {hx(X)}')
        a('s_lshl_b32 s33, s16, 13')
        a('s_sub_u32 s34, s33, 3968')
        a('s_cmp_eq_u32 s16, 0')
        a('s_cselect_b32 s34, 0, s34')
        a(f's_add_u32 s34, s34, {hx(ST)}')
        a('s_lshr_b32 s35, s3, 1')
        a('s_lshl_b32 s35, s35, 12')
        a('s_and_b32 s38, s3, 1')
        a('s_lshl_b32 s38, s38, 7')
        a('s_add_u32 s33, s33, s35')
        a('s_add_u32 s33, s33, s38')
        a(f's_add_u32 s33, s33, {hx(ST)}')
        a(f's_lshl_b32 s35, s3, {11 if cfg.ks else 12}')
        sc = ' sc1'
        stamp(a, f'p1.{l} prepoll')
        poll_wg(a, 's36', 3, 'v141', tgt(4), second='s37', each=cfg.pw & 4)
        stamp(a, f'p1.{l} start')

        def xdma(d, i):
            d(f's_add_u32 s37, s35, {16384 * i}')
            d('s_mov_b32 m0, s37')
            for j in range(4):
                if i == 0:
                    so = 's31'
                else:
                    so = 's39'
                    d(f's_add_u32 s39, s30, {((i - 1) >> 1) * 32768 + ((i - 1) & 1) * 256 + 1024 * j}')
                d(f'buffer_load_dwordx4 v{VD}, s[8:11], {so} offen offset:{1024*j}{sc} lds', tag=f'x{i}')
                if i == 0 and j < 3:
                    d('s_add_u32 s31, s31, 1024')
        def xpiece(i, h):
            d = Asm()
            d(f's_add_u32 m0, s35, {16384 * i + 8192 * h}')
            for j in range(2):
                off = h * 16384 + 1024 * j + (((i - 1) >> 1) * 32768 + ((i - 1) & 1) * 256 if i else 0)
                d(f's_add_u32 s56, s{30 if i else 31}, {off}')
                d(f'buffer_load_dwordx4 v{VD}, s[8:11], s56 offen offset:{1024*j}{sc} lds', tag=f'x{i}{h}')
            return d
        sl = Asm()
        for j in range(4):
            sl(f'buffer_load_dwordx2 v[{S0+2*j}:{S0+1+2*j}], v140, s[8:11], s33 offen offset:{256*j}{sc}')
        for j in range(4):
            sl(f'buffer_load_dwordx2 v[{S0+8+2*j}:{S0+9+2*j}], v140, s[8:11], s34 offen offset:{256*j}{sc}')
        d = Asm()
        xdma(d, 0)
        xdma(d, 1)
        for j in range(4):
            d(f'buffer_load_dwordx2 v[{S0+2*j}:{S0+1+2*j}], v140, s[8:11], s33 offen offset:{256*j}{sc}')
        for j in range(4):
            d(f'buffer_load_dwordx2 v[{S0+8+2*j}:{S0+9+2*j}], v140, s[8:11], s34 offen offset:{256*j}{sc}')
        for i in range(2, 5):
            xdma(d, i)
        st = Asm()
        for base in (S0, S0 + 8):
            for j in range(1, 4):
                st(f'v_add_f32 v{base}, v{base}, v{base+2*j}')
                st(f'v_add_f32 v{base+1}, v{base+1}, v{base+2*j+1}')
        for step in range(7):
            for base in (S0, S0 + 8):
                st([f'v_permlane16_swap_b32 v{base}, v{base+1}', f'v_add_f32 v{base}, v{base}, v{base+1}',
                    f'v_mov_b32 v{base+1}, v{base}', f'v_permlane32_swap_b32 v{base}, v{base+1}',
                    f'v_add_f32 v{base}, v{base}, v{base+1}', f'v_mov_b32 v{base+1}, v{base}',
                    f'v_permlane16_swap_b32 v{base}, v{base+1}'][step])
        for base in (S0, S0 + 8):
            G.stat_finalize(st, base, base + 1, base + 2, 24)
        st('s_lshl_b32 s38, s3, 7')
        st(f'v_add_u32 v{S0+4}, s38, v{VC}')
        st(f'ds_write_b64 v{S0+4}, v[{S0}:{S0+1}] offset:128', tag='tab')
        st(f'ds_write_b64 v{VC}, v[{S0+8}:{S0+9}]', tag='tab')

    def gemm(seq, pre):
        g = Asm()
        D = 3

        def rd(idx):
            if idx in pre:
                g.extend(pre[idx])
            i, s = seq[idx]
            dst = BR + 4 * (idx & 3)
            off = i * 16384 + s * 1024
            g(f'ds_read_b128 v[{dst}:{dst+3}], v{1 if off < 65536 else VM_} offset:{off & 65535}')
        for idx in range(D):
            rd(idx)
        for idx, (i, s) in enumerate(seq):
            b = BR + 4 * (idx & 3)
            B = f'v[{b}:{b+3}]'
            acc = lambda r: f'v[{r}:{r+3}]'
            c = lambda r: acc(r) if s else '0'
            g(f'v_mfma_f32_16x16x32_bf16 {acc(AK(i))}, {wq_loc(3*s+1)}, {B}, {c(AK(i))}')
            last_b = idx + D < len(seq)
            if i == 0:
                g(f'v_mfma_f32_16x16x32_bf16 {acc(AV(i))}, {B}, {wq_loc(3*s+2)}, {c(AV(i))}')
                if last_b:
                    rd(idx + D)
            else:
                g(f'v_mfma_f32_16x16x32_bf16 {acc(AV(i))}, {B}, {wq_loc(3*s+2)}, {c(AV(i))}')
                if last_b:
                    rd(idx + D)
                g(f'v_mfma_f32_16x16x32_bf16 {acc(AQ(i))}, {wq_loc(3*s)}, {B}, {c(AQ(i))}')
        return g

    def epi(i):
        e = Asm()
        e(f'ds_read_b64 v[{CT}:{CT+1}], v{VC} offset:{128*i}')
        e(f'ds_read_b128 v[{CT+2}:{CT+5}], v{VR} offset:{128*i}')
        e(f'ds_read_b128 v[{CT+6}:{CT+9}], v{VR} offset:{128*i+16}')
        for v in range(4):
            e(f'v_fmac_f32 v{AK(i)+v}, v{CT+1}, v{CSK+v}')
        if i:
            for v in range(4):
                e(f'v_fmac_f32 v{AQ(i)+v}, v{CT+1}, v{CSQ+v}')
        for v in range(4):
            e(f'v_mul_f32 v{AK(i)+v}, v{CT}, v{AK(i)+v}')
        if i:
            e(f'v_mul_f32 v{SC+i}, s26, v{CT}')
            for dd in range(2):
                e(f'v_cvt_pk_bf16_f32 v{QP+2*i+dd}, v{AQ(i)+2*dd}, v{AQ(i)+2*dd+1}')
        for dd in range(2):
            e(f'v_cvt_pk_bf16_f32 v{KP+2*i+dd}, v{AK(i)+2*dd}, v{AK(i)+2*dd+1}')
        for v in range(4):
            e(f'v_fmac_f32 v{AV(i)+v}, v{CT+2+2*v+1}, v{CSV}')
        for v in range(4):
            e(f'v_mul_f32 v{AV(i)+v}, v{CT+2+2*v}, v{AV(i)+v}')
        for dd in range(2):
            e(f'v_cvt_pk_bf16_f32 v{VP+2*i+dd}, v{AV(i)+2*dd}, v{AV(i)+2*dd+1}')
        return e

    def attn(pr):
        e = Asm()
        tl = (1 + 2 * pr, 2 + 2 * pr)
        for u, i in enumerate(tl):
            e(f'v_mfma_f32_16x16x16_bf16 v[{SS+8*u}:{SS+8*u+3}], v[{KP+2*i-2}:{KP+2*i-1}], v[{QP+2*i}:{QP+2*i+1}], 0')
            e(f'v_mfma_f32_16x16x16_bf16 v[{SS+8*u+4}:{SS+8*u+7}], v[{KP+2*i}:{KP+2*i+1}], v[{QP+2*i}:{QP+2*i+1}], 0')
        if pr == 0:
            e('s_lshl_b32 s38, s16, 16')
            e('s_lshl_b32 s39, s17, 10')
            e('s_add_u32 s38, s38, s39')
            e(f's_add_u32 s38, s38, {hx(O_[l])}')
        else:
            e('s_add_u32 s38, s38, 32768')
        for u, i in enumerate(tl):
            for c in range(4):
                r = SS + 8 * u + 2 * c
                e(f'v_cndmask_b32 v{TT+4*u+c}, v{r}, v{r+1}, s[28:29]')
        for u, i in enumerate(tl):
            for c in range(4):
                bias = BI + c if not (i == 1 and c < 2) else BI + 4 + c
                e(f'v_fma_f32 v{TT+4*u+c}, v{TT+4*u+c}, v{SC+i}, v{bias}')
        for u in range(2):
            e(f'v_max3_f32 v{MM+u}, v{TT+4*u}, v{TT+4*u+1}, v{TT+4*u+2}')
        for u in range(2):
            e(f'v_max_f32 v{MM+u}, v{MM+u}, v{TT+4*u+3}')
        e(f'v_permlane16_swap_b32 v{MM}, v{MM+1}')
        e(f'v_max_f32 v{MM}, v{MM}, v{MM+1}')
        e(f'v_mov_b32 v{MM+1}, v{MM}')
        e(f'v_permlane32_swap_b32 v{MM}, v{MM+1}')
        e(f'v_max_f32 v{MM}, v{MM}, v{MM+1}')
        e(f'v_mov_b32 v{MM+1}, v{MM}')
        e(f'v_permlane16_swap_b32 v{MM}, v{MM+1}')
        for u in range(2):
            for c in range(4):
                e(f'v_sub_f32 v{TT+4*u+c}, v{TT+4*u+c}, v{MM+u}')
        for u in range(2):
            for c in range(4):
                e(f'v_exp_f32 v{TT+4*u+c}, v{TT+4*u+c}')
        for u, i in enumerate(tl):
            e(f'v_cvt_pk_bf16_f32 v{SS+8*u}, v{TT+4*u}, v{TT+4*u+1}')
            e(f'v_cvt_pk_bf16_f32 v{SS+8*u+1}, v{TT+4*u+2}, v{TT+4*u+3}')
            e(f'v_perm_b32 v{PP+4*u}, v{SS+8*u}, v{SS+8*u}, v{SELA}')
            e(f'v_perm_b32 v{PP+4*u+1}, v{SS+8*u}, v{SS+8*u}, v{SELB}')
            e(f'v_perm_b32 v{PP+4*u+2}, v{SS+8*u+1}, v{SS+8*u+1}, v{SELA}')
            e(f'v_perm_b32 v{PP+4*u+3}, v{SS+8*u+1}, v{SS+8*u+1}, v{SELB}')
            e(f'v_add_f32 v{MM+2+u}, v{TT+4*u}, v{TT+4*u+1}')
            e(f'v_add_f32 v{TT+4*u+2}, v{TT+4*u+2}, v{TT+4*u+3}')
            e(f'v_mfma_f32_16x16x32_bf16 v[{OO+4*u}:{OO+4*u+3}], v[{VP+2*i-2}:{VP+2*i+1}], v[{PP+4*u}:{PP+4*u+3}], 0')
            e(f'v_add_f32 v{MM+2+u}, v{MM+2+u}, v{TT+4*u+2}')
        S0_, S1_ = MM + 2, MM + 3
        e(f'v_permlane16_swap_b32 v{S0_}, v{S1_}')
        e(f'v_add_f32 v{S0_}, v{S0_}, v{S1_}')
        e(f'v_mov_b32 v{S1_}, v{S0_}')
        e(f'v_permlane32_swap_b32 v{S0_}, v{S1_}')
        e(f'v_add_f32 v{S0_}, v{S0_}, v{S1_}')
        e(f'v_rcp_f32 v{S0_}, v{S0_}')
        e(f'v_mov_b32 v{S1_}, v{S0_}')
        e(f'v_permlane16_swap_b32 v{S0_}, v{S1_}')
        for u in range(2):
            for v in range(4):
                e(f'v_mul_f32 v{OO+4*u+v}, v{OO+4*u+v}, v{S0_+u}')
        for u in range(2):
            for dd in range(2):
                e(f'v_cvt_pk_bf16_f32 v{OS+2*u+dd}, v{OO+4*u+2*dd}, v{OO+4*u+2*dd+1}')
        e(f'v_permlane16_swap_b32 v{OS}, v{OS+2}')
        e(f'v_permlane16_swap_b32 v{OS+1}, v{OS+3}')
        e(f'buffer_store_dwordx4 v[{OS}:{OS+3}], v1, s[8:11], s38 offen sc1', tag='ost')
        return e

    def bar(*tags, lg=()):
        b = Asm()
        b.waitvm(*tags)
        if lg:
            b.waitlgkm(*lg)
        b('s_barrier')
        return b

    pf = cat(st_wo_f(), st_wgu((0, 1)))
    if l == 0:
        sg_, gl = front0(a, consts, AK, AV, AQ, CSQ, CSK, CSV, VC)
        tail = cat(epi(0), epi(1), epi(2), attn(0), epi(3), epi(4), attn(1))
        a('s_waitcnt lgkmcnt(0)')
        if cfg.ssig == 16:
            a.waitvm('slab', 'z')
        a('s_barrier')
        if cfg.ssig == 16:
            a.group(sg_)
        pf1, rest = st_wo().ins, []
    elif cfg.ks:
        ul = []
        for x in cfg.lord.split():
            ul += units({'st': sl, 'wq': wq_late, 'wo': st_wo_f()}[x] if x in ('st', 'wq', 'wo')
                        else xpiece(int(x[0]), int(x[1])))
        for x in ul[:cfg.npre]:
            a.extend(x)
        seq = [(i, 8 * h + s) for (i, h) in cfg.segs for s in range(8)]
        pre = {8 * p: bar(*['x' + t for t in tg.split()], lg=('tab',) if p == cfg.tabp else ()) for p, tg in cfg.bars.items()}
        g = gemm(seq, pre)
        first = {}
        m = 0
        for i in g.ins:
            if i.waittags:
                for t_ in i.waittags[1]:
                    first.setdefault(t_, m)
            if i.kind == 'mfma':
                for r in i.uses:
                    first.setdefault(r, m)
                m += 1
        tl = []
        for k, x in enumerate(ul[cfg.npre:]):
            ld_ = [i for i in x if i.kind == 'vmem'][0]
            if ld_.tag == 'wq':
                dl = min(first[r] for r in ld_.defs)
            elif ld_.tag == 'wo':
                dl = 224
            elif ld_.tag:
                dl = first[ld_.tag]
            else:
                dl = cfg.vt[0][0]
            tl.append(dl - cfg.lead)
        for k in range(len(tl) - 2, -1, -1):
            tl[k] = min(tl[k], tl[k + 1] - cfg.lmin)
        for k in range(len(tl)):
            tl[k] = max(min(tl[k], tl[k - 1] + cfg.lgap if k else 0), 0)
        if cfg.verbose:
            print('p1.1 loads', [(([i for i in x if i.kind == 'vmem'][0].tag or 'st'), round(t_, 1)) for x, t_ in zip(ul[cfg.npre:], tl)])
        items = list(zip(tl, ul[cfg.npre:]))
        for x, (lo, hi) in zip((st, epi(0), epi(1), epi(2), attn(0), epi(3)), cfg.vt):
            items += spread(x, lo, hi)
        for nm, m in (('st0', 31), ('st1', 79), ('st2', 127), ('st3', 175)):
            e = Asm()
            stamp(e, 'p1.1 ' + nm)
            items.append((m, e.ins))
        n0 = len(a.ins)
        tmerge(a, g, items)
        seen = set()
        for i in a.ins[n0 - 60:]:
            wt_ = getattr(i, 'waittags', None)
            if wt_:
                assert wt_[1] <= seen, (wt_, seen)
                if 'tab' in wt_[1]:
                    seen.add('tabok')
            if getattr(i, 'tag', None):
                seen.add(i.tag)
            if i.kind == 'ds' and f'v{VC} offset' in i.text and 'read' in i.text:
                assert 'tabok' in seen
        stamp(a, 'p1.1 gemm')
        e4 = epi(4).ins
        a.extend(e4[:3])
        wo_in = 'wo' in cfg.lord
        if wo_in:
            a.waitvm('wo')
        a('s_waitcnt lgkmcnt(0)')
        a('s_barrier')
        tail = cat(e4[3:], attn(1))
        pf = cat([] if wo_in else st_wo_f(), st_wgu(cfg.w1set))
        pf1, rest = vm_split(pf, cfg.npf1)
    else:
        d1, d2 = vm_split(d, 14)
        a.extend(d1)
        seq = [(i, s) for i in range(5) for s in range(16)]
        g = gemm(seq, {0: bar('x0'), 16: bar('x1'), 32: bar('x2', lg=('tab',)), 48: bar('x3'), 64: bar('x4')})
        parts = split_mfma(g.ins, (32, 80, 128, 176))
        d2a, d2b = vm_split(d2, 6)
        a.merge(parts[0], d2a, 0, 24)
        stamp(a, 'p1.1 st0')
        a.merge(parts[1], mix(d2b, st), 0, 36)
        stamp(a, 'p1.1 st1')
        a.merge(parts[2], cat(epi(0), epi(1)), 0, 48)
        stamp(a, 'p1.1 st2')
        at = attn(0).ins
        na = len(at) // 3
        a.merge(parts[3], cat(epi(2), at[:na]), 3, 48)
        stamp(a, 'p1.1 st3')
        a.merge(parts[4], cat(at[na:], epi(3)), 0, 48)
        stamp(a, 'p1.1 gemm')
        a('s_waitcnt lgkmcnt(0)')
        a('s_barrier')
        tail = cat(epi(4), attn(1))
        pf1, rest = vm_split(pf, 9)
    a.extend(mix(tail[:-6], pf1))
    if cfg.nod & 1:
        a('s_lshl_b32 s30, s16, 8')
        a(f's_add_u32 s30, s30, {hx(F1(l))}')
        a('v_mov_b32 v3, 1')
    a.extend(tail[-6:])
    if cfg.nod & 1:
        if cfg.nodm == 'b':
            a('s_barrier')
        signal(a, 's30', 3, wave0_only=cfg.nodm == 'b')
    stamp(a, f'p1.{l} stored')
    r1, r2 = vm_split(rest, 8)
    a.extend(r1)
    if l == 0:
        wt = wo_tr(28).ins
        k = len(wt) - cfg.wtlate
        a.extend(wt[:k])
        a.extend(gl)
    if not cfg.nod & 1:
        a('s_lshl_b32 s30, s16, 8')
        a(f's_add_u32 s30, s30, {hx(F1(l))}')
        a('v_mov_b32 v3, 1')
        a.waitvm('ost')
        a('s_barrier')
        signal(a, 's30', 3)
    stamp(a, f'p1.{l} signalled')
    if l == 0:
        a.extend(wt[k:])
        a.extend(g0_check())
        a('s_barrier')
        stamp(a, 'p1.0 g0')
        r2 = cat(st_wgu((0, 1)), st_wd(range(8, 8 + cfg.wdearly)))
    return r2


def p2(a, l, r2):
    X = X0 if l == 0 else X2
    VD = 7
    BF, RS, AC, AR, PK = 28, 92, 100, 116, 148
    a(f'v_add_u32 v8, {LDS_WO}, v1')
    a('s_lshr_b32 s30, s3, 1')
    a('s_lshl_b32 s31, s18, 1')
    a('s_add_u32 s30, s30, s31')
    a('s_lshl_b32 s30, s30, 15')
    a('s_and_b32 s31, s3, 1')
    a('s_lshl_b32 s31, s31, 8')
    a('s_add_u32 s30, s30, s31')
    a(f's_add_u32 s31, s30, {hx(O_[l])}')
    a('s_lshl_b32 s32, s19, 12')
    a('s_add_u32 s30, s30, s32')
    a(f's_add_u32 s32, s30, {hx(X)}')
    a(f's_add_u32 s33, s30, {hx(X1_[l])}')
    a('s_lshl_b32 s34, s18, 8')
    a(f's_add_u32 s35, s34, {hx(F2(l))}')
    a(f's_add_u32 s34, s34, {hx(F1(l))}')
    a('s_lshl_b32 s36, s18, 2')
    a('s_add_u32 s36, s36, s3')
    a('s_lshl_b32 s36, s36, 10')
    a('s_lshl_b32 s37, s19, 7')
    a('s_add_u32 s36, s36, s37')
    a(f's_add_u32 s36, s36, {hx(STB[l])}')
    a('v_bfe_u32 v9, v0, 4, 1')
    a('v_lshlrev_b32 v9, 2, v9')
    a('v_and_b32 v10, 15, v0')
    a('v_lshl_add_u32 v9, v10, 3, v9')
    if l == 0:
        a('v_lshlrev_b32 v10, 10, v10')
        a('v_lshrrev_b32 v11, 4, v0')
        a('v_lshl_add_u32 v10, v11, 4, v10')
        a('s_lshl_b32 s32, s18, 2')
        a('s_add_u32 s32, s32, s3')
        a('s_lshl_b32 s32, s32, 14')
        a('s_lshl_b32 s37, s19, 7')
        a('s_add_u32 s32, s32, s37')
        a(f'buffer_load_dwordx4 v[{RS}:{RS+3}], v10, s[60:63], s32 offen')
        a(f'buffer_load_dwordx4 v[{RS+4}:{RS+7}], v10, s[60:63], s32 offen offset:64')
    window(a, r2, 's34')
    a.waitvm('wo')
    a('s_waitcnt lgkmcnt(0)')
    stamp(a, f'p2.{l} prepoll')
    poll_wg(a, 's34', 1, 'off', tgt(1), each=cfg.pw & 1)
    stamp(a, f'p2.{l} start')
    sc = ' sc1'
    ld = Asm()
    for s in range(16):
        ld(f'buffer_load_dwordx4 v[{BF+4*s}:{BF+4*s+3}], v{VD}, s[8:11], s31 offen offset:{2048*(s&1)}{sc}')
        if s & 1 and s < 15:
            ld('s_add_u32 s31, s31, 4096')
    if l:
        ld(f'buffer_load_dwordx4 v[{RS}:{RS+3}], v{VD}, s[8:11], s32 offen{sc}')
        ld(f'buffer_load_dwordx4 v[{RS+4}:{RS+7}], v{VD}, s[8:11], s32 offen offset:2048{sc}')
    l1, l2 = vm_split(ld, 10)
    a.extend(l1)
    g = Asm()

    def rd(idx):
        dd = AR + 4 * (idx & 7)
        g(f'ds_read_b128 v[{dd}:{dd+3}], v8 offset:{idx*1024}', tag=f'r{idx}')
    for idx in range(6):
        rd(idx)
    for idx in range(64):
        s, t = idx >> 2, idx & 3
        dd = AR + 4 * (idx & 7)
        c = f'v[{AC+4*t}:{AC+4*t+3}]'
        if idx & 1 == 0:
            g.waitlgkm(f'r{idx+1}')
        g(f'v_mfma_f32_16x16x32_bf16 {c}, v[{dd}:{dd+3}], v[{BF+4*s}:{BF+4*s+3}], {c if s else 0}')
        if idx + 6 < 64:
            rd(idx + 6)
    a.merge(g, l2, 0, 24)
    stamp(a, f'p2.{l} gemm')
    for p in range(2):
        for dd in range(4):
            r = AC + 8 * p + 2 * dd
            G.unpack_add(a, r, r + 1, RS + 4 * p + dd, 156)
            a(f'v_cvt_pk_bf16_f32 v{PK+4*p+dd}, v{r}, v{r+1}')
        a(f'buffer_store_dwordx4 v[{PK+4*p}:{PK+4*p+3}], v{VD}, s[8:11], s33 offen offset:{2048*p} sc1', tag='xst')
    a('v_mov_b32 v156, 0')
    a('v_mov_b32 v157, 0')
    for dd in range(8):
        a(f'v_dot2_f32_bf16 v156, v{PK+dd}, s25, v156')
    for dd in range(8):
        a(f'v_dot2_f32_bf16 v157, v{PK+dd}, v{PK+dd}, v157')
    a('v_permlane16_swap_b32 v156, v157')
    a('v_add_f32 v156, v156, v157')
    a('v_mov_b32 v157, v156')
    a('v_permlane32_swap_b32 v156, v157')
    a('v_add_f32 v156, v156, v157')
    a('v_mov_b32 v3, 1')
    a('buffer_store_dword v156, v9, s[8:11], s36 offen sc1', tag='xst')
    if cfg.nod & 2 and cfg.nodm == 'a':
        signal(a, 's35', 3, wave0_only=False)
    stamp(a, f'p2.{l} stored')
    a('s_barrier')
    if cfg.nod & 2 and cfg.nodm == 'b':
        signal(a, 's35', 3)
    w1, w2 = vm_split(st_wgu([T for T in range(5) if T not in (cfg.w1set if l and cfg.ks else (0, 1))]), 8)
    a.extend(w1)
    if not cfg.nod & 2:
        a.waitvm('xst')
        a('s_barrier')
        signal(a, 's35', 3)
    stamp(a, f'p2.{l} signalled')
    return w2


def p34(a, l, win):
    XF = 128
    ACC = [16, 32, 48]
    AR = 80
    TM = 112
    HP = 120
    C0, C1, IA2 = 12, 13, 14
    a('s_lshl_b32 s34, s20, 9')
    a(f's_add_u32 s34, s34, {hx(F2(l))}')
    window(a, win, 's34', '256')
    a('v_and_b32 v4, 31, v0')
    a('v_lshrrev_b32 v5, 5, v0')
    a('v_lshrrev_b32 v6, 4, v4')
    a('v_lshlrev_b32 v6, 10, v6')
    a('v_lshl_add_u32 v6, v5, 9, v6')
    a('v_and_b32 v7, 15, v4')
    a('v_lshl_add_u32 v6, v7, 3, v6')
    a('v_add_u32 v8, 65536, v1')
    a('v_add_u32 v9, 0x20000, v1')
    a('v_lshlrev_b32 v10, 8, v0')
    a('s_lshl_b32 s30, s20, 2')
    a('s_add_u32 s30, s30, s3')
    a('s_lshl_b32 s31, s30, 15')
    a(f's_add_u32 s31, s31, {hx(X1_[l])}')
    a('s_lshl_b32 s32, s30, 11')
    a(f's_add_u32 s32, s32, {hx(STB[l])}')
    a('s_mul_i32 s33, s30, 114688')
    a('s_mul_i32 s35, s21, 7168')
    a('s_add_u32 s33, s33, s35')
    a(f's_add_u32 s33, s33, {hx(H_[l])}')
    a('s_lshl_b32 s35, s20, 3')
    a('s_lshr_b32 s36, s3, 1')
    a('s_lshl_b32 s36, s36, 2')
    a('s_add_u32 s35, s35, s36')
    a('s_lshr_b32 s36, s21, 2')
    a('s_add_u32 s35, s35, s36')
    a('s_lshl_b32 s35, s35, 8')
    a('s_lshl_b32 s36, s22, 2')
    a('s_add_u32 s36, s36, s3')
    a('s_lshl_b32 s36, s36, 8')
    w1set = cfg.w1set if l and cfg.ks else (0, 1)
    a.waitvm(*[f'wg{T}' for T in w1set])
    stamp(a, f'p3.{l} prepoll')
    poll_wg(a, 's34', 3, 'v10', tgt(2), second='256', each=cfg.pw & 2)
    stamp(a, f'p3.{l} start')
    ld = Asm()
    for j in range(4):
        ld(f'buffer_load_dwordx2 v[{TM+2*j}:{TM+1+2*j}], v6, s[8:11], s32 offen offset:{128*j} sc1')
    for s in range(32):
        ld(f'buffer_load_dwordx4 v[{XF+4*s}:{XF+4*s+3}], v1, s[8:11], s31 offen offset:{1024*(s&3)} sc1')
        if (s & 3) == 3 and s < 31:
            ld('s_add_u32 s31, s31, 4096')
    l1, l2 = vm_split(ld, 13)
    a.extend(l1)
    stt = Asm()
    for j in range(1, 4):
        stt(f'v_add_f32 v{TM}, v{TM}, v{TM+2*j}')
        stt(f'v_add_f32 v{TM+1}, v{TM+1}, v{TM+1+2*j}')
    stt(f'v_permlane32_swap_b32 v{TM}, v{TM+1}')
    stt(f'v_add_f32 v{TM}, v{TM}, v{TM+1}')
    stt(f'v_mov_b32 v{TM+1}, v{TM}')
    stt(f'v_permlane32_swap_b32 v{TM}, v{TM+1}')
    G.stat_finalize(stt, TM, TM + 1, TM + 2, 24)
    k0 = -2.0 * math.sqrt(2.0 / math.pi) * math.log2(math.e)
    k1 = k0 * 0.044715
    stt(f'v_cvt_pk_bf16_f32 v{TM+4}, v{TM+1}, v{TM+1}')
    stt(f'v_mul_f32 v{TM+2}, v{TM}, v{TM}')
    stt(f'v_and_b32 v{TM+5}, 0xffff0000, v{TM+4}')
    stt(f'v_mul_f32 v{C0}, {hx(f2u(k0))}, v{TM}')
    stt(f'v_sub_f32 v{TM+1}, v{TM+1}, v{TM+5}')
    stt(f'v_mul_f32 v{TM+3}, v{TM+2}, v{TM}')
    stt(f'v_mov_b32 v{MBZ}, 0')
    stt(f'v_cvt_pk_bf16_f32 v{TM+5}, v{TM+1}, v{MBZ}')
    stt(f'v_mul_f32 v{C1}, {hx(f2u(k1))}, v{TM+3}')
    stt(f'v_rcp_f32 v{IA2}, v{TM+2}')
    for r in (1, 4, 5, 8, 9):
        stt(f'v_mov_b32 v{MBZ+r}, 0')
    stt('v_cmp_gt_u32 vcc, 32, v0')
    for dd in range(2):
        stt(f'v_cndmask_b32 v{MBZ+2+dd}, v{MBZ}, v{TM+4+dd}, vcc')
        stt(f'v_cndmask_b32 v{MBZ+6+dd}, v{TM+4+dd}, v{MBZ}, vcc')
        stt(f'v_cndmask_b32 v{CF[1]+2+dd}, v{MBZ}, v{CF[1]+2+dd}, vcc')

    seq = [(T, s) for s in range(32) for T in range(2)] + [(T, 32) for T in range(2)]
    for T in range(2, 7):
        seq += [(T, s) for s in range(33)]
    rseq = [x for x in seq if x[1] < 32]
    g = Asm()
    D = 6
    rpos = {x: k for k, x in enumerate(rseq)}

    def rd(k):
        T, s = rseq[k]
        if (T, s) == (len(w1set), 0):
            g.waitvm(*[f'wg{x}' for x in range(T, 5)])
            g('s_barrier')
        if (T, s) == (5, 0):
            g.waitvm('wg5', 'wg6')
            g('s_barrier')
        dd = AR + 4 * (k & 7)
        off = slot(T) + s * 1024
        base = 'v1' if off < 65536 else ('v8' if off < 131072 else 'v9')
        g(f'ds_read_b128 v[{dd}:{dd+3}], {base} offset:{off & 65535}', tag=f'r{k}')
    for k in range(D):
        rd(k)
    accof = {T: T % 3 for T in range(7)}
    for (T, s) in seq:
        ac = ACC[accof[T]]
        c = f'v[{ac}:{ac+15}]'
        if s == 32:
            mb = MBZ + 4 * ((T >> 1) & 1) + (0 if T & 1 else 2)
            g(f'v_mfma_f32_32x32x16_bf16 {c}, v[{CF[T>>2]}:{CF[T>>2]+3}], v[{mb}:{mb+3}], {c}')
            continue
        k = rpos[(T, s)]
        dd = AR + 4 * (k & 7)
        if k & 1 == 0 and k + 1 < len(rseq):
            g.waitlgkm(f'r{k+1}')
        g(f'v_mfma_f32_32x32x16_bf16 {c}, v[{dd}:{dd+3}], v[{XF+4*s}:{XF+4*s+3}], {c if s else 0}')
        if k + D < len(rseq):
            rd(k + D)

    def epi(T):
        e = Asm()
        ac = ACC[accof[T]]
        steps = [lambda x: f'v_mul_f32 v{TM+x}, v{ac+x}, v{ac+x}',
                 lambda x: f'v_fma_f32 v{TM+x}, v{TM+x}, v{C1}, v{C0}',
                 lambda x: f'v_mul_f32 v{TM+x}, v{TM+x}, v{ac+x}',
                 lambda x: f'v_exp_f32 v{TM+x}, v{TM+x}',
                 lambda x: f'v_mul_f32 v{ac+x}, v{ac+x}, v{ac+8+x}',
                 lambda x: f'v_fma_f32 v{TM+x}, v{TM+x}, v{IA2}, v{IA2}',
                 lambda x: f'v_rcp_f32 v{TM+x}, v{TM+x}',
                 lambda x: f'v_mul_f32 v{ac+x}, v{ac+x}, v{TM+x}']
        ev = sorted(((8 * x + [0, 1, 2, 3, 4, 13, 15, 25][k], x, k) for x in range(8) for k in range(8)))
        for _, x, k in ev:
            e(steps[k](x))
            if k == 7 and x & 1:
                e(f'v_cvt_pk_bf16_f32 v{HP+(x>>1)}, v{ac+x-1}, v{ac+x}')
        if T == 4:
            e('s_add_u32 s33, s33, 4096')
        e(f'buffer_store_dwordx4 v[{HP}:{HP+3}], v1, s[8:11], s33 offen offset:{1024*(T&3)} sc1', tag=f'h{T}')
        return e

    def sig(st):
        e = Asm()
        e(f's_add_u32 s38, s35, {hx(F3(l, st))}')
        e('v_mov_b32 v3, 1')
        if not cfg.xp & 8:
            e.waitvm(*[f'h{T}' for T in cfg.stages[st]])
        if not cfg.xp & 4:
            signal(e, 's38', 3, wave0_only=False)
        return e

    parts = split_mfma(g.ins, (66, 99, 132, 165, 198))
    a.merge(parts[0], cat(l2, st_csf(), stt), 0, 60)
    stamp(a, f'p3.{l} T01')
    a('s_barrier')
    epis = [epi(T) for T in range(7)]
    es = cat(*epis[:6])
    ne = len(es)
    cut = [ne * k // 5 for k in range(6)]
    ep = [es[cut[k]:cut[k + 1]] for k in range(5)]
    wd_list = st_wd(range(8) if l else list(range(8)) + list(range(8 + cfg.wdearly, 28))).ins
    nwd = len(wd_list)
    extra = [cat(st_wgu((5, 6))), wd_list[:nwd // 2], wd_list[nwd // 2:], [], []]
    if l == 0:
        extra = [cat(st_wgu((5, 6))), wd_list[:nwd // 3], wd_list[nwd // 3:2 * nwd // 3],
                 wd_list[2 * nwd // 3:], []]
    nst = len(cfg.stages)
    last_tile = [max(x) for x in cfg.stages]
    E0, P0 = 165, 178
    NA, NB = cfg.NA, (cfg.NB if l == 1 else 16)
    ko = p4_korder()
    pseq = [(t, s) for st in range(len(ko) - 2) for t in (1, 0) for s in ko[st]]
    if cfg.lastmix:
        pseq += [(t, s) for t in (1, 0) for st in (-2, -1) for s in ko[st]]
    else:
        pseq += [(t, s) for st in (-2, -1) for t in (1, 0) for s in ko[st]]
    stage_of = {s: st for st in range(len(ko)) for s in ko[st]}

    def bloc(j):
        if j < NA:
            return f'a[{224+4*j}:{227+4*j}]'
        r = 128 + 4 * ((j - NA) % NB)
        return f'v[{r}:{r+3}]'

    def free(j):
        if j < NA:
            return 0
        if j - NA < NB:
            return 132 + (j - NA) + 1
        return P0 + 2 * (j - NB) + 2
    store_t = lambda T: (T + 1) * 27.5 if T < 6 else P0
    sig_t = [store_t(T) + cfg.sigd for T in last_tile]
    chk_t = [x + cfg.vis + cfg.pd for x in sig_t]
    items = []

    def at(t, lst):
        items.append((int(t), len(items), lst.ins if isinstance(lst, Asm) else lst))
    su = Asm()
    su('s_lshl_b32 s39, s22, 1')
    su('s_lshr_b32 s52, s3, 1')
    su('s_add_u32 s39, s39, s52')
    su('s_xor_b32 s52, s39, 1')
    su('s_mul_i32 s53, s3, 28672')
    su(f's_add_u32 s53, s53, {hx(H_[l])}')
    su('s_mul_i32 s54, s39, 114688')
    su('s_mul_i32 s55, s52, 114688')
    su('s_add_u32 s54, s54, s53')
    su('s_add_u32 s55, s55, s53')
    if cfg.xp & 16:
        su('s_mul_i32 s53, s3, 28672')
        su(f's_add_u32 s54, s53, {hx(WD_F)}')
        su(f's_add_u32 s55, s53, {hx(WD_F + 114688)}')
        su('s_nop 0')
    su('s_lshl_b32 s30, s23, 1')
    su('s_and_b32 s31, s3, 1')
    su('s_add_u32 s30, s30, s31')
    su('s_lshl_b32 s31, s39, 15')
    su('s_lshl_b32 s32, s30, 11')
    su('s_add_u32 s31, s31, s32')
    su(f's_add_u32 s32, s31, {hx(X1_[l])}')
    su('v_lshlrev_b32 v6, 10, v5')
    su('v_lshl_add_u32 v6, v4, 4, v6')
    for k in range(0, len(su.ins), 2):
        at(70 + k, su.ins[k:k + 2])
    RS, PK = 96, 104
    wq = st_wqkv(range(24)).ins if l == 0 else []
    wq_vm = [k for k, i in enumerate(wq) if i.kind == 'vmem']
    wq_parts = [wq[(wq_vm[k - 1] + 1 if k else 0):wq_vm[k] + 1] for k in range(len(wq_vm))]
    wq_free = lambda f: E0 if f < 16 else P0 + 2 * NA + 2
    t = chk_t[0]
    j = wk = 0
    rs_done = False
    checked = set()
    while j < 56 or (wk < len(wq_parts) and t < P0 + 110):
        use = P0 + (2 * j if j < 56 - cfg.fin else 56 - cfg.fin + j)
        if j < 56:
            st = stage_of[pseq[j][1]]
            ok = t >= free(j) and t >= chk_t[st] and use - t <= cfg.la
            forced = t + cfg.gap > use - 1
            if ok or forced:
                tt = min(max(t, free(j)), use - 1)
                if st not in checked:
                    checked.add(st)
                    e = Asm()
                    e(f's_add_u32 s56, s36, {hx(F3(l, st))}')
                    e(f's_load_dword s{92+st}, s[4:5], s56 glc', raw=True)
                    at(tt - cfg.pd, e)
                    e = Asm()
                    e(f's_add_u32 s56, s36, {hx(F3(l, st))}')
                    e('s_waitcnt lgkmcnt(0)')
                    if not cfg.xp & 4:
                        poll_check(e, 11, 's56', 8, scalar=92 + st)
                    at(tt, e)
                tk, s_ = pseq[j]
                e = Asm()
                e(f's_add_u32 s53, s{55 if tk else 54}, {s_*1024}')
                e(f'buffer_load_dwordx4 {bloc(j)}, v1, s[8:11], s53 offen sc1')
                at(tt, e)
                j += 1
                t += cfg.gap
                continue
        if not rs_done and t >= P0 + 4:
            rs_done = True
            e = Asm()
            e(f'buffer_load_dwordx4 v[{RS}:{RS+3}], v6, s[8:11], s32 offen sc1')
            e(f'buffer_load_dwordx4 v[{RS+4}:{RS+7}], v6, s[8:11], s32 offen offset:512 sc1')
            at(t, e)
            t += 2 * cfg.gap
            continue
        if wk < len(wq_parts) and t >= wq_free(wk):
            at(t, wq_parts[wk])
            wk += 1
        t += cfg.gap
    if not rs_done:
        e = Asm()
        e(f'buffer_load_dwordx4 v[{RS}:{RS+3}], v6, s[8:11], s32 offen sc1')
        e(f'buffer_load_dwordx4 v[{RS+4}:{RS+7}], v6, s[8:11], s32 offen offset:512 sc1')
        at(min(t, P0 + 100), e)
    for st in range(nst):
        at(sig_t[st], sig(st))
    items.sort()
    if cfg.verbose:
        print('wk', wk)
        print('plan', l, [(x[0], (x[2][-1].text.split(',')[0].replace('buffer_load_dwordx4 ', '') if hasattr(x[2][-1], 'text') else 'G' + x[2][0].text[-6:])) for x in items if x[0] > 90])

    def timed(lst, lo, hi):
        out = []
        m = lo - 1
        for i in lst:
            out.append(i)
            if i.kind == 'mfma':
                m += 1
                for x in items:
                    if x[0] == m:
                        out.extend(x[2])
        assert m == hi - 1, (m, hi)
        return out
    for k in range(5):
        a.merge(timed(parts[1 + k], 33 * k, 33 * k + 33), mix(ep[k], extra[k]), 1 if k == 0 else 0, 33, cap=24)
        stamp(a, f'p3.{l} T{k+2}')
    ACC4 = [32, 48, 64, 80]
    su2 = Asm()
    for u in range(1, 4):
        su2(f's_xor_b32 s37, s3, {u}')
        su2('s_mul_i32 s37, s37, 12288')
        su2(f's_add_u32 s37, s37, {65536 + (u-1)*4096}')
        su2(f'v_add_u32 v{6+u}, s37, v1')
    su2('s_mul_i32 s37, s3, 12288')
    su2('s_add_u32 s37, s37, 65536')
    su2('v_add_u32 v10, s37, v1')
    e6 = epis[6].ins
    n6 = len(e6) - 1
    for k in range(13):
        a.extend(e6[n6 * k // 13:n6 * (k + 1) // 13])
        if k == 12:
            a.extend(e6[n6:])
        for x in items:
            if (E0 <= x[0] < P0 and k == 12) if cfg.elate else x[0] == E0 + k:
                a.extend(x[2])
    stamp(a, f'p4.{l} start')

    def spill(e, u):
        for i in range(4):
            r = ACC4[u] + 4 * i
            e(f'ds_write_b128 v{6+u}, v[{r}:{r+3}] offset:{1024*i}', tag='sp')
    last1 = max(k for k, (t, s) in enumerate(pseq) if t == 1)
    started = set()
    spq = []
    for u in (3, 2, 1):
        e = Asm()
        spill(e, u)
        for i in e.ins:
            i.note = u
        spq += e.ins
    order = [(idx, f) for idx in range(56 - cfg.fin) for f in (1, 0)]
    order += [(idx, f) for f in (1, 0) for idx in range(56 - cfg.fin, 56)]
    for m, (idx, f) in enumerate(order):
        t, s = pseq[idx]
        u = 2 * t + f
        c = f'v[{ACC4[u]}:{ACC4[u]+15}]'
        a(f'v_mfma_f32_32x32x16_bf16 {c}, {wd_loc(s, f)}, {bloc(idx)}, {c if u in started else 0}')
        started.add(u)
        for x in items:
            if x[0] == P0 + m:
                a.extend(x[2])
        if m < 6:
            a.extend(su2.ins[3 * m:3 * m + 3])
        if l == 1 and m in (19, 47, 79):
            stamp(a, f'p4.1 idx{m//2}')
        if m >= 2 * last1 + 2 and spq and (spq[0].note != 1 or m >= 113 - cfg.fin):
            i = spq.pop(0)
            i.note = None
            a.ins.append(i)
    for i in spq:
        i.note = None
        a.ins.append(i)
    wq_early = wq
    stamp(a, f'p4.{l} gemm')
    for dd in range(8):
        G.unpack_add(a, ACC4[0] + 2 * dd, ACC4[0] + 2 * dd + 1, RS + dd, 112)
    a('s_waitcnt lgkmcnt(0)')
    a('s_barrier')
    stamp(a, f'p4.{l} bar')
    PR = 128
    for u in range(3):
        for i in range(4):
            r = PR + 16 * u + 4 * i
            a(f'ds_read_b128 v[{r}:{r+3}], v10 offset:{4096*u + 1024*i}')
    for u in range(3):
        for e in range(16):
            a(f'v_add_f32 v{ACC4[0]+e}, v{ACC4[0]+e}, v{PR+16*u+e}')
    for dd in range(8):
        a(f'v_cvt_pk_bf16_f32 v{PK+dd}, v{ACC4[0]+2*dd}, v{ACC4[0]+2*dd+1}')
    if l == 0:
        a(f's_add_u32 s32, s31, {hx(X2)}')
        a(f'buffer_store_dwordx4 v[{PK}:{PK+3}], v6, s[8:11], s32 offen sc1', tag='xst')
        a(f'buffer_store_dwordx4 v[{PK+4}:{PK+7}], v6, s[8:11], s32 offen offset:512 sc1', tag='xst')
        a('v_mov_b32 v112, 0')
        a('v_mov_b32 v113, 0')
        for dd in range(8):
            a(f'v_dot2_f32_bf16 v112, v{PK+dd}, s25, v112')
        for dd in range(8):
            a(f'v_dot2_f32_bf16 v113, v{PK+dd}, v{PK+dd}, v113')
        a('v_lshlrev_b32 v7, 2, v5')
        a('v_lshl_add_u32 v7, v4, 3, v7')
        a('s_lshl_b32 s32, s39, 12')
        a('s_lshl_b32 s33, s30, 8')
        a('s_add_u32 s32, s32, s33')
        a(f's_add_u32 s32, s32, {hx(STA[1])}')
        a('v_permlane32_swap_b32 v112, v113')
        a('v_add_f32 v112, v112, v113')
        a('s_lshl_b32 s30, s22, 8')
        a(f's_add_u32 s30, s30, {hx(F4())}')
        a('v_mov_b32 v3, 1')
        a('buffer_store_dword v112, v7, s[8:11], s32 offen sc1', tag='xst')
        if cfg.nod & 4:
            if cfg.nodm == 'b':
                a('s_barrier')
            signal(a, 's30', 3, wave0_only=cfg.nodm == 'b')
        stamp(a, f'p4.{l} stored')
        second = [f for f in range(24, 48) if f % 3] + list(range(24, 48, 3)) if cfg.ks else list(range(24, 48))
        left = list(range(wk, 24)) + second
        nwin = cfg.nwin if cfg.ks else len(left)
        late = st_wqkv(left[nwin:])
        r1, r2 = vm_split(st_wqkv(left[:nwin]), 8)
        a.extend(r1)
        if not cfg.nod & 4:
            a.waitvm('xst')
            a('s_barrier')
            signal(a, 's30', 3)
        stamp(a, f'p4.{l} signalled')
        return r2, late
    else:
        a('v_lshlrev_b32 v7, 5, v5')
        a('v_lshl_add_u32 v7, v4, 10, v7')
        a('s_lshl_b32 s32, s39, 15')
        a('s_lshl_b32 s33, s30, 6')
        a('s_add_u32 s32, s32, s33')
        a(f'buffer_store_dwordx4 v[{PK}:{PK+3}], v7, s[12:15], s32 offen')
        a(f'buffer_store_dwordx4 v[{PK+4}:{PK+7}], v7, s[12:15], s32 offen offset:16')
        stamp(a, f'p4.{l} stored')


def gen_main():
    a = Asm()
    name = NAME + '_kernel'
    header(a, name)
    a('s_load_dwordx16 s[72:87], s[0:1], 0')
    a('s_load_dwordx4 s[88:91], s[0:1], 64')
    a('v_lshrrev_b32 v3, 6, v0')
    a('v_and_b32 v0, 63, v0')
    a('v_readfirstlane_b32 s3, v3')
    a('v_lshlrev_b32 v1, 4, v0')
    if cfg.stamp:
        a('v_mov_b32 v2, 0')
        a('s_memrealtime s[70:71]')
    stamp(a, 'entry')
    role(a, 16, 17, cfg.e1, 5, 3)
    a('s_lshl_b32 s17, s17, 2')
    a('s_add_u32 s17, s17, s3')
    front_early(a)
    a(f's_mov_b32 s24, {hx(f2u(1e-5))}')
    a(f's_mov_b32 s25, {hx(ONES)}')
    a(f's_mov_b32 s26, {hx(f2u(0.25 * math.log2(math.e)))}')
    a('s_mov_b32 s28, 0xaaaaaaaa')
    a('s_mov_b32 s29, 0xaaaaaaaa')
    if cfg.tlb:
        a('s_waitcnt lgkmcnt(0)')
        for k, r in enumerate((76, 80, 82, 84)):
            a(f's_load_dword s{(6, 7, 100, 101)[k]}, s[{r}:{r+1}], 0', raw=True)
    srd(a, 60, 72, 2048 * 1024)
    srd(a, 92, 74, 512 * 3072)
    srd(a, 8, 90, WS_BYTES)
    srd(a, 12, 86, 2048 * 1024)
    a('s_mov_b32 s4, s90')
    a('s_mov_b32 s5, s91')
    a(f's_mov_b32 s78, {512 * 1024}')
    a('s_mov_b32 s79, 0x00020000')
    a('s_mov_b32 s90, 256')
    a('s_mov_b32 s91, 0x00020000')
    stamp(a, 'p1.0 start')
    w = ()
    for l in range(2):
        w = p34(a, l, p2(a, l, p1(a, l, *w)))
    if cfg.stamp:
        a('s_waitcnt vmcnt(0)')
        stamp(a, 'end')
        a('s_memrealtime s[72:73]')
        a('s_waitcnt lgkmcnt(0)')
        a('v_writelane_b32 v2, s70, 62')
        a('v_writelane_b32 v2, s72, 63')
        a('s_lshl_b32 s30, s2, 2')
        a('s_add_u32 s30, s30, s3')
        a('s_lshl_b32 s30, s30, 8')
        a(f's_add_u32 s30, s30, {hx(STAMPS)}')
        a('v_lshlrev_b32 v3, 2, v0')
        a('buffer_store_dword v2, v3, s[8:11], s30 offen')
        if cfg.dbg:
            a(f's_cmp_lg_u32 s2, {cfg.dbg[1]}')
            a('s_cbranch_scc1 L_dbg')
            a('s_cmp_lg_u32 s3, 0')
            a('s_cbranch_scc1 L_dbg')
            a('v_readlane_b32 s30, v2, 0')
            a('v_subrev_u32 v2, s30, v2')
            a(f'v_subrev_u32 v3, {4 * cfg.dbg[0]}, v3')
            a(f's_mov_b64 exec, 0xffff')
            a(f's_lshl_b64 exec, exec, {cfg.dbg[0]}')
            a('buffer_store_dword v2, v3, s[88:91], 0 offen')
            a('L_dbg:')
    footer(a, name)
    return name, a.finish(), dict(vgpr=256, acc=256, lds=163840)


def assemble(name, body):
    out = []
    for line in open('cdna_kernels/' + NAME + '.s.ref').read().split('\n'):
        if '@launch' in line:
            out.append('; @launch grid=(256,1,1) block=(256,1,1) lds=163840')
        elif line.startswith(';'):
            out.append(line)
        else:
            break
    out += ['.amdgcn_target "amdgcn-amd-amdhsa--gfx950"', '.text', f'.globl {name}', body, '.section .rodata,"a"',
            '.p2align 6', f'.amdhsa_kernel {name}', '  .amdhsa_next_free_vgpr 512', '  .amdhsa_next_free_sgpr 102',
            '  .amdhsa_accum_offset 256', '  .amdhsa_group_segment_fixed_size 0', '  .amdhsa_kernarg_size 80',
            '  .amdhsa_user_sgpr_count 2', '  .amdhsa_user_sgpr_kernarg_segment_ptr 1',
            '  .amdhsa_system_sgpr_workgroup_id_x 1', '  .amdhsa_float_denorm_mode_32 3', '.end_amdhsa_kernel']
    return '\n'.join(out) + '\n'


def main():
    path = sys.argv[1]
    for arg in sys.argv[2:]:
        k, v = arg.split('=')
        assert hasattr(cfg, k), k
        setattr(cfg, k, eval(v))
    name, body, _ = gen_main()
    text = assemble(name, body)
    open(path, 'w').write(text)
    open(path + '.names', 'w').write(repr(stamp_names))
    print('wrote', path, len(text), 'bytes', spin_names)


if __name__ == '__main__':
    main()
```
